```python
import torch

def _softmax(x, axis=-1):
    return torch.softmax(x, dim=axis)
def _gelu(x):
    return torch.nn.functional.gelu(x, approximate="tanh")
def _silu(x):
    return torch.nn.functional.silu(x)
def _sigmoid(x):
    return torch.sigmoid(x)
def _layernorm(x, axis=-1, eps=1e-5):
    m = x.mean(dim=axis, keepdim=True)
    v = x.var(dim=axis, keepdim=True, unbiased=False)
    return (x - m) / torch.sqrt(v + eps)
def _scatter_add(tgt, idx, src, axis=0):
    return tgt.clone().index_add_(axis, idx, src)
def _segment_sum(src, seg, n):
    out = torch.zeros((n,) + src.shape[1:], dtype=src.dtype)
    return out.index_add_(0, seg, src)
def _pad(x, pw):
    flat = tuple(v for pair in reversed(pw) for v in pair)
    return torch.nn.functional.pad(x, flat)

kernel_name = 'concat_heads__ssm_conv_h3__ssm_conv_s4__prompt'

def setup_inputs():

    _w = (lambda a: (lambda t: t.to(torch.bfloat16) if t.is_floating_point() else t)(torch.as_tensor(a)))
    def _A_setup():
        B, S, D = 1, 2048, 640
        ks = 4
        return {
            "q": _w((lambda *s: torch.randn(*s, dtype=torch.bfloat16) * 0.05)(B, S, D)),
            "k": _w((lambda *s: torch.randn(*s, dtype=torch.bfloat16) * 0.2)(B, S, D)),
            "v": _w((lambda *s: torch.randn(*s, dtype=torch.bfloat16) * 0.2)(B, S, D)),
            "shift_k": _w((lambda *s: torch.randn(*s, dtype=torch.bfloat16) * 0.2)(D, ks) * 0.5),
            "ssm_k": _w((lambda *s: torch.randn(*s, dtype=torch.bfloat16) * 0.8)(D, S) * (1.0 / S ** 0.5)),
            "ssm_D": _w((lambda *s: torch.randn(*s, dtype=torch.bfloat16) * 0.2)(D)),
        }
    _A_in = _A_setup()

    def _B_setup():
        B, L, D, N = 1, 2048, 640, 128
        A_re = -(lambda _x: torch.exp(torch.as_tensor(_x)))((lambda *s: torch.randn(*s, dtype=torch.bfloat16) * 3.2)(D, N))
        A_im = torch.pi * (lambda *s: torch.randn(*s, dtype=torch.bfloat16) * 0.05)(D, N)
        B_re = (lambda *s: torch.randn(*s, dtype=torch.bfloat16) * 0.1)(D, N)
        B_im = (lambda *s: torch.randn(*s, dtype=torch.bfloat16) * 0.1)(D, N)
        C_re = (lambda *s: torch.randn(*s, dtype=torch.bfloat16) * 0.1)(D, N)
        C_im = (lambda *s: torch.randn(*s, dtype=torch.bfloat16) * 0.1)(D, N)
        log_dt = (lambda *s: torch.randn(*s, dtype=torch.bfloat16) * 0.05)(D) * 0.5 - 4.0
        Dskip = (lambda *s: torch.randn(*s, dtype=torch.bfloat16) * 0.05)(D)
        return {
            "u": _w((lambda *s: torch.randn(*s, dtype=torch.bfloat16) * 0.05)(B, L, D)),
            "A_re": _w(A_re),
            "A_im": _w(A_im),
            "B_re": _w(B_re),
            "B_im": _w(B_im),
            "C_re": _w(C_re),
            "C_im": _w(C_im),
            "log_dt": _w(log_dt),
            "Dskip": _w(Dskip),
        }
    _B_in = _B_setup()

    return {
        "A_q": _A_in["q"],
        "A_k": _A_in["k"],
        "A_v": _A_in["v"],
        "A_shift_k": _A_in["shift_k"],
        "A_ssm_k": _A_in["ssm_k"],
        "A_ssm_D": _A_in["ssm_D"],
        "B_u": _B_in["u"],
        "B_A_re": _B_in["A_re"],
        "B_A_im": _B_in["A_im"],
        "B_B_re": _B_in["B_re"],
        "B_B_im": _B_in["B_im"],
        "B_C_re": _B_in["C_re"],
        "B_C_im": _B_in["C_im"],
        "B_log_dt": _B_in["log_dt"],
        "B_Dskip": _B_in["Dskip"],
    }

def reference(A_q, A_k, A_v, A_shift_k, A_ssm_k, A_ssm_D, B_u, B_A_re, B_A_im, B_B_re, B_B_im, B_C_re, B_C_im, B_log_dt, B_Dskip):
    def _A_ref(q, k, v, shift_k, ssm_k, ssm_D):
        B, S, D = q.shape
        ks = shift_k.shape[-1]
        k_pad = _pad(k, ((0, 0), (ks - 1, 0), (0, 0)))
        k_shift = torch.zeros_like(k)
        for t in range(ks):
            k_shift = k_shift + k_pad[:, t:t + S, :] * shift_k[:, ks - 1 - t][None, None, :]
        kv = k_shift * v
        L = 2 * S
        kv_pad = _pad(kv, ((0, 0), (0, S), (0, 0)))
        kf_pad = _pad(ssm_k, ((0, 0), (0, S)))
        kv_f = (lambda x, axes=(-2,-1): torch.fft.rfft2(x.float(), dim=axes))(kv_pad[:, None, :, :], axes=(1, 2))
        kf_f = (lambda x, axes=(-2,-1): torch.fft.rfft2(x.float(), dim=axes))(kf_pad[:, None, :], axes=(1, 2))
        kf_f = (lambda x, *d: x.permute(*d))(kf_f, 1, 2, 0)
        y_f = kv_f * kf_f[None, :, :, :]
        y = (lambda x, s, axes=(-2,-1): torch.fft.irfft2(x, s=s, dim=axes).to(torch.bfloat16))(y_f, (1, L), axes=(1, 2))[:, 0, :S, :]
        y = y + kv * ssm_D[None, None, :]
        return q * y

    def _B_ref(u, A_re, A_im, B_re, B_im, C_re, C_im, log_dt, Dskip):
        Bsz, L, D = u.shape
        dt = torch.exp(log_dt)[:, None]
        A = A_re + 1j * A_im
        Bc = B_re + 1j * B_im
        Cc = C_re + 1j * C_im
        logdA = dt * A
        dB = dt * Bc
        l = (lambda x, dt: x.to(dt))(torch.arange(L), A_re.dtype)
        P = torch.exp(logdA[:, :, None] * l[None, None, :])
        K = torch.einsum("dn,dnl,dn->dl", Cc, P, dB).real
        L2 = 2 * L
        Kp = _pad(K, ((0, 0), (0, L)))
        up = (lambda x, *d: x.permute(*d))(u, 0, 2, 1)
        up = _pad(up, ((0, 0), (0, 0), (0, L)))
        Kf = (lambda x, axes=(-2,-1): torch.fft.rfft2(x.float(), dim=axes))(Kp[:, None, :], axes=(-2, -1))
        Uf = (lambda x, axes=(-2,-1): torch.fft.rfft2(x.float(), dim=axes))(up[:, :, None, :], axes=(-2, -1))
        Yf = Uf * Kf[None, :, :, :]
        y = (lambda x, s, axes=(-2,-1): torch.fft.irfft2(x, s=s, dim=axes).to(torch.bfloat16))(Yf, (1, L2), axes=(-2, -1))[:, :, 0, :L]
        y = (lambda x, *d: x.permute(*d))(y, 0, 2, 1) + u * Dskip[None, None, :]
        return y

    a = _A_ref(A_q, A_k, A_v, A_shift_k, A_ssm_k, A_ssm_D)
    b = _B_ref(B_u, B_A_re, B_A_im, B_B_re, B_B_im, B_C_re, B_C_im, B_log_dt, B_Dskip)
    return torch.concatenate([a, b], axis=-1)
```

```python
import sys, struct

NAME = "concat_heads__ssm_conv_h3__ssm_conv_s4__prompt"
PREFETCH = True


def f32bits(x):
    return struct.unpack("<I", struct.pack("<f", x))[0]


class Asm:
    def __init__(self):
        self.lines = []
        self.lds_q = []
        self.vm_q = []

    def __call__(self, s):
        self.lines.append("    " + s)

    def label(self, s):
        self.lines.append(s + ":")

    def comment(self, s):
        self.lines.append("    ; " + s)

    def lds(self, s, tag=None):
        self(s)
        self.lds_q.append(tag)

    def lds_need(self, tag):
        idx = None
        for i, t in enumerate(self.lds_q):
            if t == tag:
                idx = i
        if idx is None:
            return
        n = len(self.lds_q) - 1 - idx
        n = min(n, 15)
        self(f"s_waitcnt lgkmcnt({n})")
        self.lds_q = self.lds_q[len(self.lds_q) - n:] if n else []

    def lds_drain(self):
        self("s_waitcnt lgkmcnt(0)")
        self.lds_q = []

    def vm(self, s, tag=None):
        self(s)
        self.vm_q.append(tag)

    def vm_need(self, tag):
        idx = None
        for i, t in enumerate(self.vm_q):
            if t == tag:
                idx = i
        if idx is None:
            return
        n = len(self.vm_q) - 1 - idx
        n = min(n, 63)
        self(f"s_waitcnt vmcnt({n})")
        self.vm_q = self.vm_q[len(self.vm_q) - n:] if n else []

    def vm_drain(self):
        self("s_waitcnt vmcnt(0)")
        self.vm_q = []


def vr(a, n=1):
    return f"v{a}" if n == 1 else f"v[{a}:{a + n - 1}]"


def sr(a, n=1):
    return f"s{a}" if n == 1 else f"s[{a}:{a + n - 1}]"


KSTR = 8320
COFF = 4160
XSTR = 4608
A_KC = 0
A_XR = A_KC + 8 * KSTR
A_S = A_XR + 8 * XSTR
A_END = A_S + 8 * 4096
B_KC = 0
B_XR = B_KC + 4 * KSTR
B_TAB = B_XR + 4 * XSTR
B_ST = B_TAB + 4 * 6144
B_S = B_ST + 32768
B_END = B_ST + 8 * 9216
LDS_BYTES = max(A_END, B_END)

S_CH0 = 3
S_W = 4
SRD_K = 8
SRD_V = 12
SRD_Q = 16
SRD_SK = 20
SRD_O = 24
SRD_PF = 28
P = dict(q=32, k=34, v=36, shift_k=38, ssm_k=40, ssm_D=42, u=44, A_re=46, A_im=48,
         B_re=50, B_im=52, C_re=54, C_im=56, log_dt=58, Dskip=60, out=62)


def mk_srd(a, d, p, nbytes):
    a(f"s_mov_b32 s{d}, s{p}")
    a(f"s_mov_b32 s{d + 1}, s{p + 1}")
    a(f"s_mov_b32 s{d + 2}, {nbytes}")
    a(f"s_mov_b32 s{d + 3}, 0x00020000")


def conv_pass(a, Es, Fbase, acc, Gbuf, nG, vFaddr, vGaddr, first_touch):
    maxD = 7 - min(Es)
    steps = []
    for D in range(maxD + 1):
        for eps in range(8):
            f = 8 * D - eps
            mm = [(idx, E) for idx, E in enumerate(Es) if E + D <= 7]
            steps.append((D, eps, f, mm))

    def issue_G(si):
        D, eps, f, mm = steps[si]
        g = Gbuf + 4 * (si % nG)
        a.lds(f"ds_read_b128 {vr(g, 4)}, v{vGaddr} offset:{64 * (56 - f)}", ("G", si))

    def issue_F(idx, E, eps):
        e = 8 * E + eps
        r = Fbase + 32 * idx + 4 * eps
        b, eo = e // 16, e % 16
        a.lds(f"ds_read2_b32 {vr(r, 2)}, v{vFaddr + b} offset0:{16 * eo} offset1:{16 * eo + 1}", None)
        a.lds(f"ds_read2_b32 {vr(r + 2, 2)}, v{vFaddr + b} offset0:{16 * eo + 2} offset1:{16 * eo + 3}", ("F", idx, eps))

    LA = nG - 1
    issued_G = 0
    issue_G(0); issued_G = 1
    for idx, E in enumerate(Es):
        issue_F(idx, E, 0)
    for si, (D, eps, f, mm) in enumerate(steps):
        if D == 0 and eps + 1 < 8:
            if issued_G <= si + 1:
                issue_G(issued_G); issued_G += 1
            for idx, E in enumerate(Es):
                issue_F(idx, E, eps + 1)
        else:
            while issued_G < len(steps) and issued_G <= si + LA:
                issue_G(issued_G); issued_G += 1
        g = Gbuf + 4 * (si % nG)
        a.lds_need(("G", si))
        for idx, E in mm:
            if D == 0:
                a.lds_need(("F", idx, eps))
            p = E + D
            r = Fbase + 32 * idx + 4 * eps
            c = vr(acc + 4 * p, 4)
            if p in first_touch:
                first_touch.discard(p)
                a(f"v_mfma_f32_16x16x32_bf16 {c}, {vr(r, 4)}, {vr(g, 4)}, 0")
            else:
                a(f"v_mfma_f32_16x16x32_bf16 {c}, {vr(r, 4)}, {vr(g, 4)}, {c}")


def conv_addrs(a, vlane, vFaddr, vGaddr, vt, sKC, sXR):
    a(f"v_and_b32 v{vt}, 15, v{vlane}")
    a(f"v_lshrrev_b32 v{vt + 1}, 4, v{vlane}")
    a(f"v_add_u32 v{vt + 2}, 1, v{vt}")
    a(f"v_lshrrev_b32 v{vt + 2}, 1, v{vt + 2}")
    a(f"v_lshl_add_u32 v{vt + 2}, v{vt + 1}, 2, v{vt + 2}")
    a(f"v_lshlrev_b32 v{vt + 2}, 2, v{vt + 2}")
    a(f"v_and_b32 v{vt + 3}, 1, v{vt}")
    a(f"v_xor_b32 v{vt + 3}, 1, v{vt + 3}")
    a(f"v_mul_u32_u24 v{vt + 3}, {COFF}, v{vt + 3}")
    a(f"v_add3_u32 v{vFaddr}, v{vt + 2}, v{vt + 3}, s{sKC}")
    for b in range(1, 4):
        a(f"v_add_u32 v{vFaddr + b}, {1024 * b}, v{vFaddr}")
    a(f"v_lshlrev_b32 v{vt + 2}, 5, v{vt}")
    a(f"v_lshlrev_b32 v{vt + 3}, 4, v{vt + 1}")
    a(f"v_sub_u32 v{vt + 3}, v{vt + 3}, v{vt + 2}")
    a(f"v_add_u32 v{vt + 3}, 480, v{vt + 3}")
    a(f"v_add_u32 v{vGaddr}, s{sXR}, v{vt + 3}")


def gen():
    a = Asm()
    a(f"s_load_dwordx16 s[32:47], s[0:1], 0")
    a(f"s_load_dwordx16 s[48:63], s[0:1], 64")
    a("s_and_b32 s5, s2, 7")
    a("s_lshr_b32 s6, s2, 3")
    a("v_lshrrev_b32 v2, 6, v0")
    a("v_and_b32 v1, 63, v0")
    a("s_cmp_lt_u32 s5, 4")
    a("s_cselect_b32 s7, 3, 2")
    a(f"v_readfirstlane_b32 s{S_W}, v2")
    a("s_mul_i32 s64, s5, 3")
    a("s_lshl_b32 s65, s5, 1")
    a("s_add_u32 s66, s65, 4")
    a("s_cmp_lt_u32 s5, 4")
    a("s_cselect_b32 s66, s64, s66")
    a("s_sub_u32 s67, s64, 4")
    a("s_cmp_lt_u32 s5, 4")
    a("s_cselect_b32 s67, s65, s67")
    a("s_lshl_b32 s68, s7, 2")
    a("s_sub_u32 s69, 5, s7")
    a("s_lshl_b32 s70, s69, 3")
    a("s_add_u32 s70, s70, s68")
    a("s_cmp_ge_u32 s6, s70")
    a("s_cbranch_scc1 L_end")
    a("s_waitcnt lgkmcnt(0)")
    if PREFETCH:
        a("s_mul_i32 s71, s7, 3")
        a("s_add_u32 s72, s71, s69")
        a("s_cmp_eq_u32 s72, 11")
        a("s_movk_i32 s73, 7282")
        a("s_cselect_b32 s73, 5958, s73")
        a("s_lshl_b32 s74, s6, 3")
        a(f"s_add_u32 s74, s74, s{S_W}")
        a("s_lshl_b32 s75, s70, 3")
        a("s_lshl_b32 s76, s72, 5")
        a("v_mul_u32_u24 v3, 1280, v1")
        a(f"s_mov_b32 s{SRD_PF + 2}, 2621440")
        a(f"s_mov_b32 s{SRD_PF + 3}, 0x00020000")
        for it in range(2):
            if it == 1:
                a("s_add_u32 s74, s74, s75")
                a("s_cmp_ge_u32 s74, s76")
                a("s_cbranch_scc1 L_pf_done")
            a("s_mul_i32 s77, s74, s73")
            a("s_lshr_b32 s77, s77, 16")
            a("s_mul_i32 s78, s77, s72")
            a("s_sub_u32 s78, s74, s78")
            a("s_mul_i32 s79, s78, 43")
            a("s_lshr_b32 s79, s79, 7")
            a("s_mul_i32 s80, s79, 3")
            a("s_sub_u32 s80, s78, s80")
            a("s_add_u32 s79, s79, s66")
            a("s_cmp_eq_u32 s80, 0")
            a(f"s_cselect_b32 s{SRD_PF}, s{P['k']}, s{P['v']}")
            a(f"s_cselect_b32 s{SRD_PF + 1}, s{P['k'] + 1}, s{P['v'] + 1}")
            a("s_cmp_eq_u32 s80, 2")
            a(f"s_cselect_b32 s{SRD_PF}, s{P['q']}, s{SRD_PF}")
            a(f"s_cselect_b32 s{SRD_PF + 1}, s{P['q'] + 1}, s{SRD_PF + 1}")
            a("s_sub_u32 s81, s78, s71")
            a("s_add_u32 s81, s81, s67")
            a("s_cmp_ge_u32 s78, s71")
            a(f"s_cselect_b32 s{SRD_PF}, s{P['u']}, s{SRD_PF}")
            a(f"s_cselect_b32 s{SRD_PF + 1}, s{P['u'] + 1}, s{SRD_PF + 1}")
            a("s_cselect_b32 s79, s81, s79")
            a("s_lshl_b32 s79, s79, 6")
            a("s_mul_i32 s77, s77, 81920")
            a("s_add_u32 s77, s77, s79")
            a(f"buffer_load_dword v{4 + it}, v3, s[{SRD_PF}:{SRD_PF + 3}], s77 offen")
        a.label("L_pf_done")
    a("s_cmp_ge_u32 s6, s68")
    a("s_cbranch_scc1 L_B")

    a.vm_q = []
    a("s_lshr_b32 s71, s6, 2")
    a("s_add_u32 s71, s71, s66")
    a("s_and_b32 s72, s6, 3")
    a("s_lshl_b32 s71, s71, 5")
    a("s_lshl_b32 s72, s72, 3")
    a(f"s_add_u32 s{S_CH0}, s71, s72")
    mk_srd(a, SRD_K, P['k'], 2621440)
    mk_srd(a, SRD_V, P['v'], 2621440)
    mk_srd(a, SRD_Q, P['q'], 2621440)
    mk_srd(a, SRD_SK, P['ssm_k'], 2621440)
    mk_srd(a, SRD_O, P['out'], 5242880)
    a(f"s_lshl_b32 s5, s{S_CH0}, 3")
    a(f"s_lshl_b32 s6, s{S_CH0}, 1")
    a(f"s_load_dwordx16 s[64:79], s[{P['shift_k']}:{P['shift_k'] + 1}], s5")
    a(f"s_load_dwordx4 s[80:83], s[{P['ssm_D']}:{P['ssm_D'] + 1}], s6")
    a(f"s_add_u32 s7, s{S_CH0}, s{S_W}")
    a("s_lshl_b32 s7, s7, 12")
    a("v_lshlrev_b32 v2, 4, v1")
    for j in range(4):
        a.vm(f"buffer_load_dwordx4 {vr(128 + 4 * j, 4)}, v2, s[{SRD_SK}:{SRD_SK + 3}], s7 offen offset:{1024 * j}", "K")
    for j in range(4):
        a.vm(f"buffer_load_dwordx4 {vr(144 + 4 * j, 4)}, v2, s[{SRD_SK}:{SRD_SK + 3}], s7 offen offset:{1024 * j + 4}", "K")
    a(f"s_mul_i32 s7, s{S_W}, {256 * 1280}")
    a("s_add_u32 s7, s7, s6")
    a("v_mul_u32_u24 v3, 5120, v1")
    a("v_add_u32 v3, s7, v3")
    a("s_sub_u32 s5, s7, 3840")
    a("v_mov_b32 v6, s5")
    KR = 160
    VR = 188
    for j in range(3):
        a.vm(f"buffer_load_dwordx4 {vr(KR + 4 * j, 4)}, v6, s[{SRD_K}:{SRD_K + 3}], 0 offen offset:{1280 * j}", "x")
    for j in range(4):
        a.vm(f"buffer_load_dwordx4 {vr(KR + 12 + 4 * j, 4)}, v3, s[{SRD_K}:{SRD_K + 3}], 0 offen offset:{1280 * j}", "x")
    for j in range(4):
        a.vm(f"buffer_load_dwordx4 {vr(VR + 4 * j, 4)}, v3, s[{SRD_V}:{SRD_V + 3}], 0 offen offset:{1280 * j}", "x")
    a(f"s_mul_i32 s84, s{S_W}, {KSTR}")
    a(f"s_mul_i32 s85, s{S_W}, {XSTR}")
    a(f"s_add_u32 s85, s85, {A_XR}")
    a("v_mov_b32 v8, 0")
    a("v_mov_b32 v9, 0")
    a("v_lshlrev_b32 v7, 3, v1")
    a("v_add_u32 v7, s85, v7")
    a("ds_write_b64 v7, v[8:9] offset:4096")
    a("s_waitcnt lgkmcnt(0)")
    for d in range(8):
        for h in range(2):
            src = 64 + 2 * d + h
            a(f"s_lshl_b32 s{32 + 4 * d + 2 * h}, s{src}, 16")
            a(f"s_and_b32 s{32 + 4 * d + 2 * h + 1}, s{src}, 0xffff0000")
    for h in range(4):
        a(f"s_lshl_b32 s{88 + 2 * h}, s{80 + h}, 16")
        a(f"s_and_b32 s{88 + 2 * h + 1}, s{80 + h}, 0xffff0000")
    a.vm_need("K")
    a("v_add_u32 v7, s84, v2")
    for j in range(4):
        a(f"ds_write_b128 v7, {vr(128 + 4 * j, 4)} offset:{32 + 1024 * j}")
    a("v_readlane_b32 s5, v128, 0")
    for j in range(4):
        for x in range(4):
            a(f"v_alignbit_b32 v{144 + 4 * j + x}, v{144 + 4 * j + x}, v{128 + 4 * j + x}, 16")
    a("s_lshl_b32 s5, s5, 16")
    for j in range(4):
        a(f"ds_write_b128 v7, {vr(144 + 4 * j, 4)} offset:{COFF + 32 + 1024 * j}")
    a("v_writelane_b32 v9, s5, 7")
    a("v_lshlrev_b32 v7, 2, v1")
    a("v_add_u32 v7, s84, v7")
    a("v_cmp_gt_u32 vcc, 8, v1")
    a("s_and_saveexec_b64 s[86:87], vcc")
    a("ds_write_b32 v7, v8")
    a(f"ds_write_b32 v7, v9 offset:{COFF}")
    a("s_mov_b64 exec, s[86:87]")
    a.vm_need("x")
    for j in range(3):
        for c in range(4):
            a(f"v_mov_b32_dpp v{KR + 4 * j + c}, v{KR + 12 + 4 * (j + 1) + c} wave_shr:1 row_mask:0xf bank_mask:0xf")
    a(f"s_lshl_b32 s5, s{S_W}, 9")
    a(f"s_sub_u32 s5, {A_XR + 4088}, s5")
    a("v_lshlrev_b32 v7, 3, v1")
    a("v_sub_u32 v7, s5, v7")
    KV = 64
    T = 16
    for c in range(4):
        for hh in range(2):
            d = 2 * c + hh
            for r in range(7):
                if hh == 0:
                    a(f"v_lshlrev_b32 v{T + r}, 16, v{KR + 4 * r + c}")
                else:
                    a(f"v_and_b32 v{T + r}, 0xffff0000, v{KR + 4 * r + c}")
            for r in range(4):
                if hh == 0:
                    a(f"v_lshlrev_b32 v{T + 8 + r}, 16, v{VR + 4 * r + c}")
                else:
                    a(f"v_and_b32 v{T + 8 + r}, 0xffff0000, v{VR + 4 * r + c}")
            for r in range(4):
                a(f"v_mul_f32 v{T + 12 + r}, s{32 + 4 * d + 3}, v{T + r}")
            for jj in (2, 1, 0):
                for r in range(4):
                    a(f"v_fmac_f32 v{T + 12 + r}, s{32 + 4 * d + jj}, v{T + 3 + r - jj}")
            for r in range(4):
                a(f"v_mul_f32 v{T + 12 + r}, v{T + 12 + r}, v{T + 8 + r}")
            a(f"v_cvt_pk_bf16_f32 v{KV + 2 * d}, v{T + 15}, v{T + 14}")
            a(f"v_cvt_pk_bf16_f32 v{KV + 2 * d + 1}, v{T + 13}, v{T + 12}")
            a(f"ds_write_b64 v7, {vr(KV + 2 * d, 2)} offset:{XSTR * d}")
    QR = 48
    for j in range(4):
        a.vm(f"buffer_load_dwordx4 {vr(QR + 4 * j, 4)}, v3, s[{SRD_Q}:{SRD_Q + 3}], 0 offen offset:{1280 * j}", "q")
    conv_addrs(a, 1, 8, 12, T, 84, 85)
    a("s_waitcnt lgkmcnt(0)")
    a("s_barrier")
    a.lds_q = []
    ACC = 96
    ft = set(range(8))
    conv_pass(a, [4, 5, 6, 7], 128, ACC, 80, 4, 8, 12, ft)
    conv_pass(a, [0, 1, 2, 3], 128, ACC, 80, 4, 8, 12, ft)
    a(f"s_lshl_b32 s5, s{S_W}, 12")
    a(f"s_add_u32 s5, s5, {A_S}")
    a("v_lshlrev_b32 v7, 3, v1")
    a("v_add_u32 v7, s5, v7")
    a("s_nop 7")
    for p in range(8):
        a(f"v_cvt_pk_bf16_f32 v{T + 2 * p}, v{ACC + 4 * p}, v{ACC + 4 * p + 1}")
        a(f"v_cvt_pk_bf16_f32 v{T + 2 * p + 1}, v{ACC + 4 * p + 2}, v{ACC + 4 * p + 3}")
        a(f"ds_write_b64 v7, {vr(T + 2 * p, 2)} offset:{512 * p}")
    a("v_and_b32 v8, 3, v1")
    a("v_lshrrev_b32 v9, 2, v1")
    a("v_lshl_add_u32 v8, v8, 4, v9")
    a("v_lshlrev_b32 v8, 3, v8")
    a(f"s_lshl_b32 s5, s{S_W}, 9")
    a(f"s_add_u32 s5, s5, {A_S}")
    a("v_add_u32 v8, s5, v8")
    a("s_waitcnt lgkmcnt(0)")
    a("s_barrier")
    Y = 128
    for d in range(8):
        a(f"ds_read_b64 {vr(Y + 2 * d, 2)}, v8 offset:{4096 * d}")
    a("v_lshlrev_b32 v9, 1, v3")
    a("v_subrev_u32 v9, s6, v9")
    a.vm_need("q")
    a("s_waitcnt lgkmcnt(0)")
    O = 160
    for d in range(8):
        c, hh = d // 2, d % 2
        a(f"v_lshlrev_b32 v{T}, 16, v{Y + 2 * d}")
        a(f"v_and_b32 v{T + 1}, 0xffff0000, v{Y + 2 * d}")
        a(f"v_lshlrev_b32 v{T + 2}, 16, v{Y + 2 * d + 1}")
        a(f"v_and_b32 v{T + 3}, 0xffff0000, v{Y + 2 * d + 1}")
        a(f"v_and_b32 v{T + 4}, 0xffff0000, v{KV + 2 * d + 1}")
        a(f"v_lshlrev_b32 v{T + 5}, 16, v{KV + 2 * d + 1}")
        a(f"v_and_b32 v{T + 6}, 0xffff0000, v{KV + 2 * d}")
        a(f"v_lshlrev_b32 v{T + 7}, 16, v{KV + 2 * d}")
        for r in range(4):
            a(f"v_fmac_f32 v{T + r}, s{88 + d}, v{T + 4 + r}")
        for r in range(4):
            if hh == 0:
                a(f"v_lshlrev_b32 v{T + 4 + r}, 16, v{QR + 4 * r + c}")
            else:
                a(f"v_and_b32 v{T + 4 + r}, 0xffff0000, v{QR + 4 * r + c}")
        for r in range(4):
            a(f"v_mul_f32 v{O + 8 * r + d}, v{T + r}, v{T + 4 + r}")
    for r in range(4):
        for c in range(4):
            a(f"v_cvt_pk_bf16_f32 v{Y + 4 * r + c}, v{O + 8 * r + 2 * c}, v{O + 8 * r + 2 * c + 1}")
        if r == 0:
            a(f"buffer_store_dwordx4 {vr(Y, 4)}, v9, s[{SRD_O}:{SRD_O + 3}], 0 offen")
        elif r == 1:
            a(f"buffer_store_dwordx4 {vr(Y + 4, 4)}, v9, s[{SRD_O}:{SRD_O + 3}], 0 offen offset:2560")
        else:
            if r == 2:
                a("v_add_u32 v9, 5120, v9")
            a(f"buffer_store_dwordx4 {vr(Y + 4 * r, 4)}, v9, s[{SRD_O}:{SRD_O + 3}], 0 offen offset:{2560 * (r - 2)}")
    a("s_endpgm")

    a.label("L_B")
    a.vm_q = []
    a.lds_q = []
    a("s_sub_u32 s6, s6, s68")
    a("s_lshr_b32 s71, s6, 3")
    a("s_add_u32 s71, s71, s67")
    a("s_and_b32 s72, s6, 7")
    a("s_lshl_b32 s71, s71, 5")
    a("s_lshl_b32 s72, s72, 2")
    a(f"s_add_u32 s{S_CH0}, s71, s72")
    mk_srd(a, SRD_K, P['u'], 2621440)
    mk_srd(a, SRD_O, P['out'], 5242880)
    a(f"s_lshl_b32 s6, s{S_CH0}, 1")
    a(f"s_load_dwordx2 s[80:81], s[{P['log_dt']}:{P['log_dt'] + 1}], s6")
    a(f"s_load_dwordx2 s[82:83], s[{P['Dskip']}:{P['Dskip'] + 1}], s6")
    a(f"s_lshr_b32 s64, s{S_W}, 1")
    a(f"s_and_b32 s65, s{S_W}, 1")
    a(f"s_add_u32 s5, s{S_CH0}, s64")
    a("s_lshl_b32 s5, s5, 8")
    a("s_lshl_b32 s7, s65, 7")
    a("s_add_u32 s5, s5, s7")
    a("v_lshlrev_b32 v2, 1, v1")
    a("v_add_u32 v2, s5, v2")
    PR = 16
    names = ["A_re", "A_im", "B_re", "B_im", "C_re", "C_im"]
    for i, nm in enumerate(names):
        a.vm(f"global_load_ushort v{PR + i}, v2, s[{P[nm]}:{P[nm] + 1}]", "par")
    a(f"s_mul_i32 s7, s{S_W}, {256 * 1280}")
    a("s_add_u32 s7, s7, s6")
    a("v_mul_u32_u24 v3, 5120, v1")
    a("v_add_u32 v3, s7, v3")
    UR = 40
    for j in range(4):
        a.vm(f"buffer_load_dwordx2 {vr(UR + 2 * j, 2)}, v3, s[{SRD_K}:{SRD_K + 3}], 0 offen offset:{1280 * j}", "u")
    a(f"s_mul_i32 s84, s64, {KSTR}")
    a(f"s_mul_i32 s85, s64, {XSTR}")
    a(f"s_add_u32 s85, s85, {B_XR}")
    a(f"s_mul_i32 s86, s{S_W}, 9216")
    a(f"s_add_u32 s86, s86, {B_ST}")
    a(f"s_mul_i32 s87, s64, 6144")
    a(f"s_add_u32 s87, s87, {B_TAB}")
    a("v_mov_b32 v8, 0")
    a("v_mov_b32 v9, 0")
    a("v_lshlrev_b32 v7, 3, v1")
    a("v_add_u32 v7, s85, v7")
    a("ds_write_b64 v7, v[8:9] offset:4096")
    a("s_waitcnt lgkmcnt(0)")
    a("s_lshr_b32 s5, s64, 1")
    a("s_cmp_eq_u32 s5, 0")
    a("s_cselect_b32 s66, s80, s81")
    a("s_and_b32 s5, s64, 1")
    a("s_lshl_b32 s67, s66, 16")
    a("s_and_b32 s66, s66, 0xffff0000")
    a("s_cmp_eq_u32 s5, 0")
    a("s_cselect_b32 s66, s67, s66")
    for h in range(2):
        a(f"s_lshl_b32 s{88 + 2 * h}, s{82 + h}, 16")
        a(f"s_and_b32 s{88 + 2 * h + 1}, s{82 + h}, 0xffff0000")
    L2E = 1.4426950408889634
    L2E_hi = struct.unpack("<f", struct.pack("<f", L2E))[0]
    L2E_lo = L2E - L2E_hi
    a(f"s_mov_b32 s68, {f32bits(L2E_hi):#x}")
    a(f"s_mov_b32 s69, {f32bits(L2E_lo):#x}")
    a(f"s_mov_b32 s70, {f32bits(0.6931471805599453):#x}")
    a("v_mov_b32 v10, s66")
    a("v_mul_f32 v11, s68, v10")
    a("v_fma_f32 v12, v10, s68, -v11")
    a("v_fmac_f32 v12, s69, v10")
    a("v_exp_f32 v13, v11")
    a("v_mul_f32 v12, s70, v12")
    a("s_nop 0")
    a("v_fma_f32 v13, v13, v12, v13")
    a("v_cvt_pk_bf16_f32 v13, v13, v13")
    a("v_lshlrev_b32 v13, 16, v13")
    a.vm_need("par")
    for i in range(6):
        a(f"v_lshlrev_b32 v{PR + i}, 16, v{PR + i}")
    for i in range(4):
        a(f"v_mul_f32 v{PR + i}, v13, v{PR + i}")

    def cmul(d, x, y):
        a(f"v_pk_mul_f32 {vr(14, 2)}, {vr(x, 2)}, {vr(y, 2)} op_sel:[0,0] op_sel_hi:[1,0]")
        a(f"v_pk_fma_f32 {vr(d, 2)}, {vr(x, 2)}, {vr(y, 2)}, {vr(14, 2)} op_sel:[1,1,0] op_sel_hi:[0,1,1] neg_lo:[1,0,0]")

    I2P = 0.15915494309189535
    I2P_hi = struct.unpack("<f", struct.pack("<f", I2P))[0]
    I2P_lo = I2P - I2P_hi
    a(f"s_mov_b32 s71, {f32bits(I2P_hi):#x}")
    a(f"s_mov_b32 s72, {f32bits(I2P_lo):#x}")

    def anchor(d, lam, conj=False):
        t = 10
        a(f"s_mov_b32 s73, {f32bits(float(lam)):#x}")
        a(f"v_mul_f32 v{t}, s73, v{PR}")
        a(f"v_mul_f32 v{t + 1}, s73, v{PR + 1}")
        a(f"v_mul_f32 v{t}, s68, v{t}")
        a(f"v_mul_f32 v{t + 2}, s71, v{t + 1}")
        a(f"v_exp_f32 v{t}, v{t}")
        a(f"v_fma_f32 v{t + 3}, v{t + 1}, s71, -v{t + 2}")
        a(f"v_fmac_f32 v{t + 3}, s72, v{t + 1}")
        a(f"v_fract_f32 v{t + 2}, v{t + 2}")
        a(f"v_add_f32 v{t + 2}, v{t + 2}, v{t + 3}")
        a(f"v_cos_f32 v{t + 1}, v{t + 2}")
        a(f"v_sin_f32 v{t + 3}, v{t + 2}")
        a("s_nop 0")
        a(f"v_mul_f32 v{d}, v{t}, v{t + 1}")
        if conj:
            a(f"v_mul_f32 v{d + 1}, -v{t}, v{t + 3}" if False else f"v_mul_f32_e64 v{d + 1}, -v{t}, v{t + 3}")
        else:
            a(f"v_mul_f32 v{d + 1}, v{t}, v{t + 3}")

    a("v_lshlrev_b32 v4, 2, v1")
    a("v_add_u32 v4, s86, v4")
    a("v_and_b32 v5, 15, v1")
    a("v_mul_u32_u24 v5, 288, v5")
    a("v_lshrrev_b32 v6, 4, v1")
    a("v_lshl_add_u32 v5, v6, 4, v5")
    a("v_add_u32 v5, s86, v5")

    def put(x, row):
        a(f"v_cvt_pk_bf16_f32 v10, v{x}, v{x + 1}")
        a("v_lshlrev_b32 v12, 16, v10")
        a("v_and_b32 v13, 0xffff0000, v10")
        a(f"ds_write_b32 v4, v10 offset:{288 * row}")
        a(f"v_pk_add_f32 v[12:13], {vr(x, 2)}, v[12:13] neg_lo:[0,1] neg_hi:[0,1]")
        a("v_cvt_pk_bf16_f32 v11, v12, v13")
        a(f"ds_write_b32 v4, v11 offset:{4608 + 288 * row}")

    Z8, Z64, ZC = 22, 24, 26
    ZE = 48
    CT = 28
    Z128, Z1024 = 30, 32
    HH = 34
    TMP = 36
    E2F = 64
    E1F = 96
    KD = 128
    anchor(Z8, 8, conj=True)
    anchor(Z64, 64, conj=True)
    a(f"v_mov_b32 v{ZC}, 1.0")
    a(f"v_mov_b32 v{ZC + 1}, 0")
    put(ZC, 0)
    put(Z8, 1)
    cur = Z8
    for r in range(2, 16):
        if r == 8:
            put(Z64, 8)
            cur = Z64
            continue
        dst = ZC if cur != ZC else TMP
        cmul(dst, cur, Z8)
        put(dst, r)
        cur = dst
    a("s_waitcnt lgkmcnt(0)")
    for ks in range(4):
        a(f"ds_read_b128 {vr(E2F + 4 * ks, 4)}, v5 offset:{64 * ks}")
        a(f"ds_read_b128 {vr(E2F + 16 + 4 * ks, 4)}, v5 offset:{4608 + 64 * ks}")
    anchor(ZE + 2, 1)
    cmul(ZE + 4, ZE + 2, ZE + 2)
    cmul(ZE + 6, ZE + 4, ZE + 2)
    cmul(ZE + 8, ZE + 4, ZE + 4)
    cmul(ZE + 10, ZE + 8, ZE + 2)
    cmul(ZE + 12, ZE + 8, ZE + 4)
    cmul(ZE + 14, ZE + 8, ZE + 6)
    cmul(CT, PR + 4, PR + 2)
    anchor(Z128, 128)
    anchor(Z1024, 1024)
    a("s_waitcnt lgkmcnt(0)")

    def mfma_tile(m):
        a("s_waitcnt lgkmcnt(0)")
        for ks in range(4):
            a(f"ds_read_b128 {vr(E1F + 4 * ks, 4)}, v5 offset:{64 * ks}")
            a(f"ds_read_b128 {vr(E1F + 16 + 4 * ks, 4)}, v5 offset:{4608 + 64 * ks}")
        a("s_waitcnt lgkmcnt(0)")
        c = vr(KD + 4 * m, 4)
        first = True
        for ks in range(4):
            for (x, y) in ((16, 0), (0, 16), (0, 0)):
                src = "0" if first else c
                first = False
                a(f"v_mfma_f32_16x16x32_bf16 {c}, {vr(E1F + x + 4 * ks, 4)}, {vr(E2F + y + 4 * ks, 4)}, {src}")

    HA, HB = HH, 38
    state = {"cur": CT, "h": 0}

    def next_H():
        h = state["h"] + 1
        dst = HA if state["cur"] != HA else HB
        if h == 8:
            cmul(dst, CT, Z1024)
        else:
            cmul(dst, state["cur"], Z128)
        state["cur"] = dst
        state["h"] = h
        return dst

    for h in range(2):
        H = state["cur"] if h == 0 else next_H()
        put(H, 8 * h)
        for eps in range(1, 8):
            cmul(TMP, H, ZE + 2 * eps)
            put(TMP, 8 * h + eps)
    mfma_tile(0)
    for hp in range(2):
        H = next_H()
        put(H, 4 * hp)
        for ep in range(1, 4):
            cmul(TMP, H, ZE + 4 * ep)
            put(TMP, 4 * hp + ep)
    for hp in range(4):
        H = next_H()
        put(H, 8 + 2 * hp)
        cmul(TMP, H, ZE + 8)
        put(TMP, 8 + 2 * hp + 1)
    mfma_tile(1)
    for hp in range(9):
        H = next_H()
        put(H, hp)
    mfma_tile(2)
    a("v_and_b32 v10, 15, v1")
    a("v_lshrrev_b32 v11, 4, v1")
    a("s_lshl_b32 s5, s65, 2")
    a("s_add_u32 s5, s5, s87")
    a("v_lshrrev_b32 v12, 1, v11")
    a("v_lshlrev_b32 v12, 7, v12")
    a("v_and_b32 v13, 1, v11")
    a("v_lshl_add_u32 v12, v13, 2, v12")
    a("v_lshl_add_u32 v12, v10, 3, v12")
    a("v_lshl_add_u32 v12, v12, 3, s5")
    a("v_lshlrev_b32 v13, 6, v11")
    a("v_add_u32 v13, 256, v13")
    a("v_cmp_gt_u32 vcc, 2, v11")
    a("v_lshlrev_b32 v14, 2, v10")
    a("v_lshlrev_b32 v15, 1, v10")
    a("v_cndmask_b32 v14, v15, v14, vcc")
    a("v_add_u32 v13, v13, v14")
    a("v_lshl_add_u32 v13, v13, 3, s5")
    a("v_mov_b32 v14, 256")
    a("v_cndmask_b32 v14, v14, 16, vcc" if False else "v_cndmask_b32_e64 v14, v14, 16, vcc")
    a("v_add_u32 v14, v13, v14")
    a("v_lshl_add_u32 v15, v11, 6, v10")
    a("v_add_u32 v15, 512, v15")
    a("v_lshl_add_u32 v15, v15, 3, s5")
    a("s_nop 7")
    for j in range(4):
        a(f"ds_write_b32 v12, v{KD + j} offset:{8 * j}")
    a(f"ds_write_b32 v13, v{KD + 4}")
    a(f"ds_write_b32 v13, v{KD + 5} offset:8")
    a(f"ds_write_b32 v14, v{KD + 6}")
    a(f"ds_write_b32 v14, v{KD + 7} offset:8")
    for j in range(4):
        a(f"ds_write_b32 v15, v{KD + 8 + j} offset:{128 * j}")
    a.vm_need("u")
    UK = 32
    a("s_mov_b32 s71, 0x05040100")
    a("s_mov_b32 s72, 0x07060302")
    a(f"s_lshl_b32 s5, s{S_W}, 9")
    a(f"s_sub_u32 s5, {B_XR + 4088}, s5")
    a("v_lshlrev_b32 v7, 3, v1")
    a("v_sub_u32 v7, s5, v7")
    for d in range(4):
        c, hh = d // 2, d % 2
        sel = "s71" if hh == 0 else "s72"
        a(f"v_perm_b32 v{UK + 2 * d}, v{UR + 2 * 2 + c}, v{UR + 2 * 3 + c}, {sel}")
        a(f"v_perm_b32 v{UK + 2 * d + 1}, v{UR + 2 * 0 + c}, v{UR + 2 * 1 + c}, {sel}")
        a(f"ds_write_b64 v7, {vr(UK + 2 * d, 2)} offset:{XSTR * d}")
    a("s_waitcnt lgkmcnt(0)")
    a("s_barrier")
    GV = 48
    for rd in range(2):
        a("s_lshl_b32 s5, s65, 10")
        a(f"s_add_u32 s5, s5, {512 * rd}")
        a("v_lshlrev_b32 v10, 3, v1")
        a("v_add_u32 v10, s5, v10")
        for x in range(9):
            a(f"v_add_u32 v11, {x}, v10")
            a("v_cvt_f32_u32 v12, v11")
            a("v_cvt_pk_bf16_f32 v12, v12, v12")
            a("v_and_b32 v12, 0xffff, v12")
            a("v_subrev_u32 v12, 17024, v12")
            a("v_cmp_gt_u32 vcc, 128, v11")
            a("s_nop 1")
            a("v_cndmask_b32 v12, v12, v11, vcc")
            a("v_lshl_add_u32 v12, v12, 3, s87")
            a(f"ds_read_b64 {vr(GV + 2 * x, 2)}, v12")
        a("s_waitcnt lgkmcnt(0)")
        for x in range(9):
            a(f"v_add_f32 v{GV + 2 * x}, v{GV + 2 * x}, v{GV + 2 * x + 1}")
        for x in range(4):
            a(f"v_cvt_pk_bf16_f32 v{16 + x}, v{GV + 4 * x}, v{GV + 4 * x + 2}")
            a(f"v_cvt_pk_bf16_f32 v{20 + x}, v{GV + 4 * x + 2}, v{GV + 4 * x + 4}")
        a("v_lshlrev_b32 v11, 1, v10")
        a("v_add_u32 v11, s84, v11")
        a("ds_write_b128 v11, v[16:19] offset:32")
        a(f"ds_write_b128 v11, v[20:23] offset:{COFF + 32}")
        if rd == 0:
            a("s_cmp_lg_u32 s65, 0")
            a("s_cbranch_scc1 L_B_nopad")
            a("v_readlane_b32 s5, v16, 0")
            a("s_lshl_b32 s5, s5, 16")
            a("v_mov_b32 v8, 0")
            a("v_mov_b32 v9, 0")
            a("v_writelane_b32 v9, s5, 7")
            a("v_lshlrev_b32 v7, 2, v1")
            a("v_add_u32 v7, s84, v7")
            a("v_cmp_gt_u32 vcc, 8, v1")
            a("s_and_saveexec_b64 s[74:75], vcc")
            a("ds_write_b32 v7, v8")
            a(f"ds_write_b32 v7, v9 offset:{COFF}")
            a("s_mov_b64 exec, s[74:75]")
            a.label("L_B_nopad")
    conv_addrs(a, 1, 8, 12, 16, 84, 85)
    a("s_waitcnt lgkmcnt(0)")
    a("s_barrier")
    ACCB = 64
    a("s_lshl_b32 s5, s64, 13")
    a(f"s_add_u32 s5, s5, {B_ST}")
    a("v_lshlrev_b32 v13, 4, v1")
    a("v_add_u32 v13, s5, v13")
    a("s_cmp_lg_u32 s65, 0")
    a("s_cbranch_scc1 L_B_h1")
    a.lds_q = []
    ft = set(range(8))
    conv_pass(a, [0, 1, 5], 96, ACCB, 48, 4, 8, 12, ft)
    a("s_barrier")
    for p in range(2, 8):
        a(f"ds_read_b128 {vr(96 + 4 * p, 4)}, v13 offset:{1024 * p}")
    a("s_waitcnt lgkmcnt(0)")
    for p in range(2, 8):
        for x in range(4):
            a(f"v_add_f32 v{ACCB + 4 * p + x}, v{ACCB + 4 * p + x}, v{96 + 4 * p + x}")
    a("s_lshl_b32 s5, s64, 12")
    a(f"s_add_u32 s5, s5, {B_S}")
    a("v_lshlrev_b32 v7, 3, v1")
    a("v_add_u32 v7, s5, v7")
    for p in range(8):
        a(f"v_cvt_pk_bf16_f32 v{16 + 2 * p}, v{ACCB + 4 * p}, v{ACCB + 4 * p + 1}")
        a(f"v_cvt_pk_bf16_f32 v{16 + 2 * p + 1}, v{ACCB + 4 * p + 2}, v{ACCB + 4 * p + 3}")
        a(f"ds_write_b64 v7, {vr(16 + 2 * p, 2)} offset:{512 * p}")
    a("s_branch L_B_fin")
    a.label("L_B_h1")
    a.lds_q = []
    ft = set(range(8))
    conv_pass(a, [2, 3, 4, 6, 7], 96, ACCB, 48, 4, 8, 12, ft)
    a("s_nop 7")
    for p in range(2, 8):
        a(f"ds_write_b128 v13, {vr(ACCB + 4 * p, 4)} offset:{1024 * p}")
    a("s_waitcnt lgkmcnt(0)")
    a("s_barrier")
    a.label("L_B_fin")
    a("v_and_b32 v8, 3, v1")
    a("v_lshrrev_b32 v9, 2, v1")
    a("v_lshl_add_u32 v8, v8, 4, v9")
    a("v_lshlrev_b32 v8, 3, v8")
    a(f"s_lshl_b32 s5, s{S_W}, 9")
    a(f"s_add_u32 s5, s5, {B_S}")
    a("v_add_u32 v8, s5, v8")
    a("s_waitcnt lgkmcnt(0)")
    a("s_barrier")
    Y = 128
    for d in range(4):
        a(f"ds_read_b64 {vr(Y + 2 * d, 2)}, v8 offset:{4096 * d}")
    a("v_lshlrev_b32 v9, 1, v3")
    a("v_subrev_u32 v9, s6, v9")
    a("v_add_u32 v9, 1280, v9")
    a("s_waitcnt lgkmcnt(0)")
    O = 160
    T = 16
    for d in range(4):
        a(f"v_lshlrev_b32 v{O + 0 + d}, 16, v{Y + 2 * d}")
        a(f"v_and_b32 v{O + 4 + d}, 0xffff0000, v{Y + 2 * d}")
        a(f"v_lshlrev_b32 v{O + 8 + d}, 16, v{Y + 2 * d + 1}")
        a(f"v_and_b32 v{O + 12 + d}, 0xffff0000, v{Y + 2 * d + 1}")
        a(f"v_and_b32 v{T + 4}, 0xffff0000, v{UK + 2 * d + 1}")
        a(f"v_lshlrev_b32 v{T + 5}, 16, v{UK + 2 * d + 1}")
        a(f"v_and_b32 v{T + 6}, 0xffff0000, v{UK + 2 * d}")
        a(f"v_lshlrev_b32 v{T + 7}, 16, v{UK + 2 * d}")
        for r in range(4):
            a(f"v_fmac_f32 v{O + 4 * r + d}, s{88 + d}, v{T + 4 + r}")
    for r in range(4):
        for c in range(2):
            a(f"v_cvt_pk_bf16_f32 v{Y + 2 * r + c}, v{O + 4 * r + 2 * c}, v{O + 4 * r + 2 * c + 1}")
        if r == 2:
            a("v_add_u32 v9, 5120, v9")
        a(f"buffer_store_dwordx2 {vr(Y + 2 * r, 2)}, v9, s[{SRD_O}:{SRD_O + 3}], 0 offen offset:{2560 * (r % 2)}")
    a.label("L_end")
    a("s_endpgm")
    return a


def main():
    a = gen()
    ref = open(f"cdna_kernels/{NAME}.s.ref").read()
    head = ref[:ref.index("; @launch")]
    out = head
    out += f"; @launch grid=(256,1,1) block=(512,1,1) lds={LDS_BYTES}\n"
    out += '.amdgcn_target "amdgcn-amd-amdhsa--gfx950"\n.text\n'
    out += f".globl {NAME}_kernel\n.p2align 8\n.type {NAME}_kernel,@function\n{NAME}_kernel:\n"
    out += "\n".join(a.lines) + "\n"
    out += f""".section .rodata,"a"
.p2align 6
.amdhsa_kernel {NAME}_kernel
  .amdhsa_next_free_vgpr 256
  .amdhsa_next_free_sgpr 102
  .amdhsa_accum_offset 256
  .amdhsa_group_segment_fixed_size 0
  .amdhsa_kernarg_size 144
  .amdhsa_user_sgpr_count 2
  .amdhsa_user_sgpr_kernarg_segment_ptr 1
  .amdhsa_system_sgpr_workgroup_id_x 1
.end_amdhsa_kernel
"""
    path = sys.argv[1] if len(sys.argv) > 1 else f"cdna_kernels/{NAME}.s"
    open(path, "w").write(out)
    print("LDS", LDS_BYTES, "lines", len(a.lines))


if __name__ == "__main__":
    main()
```

```python
import sys, struct

NAME = "concat_heads__ssm_conv_h3__ssm_conv_s4__prompt"
PREFETCH = True
import os
DIAG = bool(os.environ.get("DIAG"))
if os.environ.get("NOPF"): PREFETCH = False


def f32bits(x):
    return struct.unpack("<I", struct.pack("<f", x))[0]


class Asm:
    def __init__(self):
        self.lines = []
        self.lds_q = []
        self.vm_q = []

    def __call__(self, s):
        self.lines.append("    " + s)

    def stamp(self, i):
        if not DIAG:
            return
        self("s_memtime s[98:99]")
        self("s_waitcnt lgkmcnt(0)")
        self(f"v_writelane_b32 v0, s98, {i}")
        self.lds_q = []

    def stamp_out(self):
        if not DIAG:
            return
        self("s_lshl_b32 s98, s2, 3")
        self(f"s_add_u32 s98, s98, s{S_W}")
        self("s_lshl_b32 s98, s98, 8")
        self("v_lshlrev_b32 v1, 2, v1")
        self("v_add_u32 v1, s98, v1")
        self("global_store_dword v1, v0, s[100:101]")

    def label(self, s):
        self.lines.append(s + ":")

    def comment(self, s):
        self.lines.append("    ; " + s)

    def lds(self, s, tag=None):
        self(s)
        self.lds_q.append(tag)

    def lds_need(self, tag):
        idx = None
        for i, t in enumerate(self.lds_q):
            if t == tag:
                idx = i
        if idx is None:
            return
        n = len(self.lds_q) - 1 - idx
        n = min(n, 15)
        self(f"s_waitcnt lgkmcnt({n})")
        self.lds_q = self.lds_q[len(self.lds_q) - n:] if n else []

    def lds_drain(self):
        self("s_waitcnt lgkmcnt(0)")
        self.lds_q = []

    def vm(self, s, tag=None):
        self(s)
        self.vm_q.append(tag)

    def vm_need(self, tag):
        idx = None
        for i, t in enumerate(self.vm_q):
            if t == tag:
                idx = i
        if idx is None:
            return
        n = len(self.vm_q) - 1 - idx
        n = min(n, 63)
        self(f"s_waitcnt vmcnt({n})")
        self.vm_q = self.vm_q[len(self.vm_q) - n:] if n else []

    def vm_drain(self):
        self("s_waitcnt vmcnt(0)")
        self.vm_q = []


def vr(a, n=1):
    return f"v{a}" if n == 1 else f"v[{a}:{a + n - 1}]"


def sr(a, n=1):
    return f"s{a}" if n == 1 else f"s[{a}:{a + n - 1}]"


KSTR = 8320
COFF = 4160
XSTR = 4608
A_KC = 0
A_XR = A_KC + 8 * KSTR
A_S = A_XR + 8 * XSTR
A_END = A_S + 8 * 4096
B_KC = 0
B_XR = B_KC + 4 * KSTR
B_TAB = B_XR + 4 * XSTR
B_ST = B_TAB + 4 * 6144
B_S = B_ST + 32768
B_END = B_ST + 8 * 9216
LDS_BYTES = max(A_END, B_END)

S_CH0 = 3
S_W = 4
SRD_K = 8
SRD_V = 12
SRD_Q = 16
SRD_SK = 20
SRD_O = 24
SRD_PF = 28
P = dict(q=32, k=34, v=36, shift_k=38, ssm_k=40, ssm_D=42, u=44, A_re=46, A_im=48,
         B_re=50, B_im=52, C_re=54, C_im=56, log_dt=58, Dskip=60, out=62)


def mk_srd(a, d, p, nbytes):
    a(f"s_mov_b32 s{d}, s{p}")
    a(f"s_mov_b32 s{d + 1}, s{p + 1}")
    a(f"s_mov_b32 s{d + 2}, {nbytes}")
    a(f"s_mov_b32 s{d + 3}, 0x00020000")


def conv_pass(a, Es, Fbase, acc, Gbuf, nG, vFaddr, vGaddr, first_touch):
    maxD = 7 - min(Es)
    steps = []
    for D in range(maxD + 1):
        for eps in range(8):
            f = 8 * D - eps
            mm = [(idx, E) for idx, E in enumerate(Es) if E + D <= 7]
            steps.append((D, eps, f, mm))

    def issue_G(si):
        D, eps, f, mm = steps[si]
        g = Gbuf + 4 * (si % nG)
        a.lds(f"ds_read_b128 {vr(g, 4)}, v{vGaddr} offset:{64 * (56 - f)}", ("G", si))

    def issue_F(idx, E, eps):
        e = 8 * E + eps
        r = Fbase + 32 * idx + 4 * eps
        b, eo = e // 16, e % 16
        a.lds(f"ds_read2_b32 {vr(r, 2)}, v{vFaddr + b} offset0:{16 * eo} offset1:{16 * eo + 1}", None)
        a.lds(f"ds_read2_b32 {vr(r + 2, 2)}, v{vFaddr + b} offset0:{16 * eo + 2} offset1:{16 * eo + 3}", ("F", idx, eps))

    LA = nG - 1
    issued_G = 0
    issue_G(0); issued_G = 1
    for idx, E in enumerate(Es):
        issue_F(idx, E, 0)
    for si, (D, eps, f, mm) in enumerate(steps):
        if D == 0 and eps + 1 < 8:
            if issued_G <= si + 1:
                issue_G(issued_G); issued_G += 1
            for idx, E in enumerate(Es):
                issue_F(idx, E, eps + 1)
        else:
            while issued_G < len(steps) and issued_G <= si + LA:
                issue_G(issued_G); issued_G += 1
        g = Gbuf + 4 * (si % nG)
        a.lds_need(("G", si))
        for idx, E in mm:
            if D == 0:
                a.lds_need(("F", idx, eps))
            p = E + D
            r = Fbase + 32 * idx + 4 * eps
            c = vr(acc + 4 * p, 4)
            if p in first_touch:
                first_touch.discard(p)
                a(f"v_mfma_f32_16x16x32_bf16 {c}, {vr(r, 4)}, {vr(g, 4)}, 0")
            else:
                a(f"v_mfma_f32_16x16x32_bf16 {c}, {vr(r, 4)}, {vr(g, 4)}, {c}")


def conv_addrs(a, vlane, vFaddr, vGaddr, vt, sKC, sXR):
    a(f"v_and_b32 v{vt}, 15, v{vlane}")
    a(f"v_lshrrev_b32 v{vt + 1}, 4, v{vlane}")
    a(f"v_add_u32 v{vt + 2}, 1, v{vt}")
    a(f"v_lshrrev_b32 v{vt + 2}, 1, v{vt + 2}")
    a(f"v_lshl_add_u32 v{vt + 2}, v{vt + 1}, 2, v{vt + 2}")
    a(f"v_lshlrev_b32 v{vt + 2}, 2, v{vt + 2}")
    a(f"v_and_b32 v{vt + 3}, 1, v{vt}")
    a(f"v_xor_b32 v{vt + 3}, 1, v{vt + 3}")
    a(f"v_mul_u32_u24 v{vt + 3}, {COFF}, v{vt + 3}")
    a(f"v_add3_u32 v{vFaddr}, v{vt + 2}, v{vt + 3}, s{sKC}")
    for b in range(1, 4):
        a(f"v_add_u32 v{vFaddr + b}, {1024 * b}, v{vFaddr}")
    a(f"v_lshlrev_b32 v{vt + 2}, 5, v{vt}")
    a(f"v_lshlrev_b32 v{vt + 3}, 4, v{vt + 1}")
    a(f"v_sub_u32 v{vt + 3}, v{vt + 3}, v{vt + 2}")
    a(f"v_add_u32 v{vt + 3}, 480, v{vt + 3}")
    a(f"v_add_u32 v{vGaddr}, s{sXR}, v{vt + 3}")


def gen():
    a = Asm()
    a(f"s_load_dwordx16 s[32:47], s[0:1], 0")
    a(f"s_load_dwordx16 s[48:63], s[0:1], 64")
    if DIAG:
        a("s_load_dwordx2 s[100:101], s[0:1], 136")
    a("s_and_b32 s5, s2, 7")
    a("s_lshr_b32 s6, s2, 3")
    a("v_lshrrev_b32 v2, 6, v0")
    a("v_and_b32 v1, 63, v0")
    a("s_cmp_lt_u32 s5, 4")
    a("s_cselect_b32 s7, 3, 2")
    a(f"v_readfirstlane_b32 s{S_W}, v2")
    a("s_mul_i32 s64, s5, 3")
    a("s_lshl_b32 s65, s5, 1")
    a("s_add_u32 s66, s65, 4")
    a("s_cmp_lt_u32 s5, 4")
    a("s_cselect_b32 s66, s64, s66")
    a("s_sub_u32 s67, s64, 4")
    a("s_cmp_lt_u32 s5, 4")
    a("s_cselect_b32 s67, s65, s67")
    a("s_lshl_b32 s68, s7, 2")
    a("s_sub_u32 s69, 5, s7")
    a("s_lshl_b32 s70, s69, 3")
    a("s_add_u32 s70, s70, s68")
    a("s_cmp_ge_u32 s6, s70")
    a("s_cbranch_scc1 L_end")
    a("s_waitcnt lgkmcnt(0)")
    a.stamp(0)
    if PREFETCH:
        a("s_mul_i32 s71, s7, 3")
        a("s_add_u32 s72, s71, s69")
        a("s_cmp_eq_u32 s72, 11")
        a("s_movk_i32 s73, 7282")
        a("s_cselect_b32 s73, 5958, s73")
        a("s_lshl_b32 s74, s6, 3")
        a(f"s_add_u32 s74, s74, s{S_W}")
        a("s_lshl_b32 s75, s70, 3")
        a("s_lshl_b32 s76, s72, 5")
        a("v_mul_u32_u24 v3, 1280, v1")
        a(f"s_mov_b32 s{SRD_PF + 2}, 2621440")
        a(f"s_mov_b32 s{SRD_PF + 3}, 0x00020000")
        for it in range(2):
            if it == 1:
                a("s_add_u32 s74, s74, s75")
                a("s_cmp_ge_u32 s74, s76")
                a("s_cbranch_scc1 L_pf_done")
            a("s_mul_i32 s77, s74, s73")
            a("s_lshr_b32 s77, s77, 16")
            a("s_mul_i32 s78, s77, s72")
            a("s_sub_u32 s78, s74, s78")
            a("s_mul_i32 s79, s78, 43")
            a("s_lshr_b32 s79, s79, 7")
            a("s_mul_i32 s80, s79, 3")
            a("s_sub_u32 s80, s78, s80")
            a("s_add_u32 s79, s79, s66")
            a("s_cmp_eq_u32 s80, 0")
            a(f"s_cselect_b32 s{SRD_PF}, s{P['k']}, s{P['v']}")
            a(f"s_cselect_b32 s{SRD_PF + 1}, s{P['k'] + 1}, s{P['v'] + 1}")
            a("s_cmp_eq_u32 s80, 2")
            a(f"s_cselect_b32 s{SRD_PF}, s{P['q']}, s{SRD_PF}")
            a(f"s_cselect_b32 s{SRD_PF + 1}, s{P['q'] + 1}, s{SRD_PF + 1}")
            a("s_sub_u32 s81, s78, s71")
            a("s_add_u32 s81, s81, s67")
            a("s_cmp_ge_u32 s78, s71")
            a(f"s_cselect_b32 s{SRD_PF}, s{P['u']}, s{SRD_PF}")
            a(f"s_cselect_b32 s{SRD_PF + 1}, s{P['u'] + 1}, s{SRD_PF + 1}")
            a("s_cselect_b32 s79, s81, s79")
            a("s_lshl_b32 s79, s79, 6")
            a("s_mul_i32 s77, s77, 81920")
            a("s_add_u32 s77, s77, s79")
            a(f"buffer_load_dword v{4 + it}, v3, s[{SRD_PF}:{SRD_PF + 3}], s77 offen")
        a.label("L_pf_done")
    a("s_cmp_ge_u32 s6, s68")
    a("s_cbranch_scc1 L_B")

    a.vm_q = []
    a("s_lshr_b32 s71, s6, 2")
    a("s_add_u32 s71, s71, s66")
    a("s_and_b32 s72, s6, 3")
    a("s_lshl_b32 s71, s71, 5")
    a("s_lshl_b32 s72, s72, 3")
    a(f"s_add_u32 s{S_CH0}, s71, s72")
    mk_srd(a, SRD_K, P['k'], 2621440)
    mk_srd(a, SRD_V, P['v'], 2621440)
    mk_srd(a, SRD_Q, P['q'], 2621440)
    mk_srd(a, SRD_SK, P['ssm_k'], 2621440)
    mk_srd(a, SRD_O, P['out'], 5242880)
    a(f"s_lshl_b32 s5, s{S_CH0}, 3")
    a(f"s_lshl_b32 s6, s{S_CH0}, 1")
    a(f"s_load_dwordx16 s[64:79], s[{P['shift_k']}:{P['shift_k'] + 1}], s5")
    a(f"s_load_dwordx4 s[80:83], s[{P['ssm_D']}:{P['ssm_D'] + 1}], s6")
    a(f"s_add_u32 s7, s{S_CH0}, s{S_W}")
    a("s_lshl_b32 s7, s7, 12")
    a("v_lshlrev_b32 v2, 4, v1")
    for j in range(4):
        a.vm(f"buffer_load_dwordx4 {vr(128 + 4 * j, 4)}, v2, s[{SRD_SK}:{SRD_SK + 3}], s7 offen offset:{1024 * j}", "K")
    for j in range(4):
        a.vm(f"buffer_load_dwordx4 {vr(144 + 4 * j, 4)}, v2, s[{SRD_SK}:{SRD_SK + 3}], s7 offen offset:{1024 * j + 4}", "K")
    a(f"s_mul_i32 s7, s{S_W}, {256 * 1280}")
    a("s_add_u32 s7, s7, s6")
    a("v_mul_u32_u24 v3, 5120, v1")
    a("v_add_u32 v3, s7, v3")
    a("s_sub_u32 s5, s7, 3840")
    a("v_mov_b32 v6, s5")
    KR = 160
    VR = 188
    for j in range(3):
        a.vm(f"buffer_load_dwordx4 {vr(KR + 4 * j, 4)}, v6, s[{SRD_K}:{SRD_K + 3}], 0 offen offset:{1280 * j}", "x")
    for j in range(4):
        a.vm(f"buffer_load_dwordx4 {vr(KR + 12 + 4 * j, 4)}, v3, s[{SRD_K}:{SRD_K + 3}], 0 offen offset:{1280 * j}", "x")
    for j in range(4):
        a.vm(f"buffer_load_dwordx4 {vr(VR + 4 * j, 4)}, v3, s[{SRD_V}:{SRD_V + 3}], 0 offen offset:{1280 * j}", "x")
    a(f"s_mul_i32 s84, s{S_W}, {KSTR}")
    a(f"s_mul_i32 s85, s{S_W}, {XSTR}")
    a(f"s_add_u32 s85, s85, {A_XR}")
    a("v_mov_b32 v8, 0")
    a("v_mov_b32 v9, 0")
    a("v_lshlrev_b32 v7, 3, v1")
    a("v_add_u32 v7, s85, v7")
    a("ds_write_b64 v7, v[8:9] offset:4096")
    a("s_waitcnt lgkmcnt(0)")
    for d in range(8):
        for h in range(2):
            src = 64 + 2 * d + h
            a(f"s_lshl_b32 s{32 + 4 * d + 2 * h}, s{src}, 16")
            a(f"s_and_b32 s{32 + 4 * d + 2 * h + 1}, s{src}, 0xffff0000")
    for h in range(4):
        a(f"s_lshl_b32 s{88 + 2 * h}, s{80 + h}, 16")
        a(f"s_and_b32 s{88 + 2 * h + 1}, s{80 + h}, 0xffff0000")
    a.stamp(1)
    a.vm_need("K")
    a.stamp(2)
    a("v_add_u32 v7, s84, v2")
    for j in range(4):
        a(f"ds_write_b128 v7, {vr(128 + 4 * j, 4)} offset:{32 + 1024 * j}")
    a("v_readlane_b32 s5, v128, 0")
    for j in range(4):
        for x in range(4):
            a(f"v_alignbit_b32 v{144 + 4 * j + x}, v{144 + 4 * j + x}, v{128 + 4 * j + x}, 16")
    a("s_lshl_b32 s5, s5, 16")
    for j in range(4):
        a(f"ds_write_b128 v7, {vr(144 + 4 * j, 4)} offset:{COFF + 32 + 1024 * j}")
    a("v_writelane_b32 v9, s5, 7")
    a("v_lshlrev_b32 v7, 2, v1")
    a("v_add_u32 v7, s84, v7")
    a("v_cmp_gt_u32 vcc, 8, v1")
    a("s_and_saveexec_b64 s[86:87], vcc")
    a("ds_write_b32 v7, v8")
    a(f"ds_write_b32 v7, v9 offset:{COFF}")
    a("s_mov_b64 exec, s[86:87]")
    a.stamp(3)
    a.vm_need("x")
    a.stamp(4)
    for j in range(3):
        for c in range(4):
            a(f"v_mov_b32_dpp v{KR + 4 * j + c}, v{KR + 12 + 4 * (j + 1) + c} wave_shr:1 row_mask:0xf bank_mask:0xf")
    a(f"s_lshl_b32 s5, s{S_W}, 9")
    a(f"s_sub_u32 s5, {A_XR + 4088}, s5")
    a("v_lshlrev_b32 v7, 3, v1")
    a("v_sub_u32 v7, s5, v7")
    KV = 64
    T = 16
    for c in range(4):
        for hh in range(2):
            d = 2 * c + hh
            for r in range(7):
                if hh == 0:
                    a(f"v_lshlrev_b32 v{T + r}, 16, v{KR + 4 * r + c}")
                else:
                    a(f"v_and_b32 v{T + r}, 0xffff0000, v{KR + 4 * r + c}")
            for r in range(4):
                if hh == 0:
                    a(f"v_lshlrev_b32 v{T + 8 + r}, 16, v{VR + 4 * r + c}")
                else:
                    a(f"v_and_b32 v{T + 8 + r}, 0xffff0000, v{VR + 4 * r + c}")
            for r in range(4):
                a(f"v_mul_f32 v{T + 12 + r}, s{32 + 4 * d + 3}, v{T + r}")
            for jj in (2, 1, 0):
                for r in range(4):
                    a(f"v_fmac_f32 v{T + 12 + r}, s{32 + 4 * d + jj}, v{T + 3 + r - jj}")
            for r in range(4):
                a(f"v_mul_f32 v{T + 12 + r}, v{T + 12 + r}, v{T + 8 + r}")
            a(f"v_cvt_pk_bf16_f32 v{KV + 2 * d}, v{T + 15}, v{T + 14}")
            a(f"v_cvt_pk_bf16_f32 v{KV + 2 * d + 1}, v{T + 13}, v{T + 12}")
            a(f"ds_write_b64 v7, {vr(KV + 2 * d, 2)} offset:{XSTR * d}")
    QR = 48
    for j in range(4):
        a.vm(f"buffer_load_dwordx4 {vr(QR + 4 * j, 4)}, v3, s[{SRD_Q}:{SRD_Q + 3}], 0 offen offset:{1280 * j}", "q")
    conv_addrs(a, 1, 8, 12, T, 84, 85)
    a("s_waitcnt lgkmcnt(0)")
    a.stamp(5)
    a("s_barrier")
    a.stamp(6)
    a.lds_q = []
    ACC = 96
    ft = set(range(8))
    conv_pass(a, [4, 5, 6, 7], 128, ACC, 80, 4, 8, 12, ft)
    a.stamp(7)
    conv_pass(a, [0, 1, 2, 3], 128, ACC, 80, 4, 8, 12, ft)
    a.stamp(8)
    a(f"s_lshl_b32 s5, s{S_W}, 12")
    a(f"s_add_u32 s5, s5, {A_S}")
    a("v_lshlrev_b32 v7, 3, v1")
    a("v_add_u32 v7, s5, v7")
    a("s_nop 7")
    for p in range(8):
        a(f"v_cvt_pk_bf16_f32 v{T + 2 * p}, v{ACC + 4 * p}, v{ACC + 4 * p + 1}")
        a(f"v_cvt_pk_bf16_f32 v{T + 2 * p + 1}, v{ACC + 4 * p + 2}, v{ACC + 4 * p + 3}")
        a(f"ds_write_b64 v7, {vr(T + 2 * p, 2)} offset:{512 * p}")
    a("v_and_b32 v8, 3, v1")
    a("v_lshrrev_b32 v9, 2, v1")
    a("v_lshl_add_u32 v8, v8, 4, v9")
    a("v_lshlrev_b32 v8, 3, v8")
    a(f"s_lshl_b32 s5, s{S_W}, 9")
    a(f"s_add_u32 s5, s5, {A_S}")
    a("v_add_u32 v8, s5, v8")
    a("s_waitcnt lgkmcnt(0)")
    a("s_barrier")
    a.stamp(9)
    Y = 128
    for d in range(8):
        a(f"ds_read_b64 {vr(Y + 2 * d, 2)}, v8 offset:{4096 * d}")
    a("v_lshlrev_b32 v9, 1, v3")
    a("v_subrev_u32 v9, s6, v9")
    a.vm_need("q")
    a("s_waitcnt lgkmcnt(0)")
    a.stamp(10)
    O = 160
    for d in range(8):
        c, hh = d // 2, d % 2
        a(f"v_lshlrev_b32 v{T}, 16, v{Y + 2 * d}")
        a(f"v_and_b32 v{T + 1}, 0xffff0000, v{Y + 2 * d}")
        a(f"v_lshlrev_b32 v{T + 2}, 16, v{Y + 2 * d + 1}")
        a(f"v_and_b32 v{T + 3}, 0xffff0000, v{Y + 2 * d + 1}")
        a(f"v_and_b32 v{T + 4}, 0xffff0000, v{KV + 2 * d + 1}")
        a(f"v_lshlrev_b32 v{T + 5}, 16, v{KV + 2 * d + 1}")
        a(f"v_and_b32 v{T + 6}, 0xffff0000, v{KV + 2 * d}")
        a(f"v_lshlrev_b32 v{T + 7}, 16, v{KV + 2 * d}")
        for r in range(4):
            a(f"v_fmac_f32 v{T + r}, s{88 + d}, v{T + 4 + r}")
        for r in range(4):
            if hh == 0:
                a(f"v_lshlrev_b32 v{T + 4 + r}, 16, v{QR + 4 * r + c}")
            else:
                a(f"v_and_b32 v{T + 4 + r}, 0xffff0000, v{QR + 4 * r + c}")
        for r in range(4):
            a(f"v_mul_f32 v{O + 8 * r + d}, v{T + r}, v{T + 4 + r}")
    for r in range(4):
        for c in range(4):
            a(f"v_cvt_pk_bf16_f32 v{Y + 4 * r + c}, v{O + 8 * r + 2 * c}, v{O + 8 * r + 2 * c + 1}")
        if r == 0:
            a(f"buffer_store_dwordx4 {vr(Y, 4)}, v9, s[{SRD_O}:{SRD_O + 3}], 0 offen")
        elif r == 1:
            a(f"buffer_store_dwordx4 {vr(Y + 4, 4)}, v9, s[{SRD_O}:{SRD_O + 3}], 0 offen offset:2560")
        else:
            if r == 2:
                a("v_add_u32 v9, 5120, v9")
            a(f"buffer_store_dwordx4 {vr(Y + 4 * r, 4)}, v9, s[{SRD_O}:{SRD_O + 3}], 0 offen offset:{2560 * (r - 2)}")
    a.stamp(11)
    if DIAG:
        a("s_waitcnt vmcnt(0)")
    a.stamp(12)
    a.stamp_out()
    a("s_endpgm")

    a.label("L_B")
    a.vm_q = []
    a.lds_q = []
    a("s_sub_u32 s6, s6, s68")
    a("s_lshr_b32 s71, s6, 3")
    a("s_add_u32 s71, s71, s67")
    a("s_and_b32 s72, s6, 7")
    a("s_lshl_b32 s71, s71, 5")
    a("s_lshl_b32 s72, s72, 2")
    a(f"s_add_u32 s{S_CH0}, s71, s72")
    mk_srd(a, SRD_K, P['u'], 2621440)
    mk_srd(a, SRD_O, P['out'], 5242880)
    a(f"s_lshl_b32 s6, s{S_CH0}, 1")
    a(f"s_load_dwordx2 s[80:81], s[{P['log_dt']}:{P['log_dt'] + 1}], s6")
    a(f"s_load_dwordx2 s[82:83], s[{P['Dskip']}:{P['Dskip'] + 1}], s6")
    a(f"s_lshr_b32 s64, s{S_W}, 1")
    a(f"s_and_b32 s65, s{S_W}, 1")
    a(f"s_add_u32 s5, s{S_CH0}, s64")
    a("s_lshl_b32 s5, s5, 8")
    a("s_lshl_b32 s7, s65, 7")
    a("s_add_u32 s5, s5, s7")
    a("v_lshlrev_b32 v2, 1, v1")
    a("v_add_u32 v2, s5, v2")
    PR = 16
    names = ["A_re", "A_im", "B_re", "B_im", "C_re", "C_im"]
    for i, nm in enumerate(names):
        a.vm(f"global_load_ushort v{PR + i}, v2, s[{P[nm]}:{P[nm] + 1}]", "par")
    a(f"s_mul_i32 s7, s{S_W}, {256 * 1280}")
    a("s_add_u32 s7, s7, s6")
    a("v_mul_u32_u24 v3, 5120, v1")
    a("v_add_u32 v3, s7, v3")
    UR = 40
    for j in range(4):
        a.vm(f"buffer_load_dwordx2 {vr(UR + 2 * j, 2)}, v3, s[{SRD_K}:{SRD_K + 3}], 0 offen offset:{1280 * j}", "u")
    a(f"s_mul_i32 s84, s64, {KSTR}")
    a(f"s_mul_i32 s85, s64, {XSTR}")
    a(f"s_add_u32 s85, s85, {B_XR}")
    a(f"s_mul_i32 s86, s{S_W}, 9216")
    a(f"s_add_u32 s86, s86, {B_ST}")
    a(f"s_mul_i32 s87, s64, 6144")
    a(f"s_add_u32 s87, s87, {B_TAB}")
    a("v_mov_b32 v8, 0")
    a("v_mov_b32 v9, 0")
    a("v_lshlrev_b32 v7, 3, v1")
    a("v_add_u32 v7, s85, v7")
    a("ds_write_b64 v7, v[8:9] offset:4096")
    a("s_waitcnt lgkmcnt(0)")
    a("s_lshr_b32 s5, s64, 1")
    a("s_cmp_eq_u32 s5, 0")
    a("s_cselect_b32 s66, s80, s81")
    a("s_and_b32 s5, s64, 1")
    a("s_lshl_b32 s67, s66, 16")
    a("s_and_b32 s66, s66, 0xffff0000")
    a("s_cmp_eq_u32 s5, 0")
    a("s_cselect_b32 s66, s67, s66")
    for h in range(2):
        a(f"s_lshl_b32 s{88 + 2 * h}, s{82 + h}, 16")
        a(f"s_and_b32 s{88 + 2 * h + 1}, s{82 + h}, 0xffff0000")
    L2E = 1.4426950408889634
    L2E_hi = struct.unpack("<f", struct.pack("<f", L2E))[0]
    L2E_lo = L2E - L2E_hi
    a(f"s_mov_b32 s68, {f32bits(L2E_hi):#x}")
    a(f"s_mov_b32 s69, {f32bits(L2E_lo):#x}")
    a(f"s_mov_b32 s70, {f32bits(0.6931471805599453):#x}")
    a("v_mov_b32 v10, s66")
    a("v_mul_f32 v11, s68, v10")
    a("v_fma_f32 v12, v10, s68, -v11")
    a("v_fmac_f32 v12, s69, v10")
    a("v_exp_f32 v13, v11")
    a("v_mul_f32 v12, s70, v12")
    a("s_nop 0")
    a("v_fma_f32 v13, v13, v12, v13")
    a("v_cvt_pk_bf16_f32 v13, v13, v13")
    a("v_lshlrev_b32 v13, 16, v13")
    a.stamp(1)
    a.vm_need("par")
    a.stamp(2)
    for i in range(6):
        a(f"v_lshlrev_b32 v{PR + i}, 16, v{PR + i}")
    for i in range(4):
        a(f"v_mul_f32 v{PR + i}, v13, v{PR + i}")

    def cmul(d, x, y):
        a(f"v_pk_mul_f32 {vr(14, 2)}, {vr(x, 2)}, {vr(y, 2)} op_sel:[0,0] op_sel_hi:[1,0]")
        a(f"v_pk_fma_f32 {vr(d, 2)}, {vr(x, 2)}, {vr(y, 2)}, {vr(14, 2)} op_sel:[1,1,0] op_sel_hi:[0,1,1] neg_lo:[1,0,0]")

    I2P = 0.15915494309189535
    I2P_hi = struct.unpack("<f", struct.pack("<f", I2P))[0]
    I2P_lo = I2P - I2P_hi
    a(f"s_mov_b32 s71, {f32bits(I2P_hi):#x}")
    a(f"s_mov_b32 s72, {f32bits(I2P_lo):#x}")

    def anchor(d, lam, conj=False):
        t = 10
        a(f"s_mov_b32 s73, {f32bits(float(lam)):#x}")
        a(f"v_mul_f32 v{t}, s73, v{PR}")
        a(f"v_mul_f32 v{t + 1}, s73, v{PR + 1}")
        a(f"v_mul_f32 v{t}, s68, v{t}")
        a(f"v_mul_f32 v{t + 2}, s71, v{t + 1}")
        a(f"v_exp_f32 v{t}, v{t}")
        a(f"v_fma_f32 v{t + 3}, v{t + 1}, s71, -v{t + 2}")
        a(f"v_fmac_f32 v{t + 3}, s72, v{t + 1}")
        a(f"v_fract_f32 v{t + 2}, v{t + 2}")
        a(f"v_add_f32 v{t + 2}, v{t + 2}, v{t + 3}")
        a(f"v_cos_f32 v{t + 1}, v{t + 2}")
        a(f"v_sin_f32 v{t + 3}, v{t + 2}")
        a("s_nop 0")
        a(f"v_mul_f32 v{d}, v{t}, v{t + 1}")
        if conj:
            a(f"v_mul_f32 v{d + 1}, -v{t}, v{t + 3}" if False else f"v_mul_f32_e64 v{d + 1}, -v{t}, v{t + 3}")
        else:
            a(f"v_mul_f32 v{d + 1}, v{t}, v{t + 3}")

    a("v_lshlrev_b32 v4, 2, v1")
    a("v_add_u32 v4, s86, v4")
    a("v_and_b32 v5, 15, v1")
    a("v_mul_u32_u24 v5, 288, v5")
    a("v_lshrrev_b32 v6, 4, v1")
    a("v_lshl_add_u32 v5, v6, 4, v5")
    a("v_add_u32 v5, s86, v5")

    def put(x, row):
        a(f"v_cvt_pk_bf16_f32 v10, v{x}, v{x + 1}")
        a("v_lshlrev_b32 v12, 16, v10")
        a("v_and_b32 v13, 0xffff0000, v10")
        a(f"ds_write_b32 v4, v10 offset:{288 * row}")
        a(f"v_pk_add_f32 v[12:13], {vr(x, 2)}, v[12:13] neg_lo:[0,1] neg_hi:[0,1]")
        a("v_cvt_pk_bf16_f32 v11, v12, v13")
        a(f"ds_write_b32 v4, v11 offset:{4608 + 288 * row}")

    Z8, Z64, ZC = 22, 24, 26
    ZE = 48
    CT = 28
    Z128, Z1024 = 30, 32
    HH = 34
    TMP = 36
    E2F = 64
    E1F = 96
    KD = 128
    anchor(Z8, 8, conj=True)
    anchor(Z64, 64, conj=True)
    a(f"v_mov_b32 v{ZC}, 1.0")
    a(f"v_mov_b32 v{ZC + 1}, 0")
    put(ZC, 0)
    put(Z8, 1)
    cur = Z8
    for r in range(2, 16):
        if r == 8:
            put(Z64, 8)
            cur = Z64
            continue
        dst = ZC if cur != ZC else TMP
        cmul(dst, cur, Z8)
        put(dst, r)
        cur = dst
    a("s_waitcnt lgkmcnt(0)")
    for ks in range(4):
        a(f"ds_read_b128 {vr(E2F + 4 * ks, 4)}, v5 offset:{64 * ks}")
        a(f"ds_read_b128 {vr(E2F + 16 + 4 * ks, 4)}, v5 offset:{4608 + 64 * ks}")
    anchor(ZE + 2, 1)
    cmul(ZE + 4, ZE + 2, ZE + 2)
    cmul(ZE + 6, ZE + 4, ZE + 2)
    cmul(ZE + 8, ZE + 4, ZE + 4)
    cmul(ZE + 10, ZE + 8, ZE + 2)
    cmul(ZE + 12, ZE + 8, ZE + 4)
    cmul(ZE + 14, ZE + 8, ZE + 6)
    cmul(CT, PR + 4, PR + 2)
    anchor(Z128, 128)
    anchor(Z1024, 1024)
    a("s_waitcnt lgkmcnt(0)")

    def mfma_tile(m):
        a("s_waitcnt lgkmcnt(0)")
        for ks in range(4):
            a(f"ds_read_b128 {vr(E1F + 4 * ks, 4)}, v5 offset:{64 * ks}")
            a(f"ds_read_b128 {vr(E1F + 16 + 4 * ks, 4)}, v5 offset:{4608 + 64 * ks}")
        a("s_waitcnt lgkmcnt(0)")
        c = vr(KD + 4 * m, 4)
        first = True
        for ks in range(4):
            for (x, y) in ((16, 0), (0, 16), (0, 0)):
                src = "0" if first else c
                first = False
                a(f"v_mfma_f32_16x16x32_bf16 {c}, {vr(E1F + x + 4 * ks, 4)}, {vr(E2F + y + 4 * ks, 4)}, {src}")

    HA, HB = HH, 38
    state = {"cur": CT, "h": 0}

    def next_H():
        h = state["h"] + 1
        dst = HA if state["cur"] != HA else HB
        if h == 8:
            cmul(dst, CT, Z1024)
        else:
            cmul(dst, state["cur"], Z128)
        state["cur"] = dst
        state["h"] = h
        return dst

    for h in range(2):
        H = state["cur"] if h == 0 else next_H()
        put(H, 8 * h)
        for eps in range(1, 8):
            cmul(TMP, H, ZE + 2 * eps)
            put(TMP, 8 * h + eps)
    mfma_tile(0)
    for hp in range(2):
        H = next_H()
        put(H, 4 * hp)
        for ep in range(1, 4):
            cmul(TMP, H, ZE + 4 * ep)
            put(TMP, 4 * hp + ep)
    for hp in range(4):
        H = next_H()
        put(H, 8 + 2 * hp)
        cmul(TMP, H, ZE + 8)
        put(TMP, 8 + 2 * hp + 1)
    mfma_tile(1)
    for hp in range(9):
        H = next_H()
        put(H, hp)
    mfma_tile(2)
    a.stamp(3)
    a("v_and_b32 v10, 15, v1")
    a("v_lshrrev_b32 v11, 4, v1")
    a("s_lshl_b32 s5, s65, 2")
    a("s_add_u32 s5, s5, s87")
    a("v_lshrrev_b32 v12, 1, v11")
    a("v_lshlrev_b32 v12, 7, v12")
    a("v_and_b32 v13, 1, v11")
    a("v_lshl_add_u32 v12, v13, 2, v12")
    a("v_lshl_add_u32 v12, v10, 3, v12")
    a("v_lshl_add_u32 v12, v12, 3, s5")
    a("v_lshlrev_b32 v13, 6, v11")
    a("v_add_u32 v13, 256, v13")
    a("v_cmp_gt_u32 vcc, 2, v11")
    a("v_lshlrev_b32 v14, 2, v10")
    a("v_lshlrev_b32 v15, 1, v10")
    a("v_cndmask_b32 v14, v15, v14, vcc")
    a("v_add_u32 v13, v13, v14")
    a("v_lshl_add_u32 v13, v13, 3, s5")
    a("v_mov_b32 v14, 256")
    a("v_cndmask_b32 v14, v14, 16, vcc" if False else "v_cndmask_b32_e64 v14, v14, 16, vcc")
    a("v_add_u32 v14, v13, v14")
    a("v_lshl_add_u32 v15, v11, 6, v10")
    a("v_add_u32 v15, 512, v15")
    a("v_lshl_add_u32 v15, v15, 3, s5")
    a("s_nop 7")
    for j in range(4):
        a(f"ds_write_b32 v12, v{KD + j} offset:{8 * j}")
    a(f"ds_write_b32 v13, v{KD + 4}")
    a(f"ds_write_b32 v13, v{KD + 5} offset:8")
    a(f"ds_write_b32 v14, v{KD + 6}")
    a(f"ds_write_b32 v14, v{KD + 7} offset:8")
    for j in range(4):
        a(f"ds_write_b32 v15, v{KD + 8 + j} offset:{128 * j}")
    a.stamp(4)
    a.vm_need("u")
    a.stamp(5)
    UK = 32
    a("s_mov_b32 s71, 0x05040100")
    a("s_mov_b32 s72, 0x07060302")
    a(f"s_lshl_b32 s5, s{S_W}, 9")
    a(f"s_sub_u32 s5, {B_XR + 4088}, s5")
    a("v_lshlrev_b32 v7, 3, v1")
    a("v_sub_u32 v7, s5, v7")
    for d in range(4):
        c, hh = d // 2, d % 2
        sel = "s71" if hh == 0 else "s72"
        a(f"v_perm_b32 v{UK + 2 * d}, v{UR + 2 * 2 + c}, v{UR + 2 * 3 + c}, {sel}")
        a(f"v_perm_b32 v{UK + 2 * d + 1}, v{UR + 2 * 0 + c}, v{UR + 2 * 1 + c}, {sel}")
        a(f"ds_write_b64 v7, {vr(UK + 2 * d, 2)} offset:{XSTR * d}")
    a("s_waitcnt lgkmcnt(0)")
    a("s_barrier")
    a.stamp(6)
    GV = 48
    for rd in range(2):
        a("s_lshl_b32 s5, s65, 10")
        a(f"s_add_u32 s5, s5, {512 * rd}")
        a("v_lshlrev_b32 v10, 3, v1")
        a("v_add_u32 v10, s5, v10")
        for x in range(9):
            a(f"v_add_u32 v11, {x}, v10")
            a("v_cvt_f32_u32 v12, v11")
            a("v_cvt_pk_bf16_f32 v12, v12, v12")
            a("v_and_b32 v12, 0xffff, v12")
            a("v_subrev_u32 v12, 17024, v12")
            a("v_cmp_gt_u32 vcc, 128, v11")
            a("s_nop 1")
            a("v_cndmask_b32 v12, v12, v11, vcc")
            a("v_lshl_add_u32 v12, v12, 3, s87")
            a(f"ds_read_b64 {vr(GV + 2 * x, 2)}, v12")
        a("s_waitcnt lgkmcnt(0)")
        for x in range(9):
            a(f"v_add_f32 v{GV + 2 * x}, v{GV + 2 * x}, v{GV + 2 * x + 1}")
        for x in range(4):
            a(f"v_cvt_pk_bf16_f32 v{16 + x}, v{GV + 4 * x}, v{GV + 4 * x + 2}")
            a(f"v_cvt_pk_bf16_f32 v{20 + x}, v{GV + 4 * x + 2}, v{GV + 4 * x + 4}")
        a("v_lshlrev_b32 v11, 1, v10")
        a("v_add_u32 v11, s84, v11")
        a("ds_write_b128 v11, v[16:19] offset:32")
        a(f"ds_write_b128 v11, v[20:23] offset:{COFF + 32}")
        if rd == 0:
            a("s_cmp_lg_u32 s65, 0")
            a("s_cbranch_scc1 L_B_nopad")
            a("v_readlane_b32 s5, v16, 0")
            a("s_lshl_b32 s5, s5, 16")
            a("v_mov_b32 v8, 0")
            a("v_mov_b32 v9, 0")
            a("v_writelane_b32 v9, s5, 7")
            a("v_lshlrev_b32 v7, 2, v1")
            a("v_add_u32 v7, s84, v7")
            a("v_cmp_gt_u32 vcc, 8, v1")
            a("s_and_saveexec_b64 s[74:75], vcc")
            a("ds_write_b32 v7, v8")
            a(f"ds_write_b32 v7, v9 offset:{COFF}")
            a("s_mov_b64 exec, s[74:75]")
            a.label("L_B_nopad")
    conv_addrs(a, 1, 8, 12, 16, 84, 85)
    a("s_waitcnt lgkmcnt(0)")
    a.stamp(7)
    a("s_barrier")
    a.stamp(8)
    ACCB = 64
    a("s_lshl_b32 s5, s64, 13")
    a(f"s_add_u32 s5, s5, {B_ST}")
    a("v_lshlrev_b32 v13, 4, v1")
    a("v_add_u32 v13, s5, v13")
    a("s_cmp_lg_u32 s65, 0")
    a("s_cbranch_scc1 L_B_h1")
    a.lds_q = []
    ft = set(range(8))
    conv_pass(a, [0, 1, 5], 96, ACCB, 48, 4, 8, 12, ft)
    a.stamp(9)
    a("s_barrier")
    for p in range(2, 8):
        a(f"ds_read_b128 {vr(96 + 4 * p, 4)}, v13 offset:{1024 * p}")
    a("s_waitcnt lgkmcnt(0)")
    for p in range(2, 8):
        for x in range(4):
            a(f"v_add_f32 v{ACCB + 4 * p + x}, v{ACCB + 4 * p + x}, v{96 + 4 * p + x}")
    a("s_lshl_b32 s5, s64, 12")
    a(f"s_add_u32 s5, s5, {B_S}")
    a("v_lshlrev_b32 v7, 3, v1")
    a("v_add_u32 v7, s5, v7")
    for p in range(8):
        a(f"v_cvt_pk_bf16_f32 v{16 + 2 * p}, v{ACCB + 4 * p}, v{ACCB + 4 * p + 1}")
        a(f"v_cvt_pk_bf16_f32 v{16 + 2 * p + 1}, v{ACCB + 4 * p + 2}, v{ACCB + 4 * p + 3}")
        a(f"ds_write_b64 v7, {vr(16 + 2 * p, 2)} offset:{512 * p}")
    a("s_branch L_B_fin")
    a.label("L_B_h1")
    a.lds_q = []
    ft = set(range(8))
    conv_pass(a, [2, 3, 4, 6, 7], 96, ACCB, 48, 4, 8, 12, ft)
    a.stamp(9)
    a("s_nop 7")
    for p in range(2, 8):
        a(f"ds_write_b128 v13, {vr(ACCB + 4 * p, 4)} offset:{1024 * p}")
    a("s_waitcnt lgkmcnt(0)")
    a("s_barrier")
    a.label("L_B_fin")
    a("v_and_b32 v8, 3, v1")
    a("v_lshrrev_b32 v9, 2, v1")
    a("v_lshl_add_u32 v8, v8, 4, v9")
    a("v_lshlrev_b32 v8, 3, v8")
    a(f"s_lshl_b32 s5, s{S_W}, 9")
    a(f"s_add_u32 s5, s5, {B_S}")
    a("v_add_u32 v8, s5, v8")
    a("s_waitcnt lgkmcnt(0)")
    a("s_barrier")
    a.stamp(10)
    Y = 128
    for d in range(4):
        a(f"ds_read_b64 {vr(Y + 2 * d, 2)}, v8 offset:{4096 * d}")
    a("v_lshlrev_b32 v9, 1, v3")
    a("v_subrev_u32 v9, s6, v9")
    a("v_add_u32 v9, 1280, v9")
    a("s_waitcnt lgkmcnt(0)")
    O = 160
    T = 16
    for d in range(4):
        a(f"v_lshlrev_b32 v{O + 0 + d}, 16, v{Y + 2 * d}")
        a(f"v_and_b32 v{O + 4 + d}, 0xffff0000, v{Y + 2 * d}")
        a(f"v_lshlrev_b32 v{O + 8 + d}, 16, v{Y + 2 * d + 1}")
        a(f"v_and_b32 v{O + 12 + d}, 0xffff0000, v{Y + 2 * d + 1}")
        a(f"v_and_b32 v{T + 4}, 0xffff0000, v{UK + 2 * d + 1}")
        a(f"v_lshlrev_b32 v{T + 5}, 16, v{UK + 2 * d + 1}")
        a(f"v_and_b32 v{T + 6}, 0xffff0000, v{UK + 2 * d}")
        a(f"v_lshlrev_b32 v{T + 7}, 16, v{UK + 2 * d}")
        for r in range(4):
            a(f"v_fmac_f32 v{O + 4 * r + d}, s{88 + d}, v{T + 4 + r}")
    for r in range(4):
        for c in range(2):
            a(f"v_cvt_pk_bf16_f32 v{Y + 2 * r + c}, v{O + 4 * r + 2 * c}, v{O + 4 * r + 2 * c + 1}")
        if r == 2:
            a("v_add_u32 v9, 5120, v9")
        a(f"buffer_store_dwordx2 {vr(Y + 2 * r, 2)}, v9, s[{SRD_O}:{SRD_O + 3}], 0 offen offset:{2560 * (r % 2)}")
    a.stamp(11)
    if DIAG:
        a("s_waitcnt vmcnt(0)")
    a.stamp(12)
    a.stamp_out()
    a.label("L_end")
    a("s_endpgm")
    return a


def main():
    a = gen()
    ref = open(f"cdna_kernels/{NAME}.s.ref").read()
    head = ref[:ref.index("; @launch")]
    out = head
    out += f"; @launch grid=(256,1,1) block=(512,1,1) lds={LDS_BYTES}\n"
    out += '.amdgcn_target "amdgcn-amd-amdhsa--gfx950"\n.text\n'
    out += f".globl {NAME}_kernel\n.p2align 8\n.type {NAME}_kernel,@function\n{NAME}_kernel:\n"
    out += "\n".join(a.lines) + "\n"
    out += f""".section .rodata,"a"
.p2align 6
.amdhsa_kernel {NAME}_kernel
  .amdhsa_next_free_vgpr 256
  .amdhsa_next_free_sgpr 102
  .amdhsa_accum_offset 256
  .amdhsa_group_segment_fixed_size 0
  .amdhsa_kernarg_size 144
  .amdhsa_user_sgpr_count 2
  .amdhsa_user_sgpr_kernarg_segment_ptr 1
  .amdhsa_system_sgpr_workgroup_id_x 1
.end_amdhsa_kernel
"""
    path = sys.argv[1] if len(sys.argv) > 1 else f"cdna_kernels/{NAME}.s"
    open(path, "w").write(out)
    print("LDS", LDS_BYTES, "lines", len(a.lines))


if __name__ == "__main__":
    main()
```

```python
import sys, struct

NAME = "concat_heads__ssm_conv_h3__ssm_conv_s4__prompt"
PREFETCH = True
import os
DIAG = bool(os.environ.get("DIAG"))
if os.environ.get("NOPF"): PREFETCH = False
DBGT = bool(os.environ.get("DBGT"))


def f32bits(x):
    return struct.unpack("<I", struct.pack("<f", x))[0]


class Asm:
    def __init__(self):
        self.lines = []
        self.lds_q = []
        self.vm_q = []

    def __call__(self, s):
        self.lines.append("    " + s)

    def stamp(self, i):
        if not DIAG:
            return
        self("s_memtime s[98:99]")
        self("s_waitcnt lgkmcnt(0)")
        self(f"v_writelane_b32 v0, s98, {i}")
        self.lds_q = []

    def dbgt_begin(self):
        if not DBGT:
            return
        self("s_load_dwordx2 s[100:101], s[0:1], 128")
        self("s_memrealtime s[96:97]")
        self("s_memtime s[98:99]")

    def dbgt_end(self):
        if not DBGT:
            return
        self("s_waitcnt vmcnt(0)")
        self("s_memrealtime s[92:93]")
        self("s_memtime s[94:95]")
        self("s_waitcnt lgkmcnt(0)")
        self("v_mov_b32 v2, 0")
        self("v_mov_b32 v3, s92")
        self("s_not_b32 s97, s96")
        self("v_mov_b32 v4, s97")
        self("s_sub_u32 s92, s92, s96")
        self("s_sub_u32 s94, s94, s98")
        self("v_mov_b32 v5, s92")
        self("v_mov_b32 v6, s94")
        self("v_cmp_eq_u32 vcc, 0, v1")
        self("s_and_saveexec_b64 s[90:91], vcc")
        self("global_atomic_umax v2, v3, s[100:101]")
        self("global_atomic_umax v2, v4, s[100:101] offset:4")
        self("global_atomic_umax v2, v5, s[100:101] offset:8")
        self("global_atomic_umax v2, v6, s[100:101] offset:12")
        self("s_mov_b64 exec, s[90:91]")

    def stamp_out(self):
        if not DIAG:
            return
        self("s_lshl_b32 s98, s2, 3")
        self(f"s_add_u32 s98, s98, s{S_W}")
        self("s_lshl_b32 s98, s98, 8")
        self("v_lshlrev_b32 v1, 2, v1")
        self("v_add_u32 v1, s98, v1")
        self("global_store_dword v1, v0, s[100:101]")

    def label(self, s):
        self.lines.append(s + ":")

    def comment(self, s):
        self.lines.append("    ; " + s)

    def lds(self, s, tag=None):
        self(s)
        self.lds_q.append(tag)

    def lds_need(self, tag):
        idx = None
        for i, t in enumerate(self.lds_q):
            if t == tag:
                idx = i
        if idx is None:
            return
        n = len(self.lds_q) - 1 - idx
        n = min(n, 15)
        self(f"s_waitcnt lgkmcnt({n})")
        self.lds_q = self.lds_q[len(self.lds_q) - n:] if n else []

    def lds_drain(self):
        self("s_waitcnt lgkmcnt(0)")
        self.lds_q = []

    def vm(self, s, tag=None):
        self(s)
        self.vm_q.append(tag)

    def vm_need(self, tag):
        idx = None
        for i, t in enumerate(self.vm_q):
            if t == tag:
                idx = i
        if idx is None:
            return
        n = len(self.vm_q) - 1 - idx
        n = min(n, 63)
        self(f"s_waitcnt vmcnt({n})")
        self.vm_q = self.vm_q[len(self.vm_q) - n:] if n else []

    def vm_drain(self):
        self("s_waitcnt vmcnt(0)")
        self.vm_q = []


def vr(a, n=1):
    return f"v{a}" if n == 1 else f"v[{a}:{a + n - 1}]"


def sr(a, n=1):
    return f"s{a}" if n == 1 else f"s[{a}:{a + n - 1}]"


KSTR = 8320
COFF = 4160
XSTR = 4608
A_KC = 0
A_XR = A_KC + 8 * KSTR
A_S = A_XR + 8 * XSTR
A_END = A_S + 8 * 4096
B_KC = 0
B_XR = B_KC + 4 * KSTR
B_TAB = B_XR + 4 * XSTR
B_ST = B_TAB + 4 * 6144
B_S = B_ST + 32768
B_END = B_ST + 8 * 9216
LDS_BYTES = max(A_END, B_END)

S_CH0 = 3
S_W = 4
SRD_K = 8
SRD_V = 12
SRD_Q = 16
SRD_SK = 20
SRD_O = 24
SRD_PF = 28
P = dict(q=32, k=34, v=36, shift_k=38, ssm_k=40, ssm_D=42, u=44, A_re=46, A_im=48,
         B_re=50, B_im=52, C_re=54, C_im=56, log_dt=58, Dskip=60, out=62)


def mk_srd(a, d, p, nbytes):
    a(f"s_mov_b32 s{d}, s{p}")
    a(f"s_mov_b32 s{d + 1}, s{p + 1}")
    a(f"s_mov_b32 s{d + 2}, {nbytes}")
    a(f"s_mov_b32 s{d + 3}, 0x00020000")


def conv_pass(a, Es, Fbase, acc, Gbuf, nG, vFaddr, vGaddr, first_touch):
    maxD = 7 - min(Es)
    steps = []
    for D in range(maxD + 1):
        for eps in range(8):
            f = 8 * D - eps
            mm = [(idx, E) for idx, E in enumerate(Es) if E + D <= 7]
            steps.append((D, eps, f, mm))

    def issue_G(si):
        D, eps, f, mm = steps[si]
        g = Gbuf + 4 * (si % nG)
        a.lds(f"ds_read_b128 {vr(g, 4)}, v{vGaddr} offset:{64 * (56 - f)}", ("G", si))

    def issue_F(idx, E, eps):
        e = 8 * E + eps
        r = Fbase + 32 * idx + 4 * eps
        b, eo = e // 16, e % 16
        a.lds(f"ds_read2_b32 {vr(r, 2)}, v{vFaddr + b} offset0:{16 * eo} offset1:{16 * eo + 1}", None)
        a.lds(f"ds_read2_b32 {vr(r + 2, 2)}, v{vFaddr + b} offset0:{16 * eo + 2} offset1:{16 * eo + 3}", ("F", idx, eps))

    LA = nG - 1
    issued_G = 0
    issue_G(0); issued_G = 1
    for idx, E in enumerate(Es):
        issue_F(idx, E, 0)
    for si, (D, eps, f, mm) in enumerate(steps):
        if D == 0 and eps + 1 < 8:
            if issued_G <= si + 1:
                issue_G(issued_G); issued_G += 1
            for idx, E in enumerate(Es):
                issue_F(idx, E, eps + 1)
        else:
            while issued_G < len(steps) and issued_G <= si + LA:
                issue_G(issued_G); issued_G += 1
        g = Gbuf + 4 * (si % nG)
        a.lds_need(("G", si))
        for idx, E in mm:
            if D == 0:
                a.lds_need(("F", idx, eps))
            p = E + D
            r = Fbase + 32 * idx + 4 * eps
            c = vr(acc + 4 * p, 4)
            if p in first_touch:
                first_touch.discard(p)
                a(f"v_mfma_f32_16x16x32_bf16 {c}, {vr(r, 4)}, {vr(g, 4)}, 0")
            else:
                a(f"v_mfma_f32_16x16x32_bf16 {c}, {vr(r, 4)}, {vr(g, 4)}, {c}")


def conv_addrs(a, vlane, vFaddr, vGaddr, vt, sKC, sXR):
    a(f"v_and_b32 v{vt}, 15, v{vlane}")
    a(f"v_lshrrev_b32 v{vt + 1}, 4, v{vlane}")
    a(f"v_add_u32 v{vt + 2}, 1, v{vt}")
    a(f"v_lshrrev_b32 v{vt + 2}, 1, v{vt + 2}")
    a(f"v_lshl_add_u32 v{vt + 2}, v{vt + 1}, 2, v{vt + 2}")
    a(f"v_lshlrev_b32 v{vt + 2}, 2, v{vt + 2}")
    a(f"v_and_b32 v{vt + 3}, 1, v{vt}")
    a(f"v_xor_b32 v{vt + 3}, 1, v{vt + 3}")
    a(f"v_mul_u32_u24 v{vt + 3}, {COFF}, v{vt + 3}")
    a(f"v_add3_u32 v{vFaddr}, v{vt + 2}, v{vt + 3}, s{sKC}")
    for b in range(1, 4):
        a(f"v_add_u32 v{vFaddr + b}, {1024 * b}, v{vFaddr}")
    a(f"v_lshlrev_b32 v{vt + 2}, 5, v{vt}")
    a(f"v_lshlrev_b32 v{vt + 3}, 4, v{vt + 1}")
    a(f"v_sub_u32 v{vt + 3}, v{vt + 3}, v{vt + 2}")
    a(f"v_add_u32 v{vt + 3}, 480, v{vt + 3}")
    a(f"v_add_u32 v{vGaddr}, s{sXR}, v{vt + 3}")


def gen():
    a = Asm()
    a.dbgt_begin()
    a(f"s_load_dwordx16 s[32:47], s[0:1], 0")
    a(f"s_load_dwordx16 s[48:63], s[0:1], 64")
    if DIAG:
        a("s_load_dwordx2 s[100:101], s[0:1], 136")
    a("s_and_b32 s5, s2, 7")
    a("s_lshr_b32 s6, s2, 3")
    a("v_lshrrev_b32 v2, 6, v0")
    a("v_and_b32 v1, 63, v0")
    a("s_cmp_lt_u32 s5, 4")
    a("s_cselect_b32 s7, 3, 2")
    a(f"v_readfirstlane_b32 s{S_W}, v2")
    a("s_mul_i32 s64, s5, 3")
    a("s_lshl_b32 s65, s5, 1")
    a("s_add_u32 s66, s65, 4")
    a("s_cmp_lt_u32 s5, 4")
    a("s_cselect_b32 s66, s64, s66")
    a("s_sub_u32 s67, s64, 4")
    a("s_cmp_lt_u32 s5, 4")
    a("s_cselect_b32 s67, s65, s67")
    a("s_lshl_b32 s68, s7, 2")
    a("s_sub_u32 s69, 5, s7")
    a("s_lshl_b32 s70, s69, 3")
    a("s_add_u32 s70, s70, s68")
    a("s_cmp_ge_u32 s6, s70")
    a("s_cbranch_scc1 L_end")
    a("s_waitcnt lgkmcnt(0)")
    a.stamp(0)
    if PREFETCH:
        a("s_mul_i32 s71, s7, 3")
        a("s_add_u32 s72, s71, s69")
        a("s_cmp_eq_u32 s72, 11")
        a("s_movk_i32 s73, 7282")
        a("s_cselect_b32 s73, 5958, s73")
        a("s_lshl_b32 s74, s6, 3")
        a(f"s_add_u32 s74, s74, s{S_W}")
        a("s_lshl_b32 s75, s70, 3")
        a("s_lshl_b32 s76, s72, 5")
        a("v_mul_u32_u24 v3, 1280, v1")
        a(f"s_mov_b32 s{SRD_PF + 2}, 2621440")
        a(f"s_mov_b32 s{SRD_PF + 3}, 0x00020000")
        for it in range(2):
            if it == 1:
                a("s_add_u32 s74, s74, s75")
                a("s_cmp_ge_u32 s74, s76")
                a("s_cbranch_scc1 L_pf_done")
            a("s_mul_i32 s77, s74, s73")
            a("s_lshr_b32 s77, s77, 16")
            a("s_mul_i32 s78, s77, s72")
            a("s_sub_u32 s78, s74, s78")
            a("s_mul_i32 s79, s78, 43")
            a("s_lshr_b32 s79, s79, 7")
            a("s_mul_i32 s80, s79, 3")
            a("s_sub_u32 s80, s78, s80")
            a("s_add_u32 s79, s79, s66")
            a("s_cmp_eq_u32 s80, 0")
            a(f"s_cselect_b32 s{SRD_PF}, s{P['k']}, s{P['v']}")
            a(f"s_cselect_b32 s{SRD_PF + 1}, s{P['k'] + 1}, s{P['v'] + 1}")
            a("s_cmp_eq_u32 s80, 2")
            a(f"s_cselect_b32 s{SRD_PF}, s{P['q']}, s{SRD_PF}")
            a(f"s_cselect_b32 s{SRD_PF + 1}, s{P['q'] + 1}, s{SRD_PF + 1}")
            a("s_sub_u32 s81, s78, s71")
            a("s_add_u32 s81, s81, s67")
            a("s_cmp_ge_u32 s78, s71")
            a(f"s_cselect_b32 s{SRD_PF}, s{P['u']}, s{SRD_PF}")
            a(f"s_cselect_b32 s{SRD_PF + 1}, s{P['u'] + 1}, s{SRD_PF + 1}")
            a("s_cselect_b32 s79, s81, s79")
            a("s_lshl_b32 s79, s79, 6")
            a("s_mul_i32 s77, s77, 81920")
            a("s_add_u32 s77, s77, s79")
            a(f"buffer_load_dword v{4 + it}, v3, s[{SRD_PF}:{SRD_PF + 3}], s77 offen")
        a.label("L_pf_done")
    a("s_cmp_ge_u32 s6, s68")
    a("s_cbranch_scc1 L_B")

    a.vm_q = []
    a("s_lshr_b32 s71, s6, 2")
    a("s_add_u32 s71, s71, s66")
    a("s_and_b32 s72, s6, 3")
    a("s_lshl_b32 s71, s71, 5")
    a("s_lshl_b32 s72, s72, 3")
    a(f"s_add_u32 s{S_CH0}, s71, s72")
    mk_srd(a, SRD_K, P['k'], 2621440)
    mk_srd(a, SRD_V, P['v'], 2621440)
    mk_srd(a, SRD_Q, P['q'], 2621440)
    mk_srd(a, SRD_SK, P['ssm_k'], 2621440)
    mk_srd(a, SRD_O, P['out'], 5242880)
    a(f"s_lshl_b32 s5, s{S_CH0}, 3")
    a(f"s_lshl_b32 s6, s{S_CH0}, 1")
    a(f"s_load_dwordx16 s[64:79], s[{P['shift_k']}:{P['shift_k'] + 1}], s5")
    a(f"s_load_dwordx4 s[80:83], s[{P['ssm_D']}:{P['ssm_D'] + 1}], s6")
    a(f"s_add_u32 s7, s{S_CH0}, s{S_W}")
    a("s_lshl_b32 s7, s7, 12")
    a("v_lshlrev_b32 v2, 4, v1")
    for j in range(4):
        a.vm(f"buffer_load_dwordx4 {vr(128 + 4 * j, 4)}, v2, s[{SRD_SK}:{SRD_SK + 3}], s7 offen offset:{1024 * j}", "K")
    for j in range(4):
        a.vm(f"buffer_load_dwordx4 {vr(144 + 4 * j, 4)}, v2, s[{SRD_SK}:{SRD_SK + 3}], s7 offen offset:{1024 * j + 4}", "K")
    a(f"s_mul_i32 s7, s{S_W}, {256 * 1280}")
    a("s_add_u32 s7, s7, s6")
    a("v_mul_u32_u24 v3, 5120, v1")
    a("v_add_u32 v3, s7, v3")
    a("s_sub_u32 s5, s7, 3840")
    a("v_mov_b32 v6, s5")
    KR = 160
    VR = 188
    for j in range(3):
        a.vm(f"buffer_load_dwordx4 {vr(KR + 4 * j, 4)}, v6, s[{SRD_K}:{SRD_K + 3}], 0 offen offset:{1280 * j}", "x")
    for j in range(4):
        a.vm(f"buffer_load_dwordx4 {vr(KR + 12 + 4 * j, 4)}, v3, s[{SRD_K}:{SRD_K + 3}], 0 offen offset:{1280 * j}", "x")
    for j in range(4):
        a.vm(f"buffer_load_dwordx4 {vr(VR + 4 * j, 4)}, v3, s[{SRD_V}:{SRD_V + 3}], 0 offen offset:{1280 * j}", "x")
    a(f"s_mul_i32 s84, s{S_W}, {KSTR}")
    a(f"s_mul_i32 s85, s{S_W}, {XSTR}")
    a(f"s_add_u32 s85, s85, {A_XR}")
    a("v_mov_b32 v8, 0")
    a("v_mov_b32 v9, 0")
    a("v_lshlrev_b32 v7, 3, v1")
    a("v_add_u32 v7, s85, v7")
    a("ds_write_b64 v7, v[8:9] offset:4096")
    a("s_waitcnt lgkmcnt(0)")
    for d in range(8):
        for h in range(2):
            src = 64 + 2 * d + h
            a(f"s_lshl_b32 s{32 + 4 * d + 2 * h}, s{src}, 16")
            a(f"s_and_b32 s{32 + 4 * d + 2 * h + 1}, s{src}, 0xffff0000")
    for h in range(4):
        a(f"s_lshl_b32 s{88 + 2 * h}, s{80 + h}, 16")
        a(f"s_and_b32 s{88 + 2 * h + 1}, s{80 + h}, 0xffff0000")
    a.stamp(1)
    a.vm_need("K")
    a.stamp(2)
    a("v_add_u32 v7, s84, v2")
    for j in range(4):
        a(f"ds_write_b128 v7, {vr(128 + 4 * j, 4)} offset:{32 + 1024 * j}")
    a("v_readlane_b32 s5, v128, 0")
    for j in range(4):
        for x in range(4):
            a(f"v_alignbit_b32 v{144 + 4 * j + x}, v{144 + 4 * j + x}, v{128 + 4 * j + x}, 16")
    a("s_lshl_b32 s5, s5, 16")
    for j in range(4):
        a(f"ds_write_b128 v7, {vr(144 + 4 * j, 4)} offset:{COFF + 32 + 1024 * j}")
    a("v_writelane_b32 v9, s5, 7")
    a("v_lshlrev_b32 v7, 2, v1")
    a("v_add_u32 v7, s84, v7")
    a("v_cmp_gt_u32 vcc, 8, v1")
    a("s_and_saveexec_b64 s[86:87], vcc")
    a("ds_write_b32 v7, v8")
    a(f"ds_write_b32 v7, v9 offset:{COFF}")
    a("s_mov_b64 exec, s[86:87]")
    a.stamp(3)
    a.vm_need("x")
    a.stamp(4)
    for j in range(3):
        for c in range(4):
            a(f"v_mov_b32_dpp v{KR + 4 * j + c}, v{KR + 12 + 4 * (j + 1) + c} wave_shr:1 row_mask:0xf bank_mask:0xf")
    a(f"s_lshl_b32 s5, s{S_W}, 9")
    a(f"s_sub_u32 s5, {A_XR + 4088}, s5")
    a("v_lshlrev_b32 v7, 3, v1")
    a("v_sub_u32 v7, s5, v7")
    KV = 64
    T = 16
    for c in range(4):
        for hh in range(2):
            d = 2 * c + hh
            for r in range(7):
                if hh == 0:
                    a(f"v_lshlrev_b32 v{T + r}, 16, v{KR + 4 * r + c}")
                else:
                    a(f"v_and_b32 v{T + r}, 0xffff0000, v{KR + 4 * r + c}")
            for r in range(4):
                if hh == 0:
                    a(f"v_lshlrev_b32 v{T + 8 + r}, 16, v{VR + 4 * r + c}")
                else:
                    a(f"v_and_b32 v{T + 8 + r}, 0xffff0000, v{VR + 4 * r + c}")
            for r in range(4):
                a(f"v_mul_f32 v{T + 12 + r}, s{32 + 4 * d + 3}, v{T + r}")
            for jj in (2, 1, 0):
                for r in range(4):
                    a(f"v_fmac_f32 v{T + 12 + r}, s{32 + 4 * d + jj}, v{T + 3 + r - jj}")
            for r in range(4):
                a(f"v_mul_f32 v{T + 12 + r}, v{T + 12 + r}, v{T + 8 + r}")
            a(f"v_cvt_pk_bf16_f32 v{KV + 2 * d}, v{T + 15}, v{T + 14}")
            a(f"v_cvt_pk_bf16_f32 v{KV + 2 * d + 1}, v{T + 13}, v{T + 12}")
            a(f"ds_write_b64 v7, {vr(KV + 2 * d, 2)} offset:{XSTR * d}")
    QR = 48
    for j in range(4):
        a.vm(f"buffer_load_dwordx4 {vr(QR + 4 * j, 4)}, v3, s[{SRD_Q}:{SRD_Q + 3}], 0 offen offset:{1280 * j}", "q")
    conv_addrs(a, 1, 8, 12, T, 84, 85)
    a("s_waitcnt lgkmcnt(0)")
    a.stamp(5)
    a("s_barrier")
    a.stamp(6)
    a.lds_q = []
    ACC = 96
    ft = set(range(8))
    conv_pass(a, [4, 5, 6, 7], 128, ACC, 80, 4, 8, 12, ft)
    a.stamp(7)
    conv_pass(a, [0, 1, 2, 3], 128, ACC, 80, 4, 8, 12, ft)
    a.stamp(8)
    a(f"s_lshl_b32 s5, s{S_W}, 12")
    a(f"s_add_u32 s5, s5, {A_S}")
    a("v_lshlrev_b32 v7, 3, v1")
    a("v_add_u32 v7, s5, v7")
    a("s_nop 7")
    for p in range(8):
        a(f"v_cvt_pk_bf16_f32 v{T + 2 * p}, v{ACC + 4 * p}, v{ACC + 4 * p + 1}")
        a(f"v_cvt_pk_bf16_f32 v{T + 2 * p + 1}, v{ACC + 4 * p + 2}, v{ACC + 4 * p + 3}")
        a(f"ds_write_b64 v7, {vr(T + 2 * p, 2)} offset:{512 * p}")
    a("v_and_b32 v8, 3, v1")
    a("v_lshrrev_b32 v9, 2, v1")
    a("v_lshl_add_u32 v8, v8, 4, v9")
    a("v_lshlrev_b32 v8, 3, v8")
    a(f"s_lshl_b32 s5, s{S_W}, 9")
    a(f"s_add_u32 s5, s5, {A_S}")
    a("v_add_u32 v8, s5, v8")
    a("s_waitcnt lgkmcnt(0)")
    a("s_barrier")
    a.stamp(9)
    Y = 128
    for d in range(8):
        a(f"ds_read_b64 {vr(Y + 2 * d, 2)}, v8 offset:{4096 * d}")
    a("v_lshlrev_b32 v9, 1, v3")
    a("v_subrev_u32 v9, s6, v9")
    a.vm_need("q")
    a("s_waitcnt lgkmcnt(0)")
    a.stamp(10)
    O = 160
    for d in range(8):
        c, hh = d // 2, d % 2
        a(f"v_lshlrev_b32 v{T}, 16, v{Y + 2 * d}")
        a(f"v_and_b32 v{T + 1}, 0xffff0000, v{Y + 2 * d}")
        a(f"v_lshlrev_b32 v{T + 2}, 16, v{Y + 2 * d + 1}")
        a(f"v_and_b32 v{T + 3}, 0xffff0000, v{Y + 2 * d + 1}")
        a(f"v_and_b32 v{T + 4}, 0xffff0000, v{KV + 2 * d + 1}")
        a(f"v_lshlrev_b32 v{T + 5}, 16, v{KV + 2 * d + 1}")
        a(f"v_and_b32 v{T + 6}, 0xffff0000, v{KV + 2 * d}")
        a(f"v_lshlrev_b32 v{T + 7}, 16, v{KV + 2 * d}")
        for r in range(4):
            a(f"v_fmac_f32 v{T + r}, s{88 + d}, v{T + 4 + r}")
        for r in range(4):
            if hh == 0:
                a(f"v_lshlrev_b32 v{T + 4 + r}, 16, v{QR + 4 * r + c}")
            else:
                a(f"v_and_b32 v{T + 4 + r}, 0xffff0000, v{QR + 4 * r + c}")
        for r in range(4):
            a(f"v_mul_f32 v{O + 8 * r + d}, v{T + r}, v{T + 4 + r}")
    for r in range(4):
        for c in range(4):
            a(f"v_cvt_pk_bf16_f32 v{Y + 4 * r + c}, v{O + 8 * r + 2 * c}, v{O + 8 * r + 2 * c + 1}")
        if r == 0:
            a(f"buffer_store_dwordx4 {vr(Y, 4)}, v9, s[{SRD_O}:{SRD_O + 3}], 0 offen")
        elif r == 1:
            a(f"buffer_store_dwordx4 {vr(Y + 4, 4)}, v9, s[{SRD_O}:{SRD_O + 3}], 0 offen offset:2560")
        else:
            if r == 2:
                a("v_add_u32 v9, 5120, v9")
            a(f"buffer_store_dwordx4 {vr(Y + 4 * r, 4)}, v9, s[{SRD_O}:{SRD_O + 3}], 0 offen offset:{2560 * (r - 2)}")
    a.stamp(11)
    if DIAG:
        a("s_waitcnt vmcnt(0)")
    a.stamp(12)
    a.stamp_out()
    a.dbgt_end()
    a("s_endpgm")

    a.label("L_B")
    a.vm_q = []
    a.lds_q = []
    a("s_sub_u32 s6, s6, s68")
    a("s_lshr_b32 s71, s6, 3")
    a("s_add_u32 s71, s71, s67")
    a("s_and_b32 s72, s6, 7")
    a("s_lshl_b32 s71, s71, 5")
    a("s_lshl_b32 s72, s72, 2")
    a(f"s_add_u32 s{S_CH0}, s71, s72")
    mk_srd(a, SRD_K, P['u'], 2621440)
    mk_srd(a, SRD_O, P['out'], 5242880)
    a(f"s_lshl_b32 s6, s{S_CH0}, 1")
    a(f"s_load_dwordx2 s[80:81], s[{P['log_dt']}:{P['log_dt'] + 1}], s6")
    a(f"s_load_dwordx2 s[82:83], s[{P['Dskip']}:{P['Dskip'] + 1}], s6")
    a(f"s_lshr_b32 s64, s{S_W}, 1")
    a(f"s_and_b32 s65, s{S_W}, 1")
    a(f"s_add_u32 s5, s{S_CH0}, s64")
    a("s_lshl_b32 s5, s5, 8")
    a("s_lshl_b32 s7, s65, 7")
    a("s_add_u32 s5, s5, s7")
    a("v_lshlrev_b32 v2, 1, v1")
    a("v_add_u32 v2, s5, v2")
    PR = 16
    names = ["A_re", "A_im", "B_re", "B_im", "C_re", "C_im"]
    for i, nm in enumerate(names):
        a.vm(f"global_load_ushort v{PR + i}, v2, s[{P[nm]}:{P[nm] + 1}]", "par")
    a(f"s_mul_i32 s7, s{S_W}, {256 * 1280}")
    a("s_add_u32 s7, s7, s6")
    a("v_mul_u32_u24 v3, 5120, v1")
    a("v_add_u32 v3, s7, v3")
    UR = 40
    for j in range(4):
        a.vm(f"buffer_load_dwordx2 {vr(UR + 2 * j, 2)}, v3, s[{SRD_K}:{SRD_K + 3}], 0 offen offset:{1280 * j}", "u")
    a(f"s_mul_i32 s84, s64, {KSTR}")
    a(f"s_mul_i32 s85, s64, {XSTR}")
    a(f"s_add_u32 s85, s85, {B_XR}")
    a(f"s_mul_i32 s86, s{S_W}, 9216")
    a(f"s_add_u32 s86, s86, {B_ST}")
    a(f"s_mul_i32 s87, s64, 6144")
    a(f"s_add_u32 s87, s87, {B_TAB}")
    a("v_mov_b32 v8, 0")
    a("v_mov_b32 v9, 0")
    a("v_lshlrev_b32 v7, 3, v1")
    a("v_add_u32 v7, s85, v7")
    a("ds_write_b64 v7, v[8:9] offset:4096")
    a("s_waitcnt lgkmcnt(0)")
    a("s_lshr_b32 s5, s64, 1")
    a("s_cmp_eq_u32 s5, 0")
    a("s_cselect_b32 s66, s80, s81")
    a("s_and_b32 s5, s64, 1")
    a("s_lshl_b32 s67, s66, 16")
    a("s_and_b32 s66, s66, 0xffff0000")
    a("s_cmp_eq_u32 s5, 0")
    a("s_cselect_b32 s66, s67, s66")
    for h in range(2):
        a(f"s_lshl_b32 s{88 + 2 * h}, s{82 + h}, 16")
        a(f"s_and_b32 s{88 + 2 * h + 1}, s{82 + h}, 0xffff0000")
    L2E = 1.4426950408889634
    L2E_hi = struct.unpack("<f", struct.pack("<f", L2E))[0]
    L2E_lo = L2E - L2E_hi
    a(f"s_mov_b32 s68, {f32bits(L2E_hi):#x}")
    a(f"s_mov_b32 s69, {f32bits(L2E_lo):#x}")
    a(f"s_mov_b32 s70, {f32bits(0.6931471805599453):#x}")
    a("v_mov_b32 v10, s66")
    a("v_mul_f32 v11, s68, v10")
    a("v_fma_f32 v12, v10, s68, -v11")
    a("v_fmac_f32 v12, s69, v10")
    a("v_exp_f32 v13, v11")
    a("v_mul_f32 v12, s70, v12")
    a("s_nop 0")
    a("v_fma_f32 v13, v13, v12, v13")
    a("v_cvt_pk_bf16_f32 v13, v13, v13")
    a("v_lshlrev_b32 v13, 16, v13")
    a.stamp(1)
    a.vm_need("par")
    a.stamp(2)
    for i in range(6):
        a(f"v_lshlrev_b32 v{PR + i}, 16, v{PR + i}")
    for i in range(4):
        a(f"v_mul_f32 v{PR + i}, v13, v{PR + i}")

    def cmul(d, x, y):
        a(f"v_pk_mul_f32 {vr(14, 2)}, {vr(x, 2)}, {vr(y, 2)} op_sel:[0,0] op_sel_hi:[1,0]")
        a(f"v_pk_fma_f32 {vr(d, 2)}, {vr(x, 2)}, {vr(y, 2)}, {vr(14, 2)} op_sel:[1,1,0] op_sel_hi:[0,1,1] neg_lo:[1,0,0]")

    I2P = 0.15915494309189535
    I2P_hi = struct.unpack("<f", struct.pack("<f", I2P))[0]
    I2P_lo = I2P - I2P_hi
    a(f"s_mov_b32 s71, {f32bits(I2P_hi):#x}")
    a(f"s_mov_b32 s72, {f32bits(I2P_lo):#x}")

    def anchor(d, lam, conj=False):
        t = 10
        a(f"s_mov_b32 s73, {f32bits(float(lam)):#x}")
        a(f"v_mul_f32 v{t}, s73, v{PR}")
        a(f"v_mul_f32 v{t + 1}, s73, v{PR + 1}")
        a(f"v_mul_f32 v{t}, s68, v{t}")
        a(f"v_mul_f32 v{t + 2}, s71, v{t + 1}")
        a(f"v_exp_f32 v{t}, v{t}")
        a(f"v_fma_f32 v{t + 3}, v{t + 1}, s71, -v{t + 2}")
        a(f"v_fmac_f32 v{t + 3}, s72, v{t + 1}")
        a(f"v_fract_f32 v{t + 2}, v{t + 2}")
        a(f"v_add_f32 v{t + 2}, v{t + 2}, v{t + 3}")
        a(f"v_cos_f32 v{t + 1}, v{t + 2}")
        a(f"v_sin_f32 v{t + 3}, v{t + 2}")
        a("s_nop 0")
        a(f"v_mul_f32 v{d}, v{t}, v{t + 1}")
        if conj:
            a(f"v_mul_f32 v{d + 1}, -v{t}, v{t + 3}" if False else f"v_mul_f32_e64 v{d + 1}, -v{t}, v{t + 3}")
        else:
            a(f"v_mul_f32 v{d + 1}, v{t}, v{t + 3}")

    a("v_lshlrev_b32 v4, 2, v1")
    a("v_add_u32 v4, s86, v4")
    a("v_and_b32 v5, 15, v1")
    a("v_mul_u32_u24 v5, 288, v5")
    a("v_lshrrev_b32 v6, 4, v1")
    a("v_lshl_add_u32 v5, v6, 4, v5")
    a("v_add_u32 v5, s86, v5")

    def put(x, row):
        a(f"v_cvt_pk_bf16_f32 v10, v{x}, v{x + 1}")
        a("v_lshlrev_b32 v12, 16, v10")
        a("v_and_b32 v13, 0xffff0000, v10")
        a(f"ds_write_b32 v4, v10 offset:{288 * row}")
        a(f"v_pk_add_f32 v[12:13], {vr(x, 2)}, v[12:13] neg_lo:[0,1] neg_hi:[0,1]")
        a("v_cvt_pk_bf16_f32 v11, v12, v13")
        a(f"ds_write_b32 v4, v11 offset:{4608 + 288 * row}")

    Z8, Z64, ZC = 22, 24, 26
    ZE = 48
    CT = 28
    Z128, Z1024 = 30, 32
    HH = 34
    TMP = 36
    E2F = 64
    E1F = 96
    KD = 128
    anchor(Z8, 8, conj=True)
    anchor(Z64, 64, conj=True)
    a(f"v_mov_b32 v{ZC}, 1.0")
    a(f"v_mov_b32 v{ZC + 1}, 0")
    put(ZC, 0)
    put(Z8, 1)
    cur = Z8
    for r in range(2, 16):
        if r == 8:
            put(Z64, 8)
            cur = Z64
            continue
        dst = ZC if cur != ZC else TMP
        cmul(dst, cur, Z8)
        put(dst, r)
        cur = dst
    a("s_waitcnt lgkmcnt(0)")
    for ks in range(4):
        a(f"ds_read_b128 {vr(E2F + 4 * ks, 4)}, v5 offset:{64 * ks}")
        a(f"ds_read_b128 {vr(E2F + 16 + 4 * ks, 4)}, v5 offset:{4608 + 64 * ks}")
    anchor(ZE + 2, 1)
    cmul(ZE + 4, ZE + 2, ZE + 2)
    cmul(ZE + 6, ZE + 4, ZE + 2)
    cmul(ZE + 8, ZE + 4, ZE + 4)
    cmul(ZE + 10, ZE + 8, ZE + 2)
    cmul(ZE + 12, ZE + 8, ZE + 4)
    cmul(ZE + 14, ZE + 8, ZE + 6)
    cmul(CT, PR + 4, PR + 2)
    anchor(Z128, 128)
    anchor(Z1024, 1024)
    a("s_waitcnt lgkmcnt(0)")

    def mfma_tile(m):
        a("s_waitcnt lgkmcnt(0)")
        for ks in range(4):
            a(f"ds_read_b128 {vr(E1F + 4 * ks, 4)}, v5 offset:{64 * ks}")
            a(f"ds_read_b128 {vr(E1F + 16 + 4 * ks, 4)}, v5 offset:{4608 + 64 * ks}")
        a("s_waitcnt lgkmcnt(0)")
        c = vr(KD + 4 * m, 4)
        first = True
        for ks in range(4):
            for (x, y) in ((16, 0), (0, 16), (0, 0)):
                src = "0" if first else c
                first = False
                a(f"v_mfma_f32_16x16x32_bf16 {c}, {vr(E1F + x + 4 * ks, 4)}, {vr(E2F + y + 4 * ks, 4)}, {src}")

    HA, HB = HH, 38
    state = {"cur": CT, "h": 0}

    def next_H():
        h = state["h"] + 1
        dst = HA if state["cur"] != HA else HB
        if h == 8:
            cmul(dst, CT, Z1024)
        else:
            cmul(dst, state["cur"], Z128)
        state["cur"] = dst
        state["h"] = h
        return dst

    for h in range(2):
        H = state["cur"] if h == 0 else next_H()
        put(H, 8 * h)
        for eps in range(1, 8):
            cmul(TMP, H, ZE + 2 * eps)
            put(TMP, 8 * h + eps)
    mfma_tile(0)
    for hp in range(2):
        H = next_H()
        put(H, 4 * hp)
        for ep in range(1, 4):
            cmul(TMP, H, ZE + 4 * ep)
            put(TMP, 4 * hp + ep)
    for hp in range(4):
        H = next_H()
        put(H, 8 + 2 * hp)
        cmul(TMP, H, ZE + 8)
        put(TMP, 8 + 2 * hp + 1)
    mfma_tile(1)
    for hp in range(9):
        H = next_H()
        put(H, hp)
    mfma_tile(2)
    a.stamp(3)
    a("v_and_b32 v10, 15, v1")
    a("v_lshrrev_b32 v11, 4, v1")
    a("s_lshl_b32 s5, s65, 2")
    a("s_add_u32 s5, s5, s87")
    a("v_lshrrev_b32 v12, 1, v11")
    a("v_lshlrev_b32 v12, 7, v12")
    a("v_and_b32 v13, 1, v11")
    a("v_lshl_add_u32 v12, v13, 2, v12")
    a("v_lshl_add_u32 v12, v10, 3, v12")
    a("v_lshl_add_u32 v12, v12, 3, s5")
    a("v_lshlrev_b32 v13, 6, v11")
    a("v_add_u32 v13, 256, v13")
    a("v_cmp_gt_u32 vcc, 2, v11")
    a("v_lshlrev_b32 v14, 2, v10")
    a("v_lshlrev_b32 v15, 1, v10")
    a("v_cndmask_b32 v14, v15, v14, vcc")
    a("v_add_u32 v13, v13, v14")
    a("v_lshl_add_u32 v13, v13, 3, s5")
    a("v_mov_b32 v14, 256")
    a("v_cndmask_b32 v14, v14, 16, vcc" if False else "v_cndmask_b32_e64 v14, v14, 16, vcc")
    a("v_add_u32 v14, v13, v14")
    a("v_lshl_add_u32 v15, v11, 6, v10")
    a("v_add_u32 v15, 512, v15")
    a("v_lshl_add_u32 v15, v15, 3, s5")
    a("s_nop 7")
    for j in range(4):
        a(f"ds_write_b32 v12, v{KD + j} offset:{8 * j}")
    a(f"ds_write_b32 v13, v{KD + 4}")
    a(f"ds_write_b32 v13, v{KD + 5} offset:8")
    a(f"ds_write_b32 v14, v{KD + 6}")
    a(f"ds_write_b32 v14, v{KD + 7} offset:8")
    for j in range(4):
        a(f"ds_write_b32 v15, v{KD + 8 + j} offset:{128 * j}")
    a.stamp(4)
    a.vm_need("u")
    a.stamp(5)
    UK = 32
    a("s_mov_b32 s71, 0x05040100")
    a("s_mov_b32 s72, 0x07060302")
    a(f"s_lshl_b32 s5, s{S_W}, 9")
    a(f"s_sub_u32 s5, {B_XR + 4088}, s5")
    a("v_lshlrev_b32 v7, 3, v1")
    a("v_sub_u32 v7, s5, v7")
    for d in range(4):
        c, hh = d // 2, d % 2
        sel = "s71" if hh == 0 else "s72"
        a(f"v_perm_b32 v{UK + 2 * d}, v{UR + 2 * 2 + c}, v{UR + 2 * 3 + c}, {sel}")
        a(f"v_perm_b32 v{UK + 2 * d + 1}, v{UR + 2 * 0 + c}, v{UR + 2 * 1 + c}, {sel}")
        a(f"ds_write_b64 v7, {vr(UK + 2 * d, 2)} offset:{XSTR * d}")
    a("s_waitcnt lgkmcnt(0)")
    a("s_barrier")
    a.stamp(6)
    GV = 48
    for rd in range(2):
        a("s_lshl_b32 s5, s65, 10")
        a(f"s_add_u32 s5, s5, {512 * rd}")
        a("v_lshlrev_b32 v10, 3, v1")
        a("v_add_u32 v10, s5, v10")
        for x in range(9):
            a(f"v_add_u32 v11, {x}, v10")
            a("v_cvt_f32_u32 v12, v11")
            a("v_cvt_pk_bf16_f32 v12, v12, v12")
            a("v_and_b32 v12, 0xffff, v12")
            a("v_subrev_u32 v12, 17024, v12")
            a("v_cmp_gt_u32 vcc, 128, v11")
            a("s_nop 1")
            a("v_cndmask_b32 v12, v12, v11, vcc")
            a("v_lshl_add_u32 v12, v12, 3, s87")
            a(f"ds_read_b64 {vr(GV + 2 * x, 2)}, v12")
        a("s_waitcnt lgkmcnt(0)")
        for x in range(9):
            a(f"v_add_f32 v{GV + 2 * x}, v{GV + 2 * x}, v{GV + 2 * x + 1}")
        for x in range(4):
            a(f"v_cvt_pk_bf16_f32 v{16 + x}, v{GV + 4 * x}, v{GV + 4 * x + 2}")
            a(f"v_cvt_pk_bf16_f32 v{20 + x}, v{GV + 4 * x + 2}, v{GV + 4 * x + 4}")
        a("v_lshlrev_b32 v11, 1, v10")
        a("v_add_u32 v11, s84, v11")
        a("ds_write_b128 v11, v[16:19] offset:32")
        a(f"ds_write_b128 v11, v[20:23] offset:{COFF + 32}")
        if rd == 0:
            a("s_cmp_lg_u32 s65, 0")
            a("s_cbranch_scc1 L_B_nopad")
            a("v_readlane_b32 s5, v16, 0")
            a("s_lshl_b32 s5, s5, 16")
            a("v_mov_b32 v8, 0")
            a("v_mov_b32 v9, 0")
            a("v_writelane_b32 v9, s5, 7")
            a("v_lshlrev_b32 v7, 2, v1")
            a("v_add_u32 v7, s84, v7")
            a("v_cmp_gt_u32 vcc, 8, v1")
            a("s_and_saveexec_b64 s[74:75], vcc")
            a("ds_write_b32 v7, v8")
            a(f"ds_write_b32 v7, v9 offset:{COFF}")
            a("s_mov_b64 exec, s[74:75]")
            a.label("L_B_nopad")
    conv_addrs(a, 1, 8, 12, 16, 84, 85)
    a("s_waitcnt lgkmcnt(0)")
    a.stamp(7)
    a("s_barrier")
    a.stamp(8)
    ACCB = 64
    a("s_lshl_b32 s5, s64, 13")
    a(f"s_add_u32 s5, s5, {B_ST}")
    a("v_lshlrev_b32 v13, 4, v1")
    a("v_add_u32 v13, s5, v13")
    a("s_cmp_lg_u32 s65, 0")
    a("s_cbranch_scc1 L_B_h1")
    a.lds_q = []
    ft = set(range(8))
    conv_pass(a, [0, 1, 5], 96, ACCB, 48, 4, 8, 12, ft)
    a.stamp(9)
    a("s_barrier")
    for p in range(2, 8):
        a(f"ds_read_b128 {vr(96 + 4 * p, 4)}, v13 offset:{1024 * p}")
    a("s_waitcnt lgkmcnt(0)")
    for p in range(2, 8):
        for x in range(4):
            a(f"v_add_f32 v{ACCB + 4 * p + x}, v{ACCB + 4 * p + x}, v{96 + 4 * p + x}")
    a("s_lshl_b32 s5, s64, 12")
    a(f"s_add_u32 s5, s5, {B_S}")
    a("v_lshlrev_b32 v7, 3, v1")
    a("v_add_u32 v7, s5, v7")
    for p in range(8):
        a(f"v_cvt_pk_bf16_f32 v{16 + 2 * p}, v{ACCB + 4 * p}, v{ACCB + 4 * p + 1}")
        a(f"v_cvt_pk_bf16_f32 v{16 + 2 * p + 1}, v{ACCB + 4 * p + 2}, v{ACCB + 4 * p + 3}")
        a(f"ds_write_b64 v7, {vr(16 + 2 * p, 2)} offset:{512 * p}")
    a("s_branch L_B_fin")
    a.label("L_B_h1")
    a.lds_q = []
    ft = set(range(8))
    conv_pass(a, [2, 3, 4, 6, 7], 96, ACCB, 48, 4, 8, 12, ft)
    a.stamp(9)
    a("s_nop 7")
    for p in range(2, 8):
        a(f"ds_write_b128 v13, {vr(ACCB + 4 * p, 4)} offset:{1024 * p}")
    a("s_waitcnt lgkmcnt(0)")
    a("s_barrier")
    a.label("L_B_fin")
    a("v_and_b32 v8, 3, v1")
    a("v_lshrrev_b32 v9, 2, v1")
    a("v_lshl_add_u32 v8, v8, 4, v9")
    a("v_lshlrev_b32 v8, 3, v8")
    a(f"s_lshl_b32 s5, s{S_W}, 9")
    a(f"s_add_u32 s5, s5, {B_S}")
    a("v_add_u32 v8, s5, v8")
    a("s_waitcnt lgkmcnt(0)")
    a("s_barrier")
    a.stamp(10)
    Y = 128
    for d in range(4):
        a(f"ds_read_b64 {vr(Y + 2 * d, 2)}, v8 offset:{4096 * d}")
    a("v_lshlrev_b32 v9, 1, v3")
    a("v_subrev_u32 v9, s6, v9")
    a("v_add_u32 v9, 1280, v9")
    a("s_waitcnt lgkmcnt(0)")
    O = 160
    T = 16
    for d in range(4):
        a(f"v_lshlrev_b32 v{O + 0 + d}, 16, v{Y + 2 * d}")
        a(f"v_and_b32 v{O + 4 + d}, 0xffff0000, v{Y + 2 * d}")
        a(f"v_lshlrev_b32 v{O + 8 + d}, 16, v{Y + 2 * d + 1}")
        a(f"v_and_b32 v{O + 12 + d}, 0xffff0000, v{Y + 2 * d + 1}")
        a(f"v_and_b32 v{T + 4}, 0xffff0000, v{UK + 2 * d + 1}")
        a(f"v_lshlrev_b32 v{T + 5}, 16, v{UK + 2 * d + 1}")
        a(f"v_and_b32 v{T + 6}, 0xffff0000, v{UK + 2 * d}")
        a(f"v_lshlrev_b32 v{T + 7}, 16, v{UK + 2 * d}")
        for r in range(4):
            a(f"v_fmac_f32 v{O + 4 * r + d}, s{88 + d}, v{T + 4 + r}")
    for r in range(4):
        for c in range(2):
            a(f"v_cvt_pk_bf16_f32 v{Y + 2 * r + c}, v{O + 4 * r + 2 * c}, v{O + 4 * r + 2 * c + 1}")
        if r == 2:
            a("v_add_u32 v9, 5120, v9")
        a(f"buffer_store_dwordx2 {vr(Y + 2 * r, 2)}, v9, s[{SRD_O}:{SRD_O + 3}], 0 offen offset:{2560 * (r % 2)}")
    a.stamp(11)
    if DIAG:
        a("s_waitcnt vmcnt(0)")
    a.stamp(12)
    a.stamp_out()
    a.dbgt_end()
    a.label("L_end")
    a("s_endpgm")
    return a


def main():
    a = gen()
    ref = open(f"cdna_kernels/{NAME}.s.ref").read()
    head = ref[:ref.index("; @launch")]
    out = head
    out += f"; @launch grid=(256,1,1) block=(512,1,1) lds={LDS_BYTES}\n"
    out += '.amdgcn_target "amdgcn-amd-amdhsa--gfx950"\n.text\n'
    out += f".globl {NAME}_kernel\n.p2align 8\n.type {NAME}_kernel,@function\n{NAME}_kernel:\n"
    out += "\n".join(a.lines) + "\n"
    out += f""".section .rodata,"a"
.p2align 6
.amdhsa_kernel {NAME}_kernel
  .amdhsa_next_free_vgpr 256
  .amdhsa_next_free_sgpr 102
  .amdhsa_accum_offset 256
  .amdhsa_group_segment_fixed_size 0
  .amdhsa_kernarg_size 144
  .amdhsa_user_sgpr_count 2
  .amdhsa_user_sgpr_kernarg_segment_ptr 1
  .amdhsa_system_sgpr_workgroup_id_x 1
.end_amdhsa_kernel
"""
    path = sys.argv[1] if len(sys.argv) > 1 else f"cdna_kernels/{NAME}.s"
    open(path, "w").write(out)
    print("LDS", LDS_BYTES, "lines", len(a.lines))


if __name__ == "__main__":
    main()
```

```python
import sys, struct

NAME = "concat_heads__ssm_conv_h3__ssm_conv_s4__prompt"
PREFETCH = True
import os
DIAG = bool(os.environ.get("DIAG"))
if os.environ.get("NOPF"): PREFETCH = False
DBGT = bool(os.environ.get("DBGT"))


def f32bits(x):
    return struct.unpack("<I", struct.pack("<f", x))[0]


class Asm:
    def __init__(self):
        self.lines = []
        self.lds_q = []
        self.vm_q = []

    def __call__(self, s):
        self.lines.append("    " + s)

    def stamp(self, i):
        if not DIAG:
            return
        self("s_memtime s[98:99]")
        self("s_waitcnt lgkmcnt(0)")
        self(f"v_writelane_b32 v0, s98, {i}")
        self.lds_q = []

    def dbgt_begin(self):
        if not DBGT:
            return
        self("s_load_dwordx2 s[100:101], s[0:1], 128")
        self("s_memrealtime s[96:97]")
        self("s_memtime s[98:99]")

    def dbgt_end(self):
        if not DBGT:
            return
        self("s_waitcnt vmcnt(0)")
        self("s_memrealtime s[92:93]")
        self("s_memtime s[94:95]")
        self("s_waitcnt lgkmcnt(0)")
        self("v_mov_b32 v2, 0")
        self("v_mov_b32 v3, s92")
        self("s_not_b32 s97, s96")
        self("v_mov_b32 v4, s97")
        self("s_sub_u32 s92, s92, s96")
        self("s_sub_u32 s94, s94, s98")
        self("v_mov_b32 v5, s92")
        self("v_mov_b32 v6, s94")
        self(f"s_or_b32 s90, s{S_W}, s2")
        self(f"s_lshl_b32 s91, s{S_W}, 6")
        self("v_add_u32 v7, s91, v1")
        self("v_cmp_eq_u32 vcc, 448, v7")
        self("s_and_saveexec_b64 s[90:91], vcc")
        self("s_cbranch_execz L_dbg%d" % len(self.lines))
        self("global_atomic_umax v2, v3, s[100:101]")
        self("global_atomic_umax v2, v4, s[100:101] offset:4")
        self.label("L_dbg%d" % (len(self.lines) - 3))
        self("s_mov_b64 exec, s[90:91]")

    def stamp_out(self):
        if not DIAG:
            return
        self("s_lshl_b32 s98, s2, 3")
        self(f"s_add_u32 s98, s98, s{S_W}")
        self("s_lshl_b32 s98, s98, 8")
        self("v_lshlrev_b32 v1, 2, v1")
        self("v_add_u32 v1, s98, v1")
        self("global_store_dword v1, v0, s[100:101]")

    def label(self, s):
        self.lines.append(s + ":")

    def comment(self, s):
        self.lines.append("    ; " + s)

    def lds(self, s, tag=None):
        self(s)
        self.lds_q.append(tag)

    def lds_need(self, tag):
        idx = None
        for i, t in enumerate(self.lds_q):
            if t == tag:
                idx = i
        if idx is None:
            return
        n = len(self.lds_q) - 1 - idx
        n = min(n, 15)
        self(f"s_waitcnt lgkmcnt({n})")
        self.lds_q = self.lds_q[len(self.lds_q) - n:] if n else []

    def lds_drain(self):
        self("s_waitcnt lgkmcnt(0)")
        self.lds_q = []

    def vm(self, s, tag=None):
        self(s)
        self.vm_q.append(tag)

    def vm_need(self, tag):
        idx = None
        for i, t in enumerate(self.vm_q):
            if t == tag:
                idx = i
        if idx is None:
            return
        n = len(self.vm_q) - 1 - idx
        n = min(n, 63)
        self(f"s_waitcnt vmcnt({n})")
        self.vm_q = self.vm_q[len(self.vm_q) - n:] if n else []

    def vm_drain(self):
        self("s_waitcnt vmcnt(0)")
        self.vm_q = []


def vr(a, n=1):
    return f"v{a}" if n == 1 else f"v[{a}:{a + n - 1}]"


def sr(a, n=1):
    return f"s{a}" if n == 1 else f"s[{a}:{a + n - 1}]"


KSTR = 8320
COFF = 4160
XSTR = 4608
A_KC = 0
A_XR = A_KC + 8 * KSTR
A_S = A_XR + 8 * XSTR
A_END = A_S + 8 * 4096
B_KC = 0
B_XR = B_KC + 4 * KSTR
B_TAB = B_XR + 4 * XSTR
B_ST = B_TAB + 4 * 6144
B_S = B_ST + 32768
B_END = B_ST + 8 * 9216
LDS_BYTES = max(A_END, B_END)

S_CH0 = 3
S_W = 4
SRD_K = 8
SRD_V = 12
SRD_Q = 16
SRD_SK = 20
SRD_O = 24
SRD_PF = 28
P = dict(q=32, k=34, v=36, shift_k=38, ssm_k=40, ssm_D=42, u=44, A_re=46, A_im=48,
         B_re=50, B_im=52, C_re=54, C_im=56, log_dt=58, Dskip=60, out=62)


def mk_srd(a, d, p, nbytes):
    a(f"s_mov_b32 s{d}, s{p}")
    a(f"s_mov_b32 s{d + 1}, s{p + 1}")
    a(f"s_mov_b32 s{d + 2}, {nbytes}")
    a(f"s_mov_b32 s{d + 3}, 0x00020000")


def conv_pass(a, Es, Fbase, acc, Gbuf, nG, vFaddr, vGaddr, first_touch):
    maxD = 7 - min(Es)
    steps = []
    for D in range(maxD + 1):
        for eps in range(8):
            f = 8 * D - eps
            mm = [(idx, E) for idx, E in enumerate(Es) if E + D <= 7]
            steps.append((D, eps, f, mm))

    def issue_G(si):
        D, eps, f, mm = steps[si]
        g = Gbuf + 4 * (si % nG)
        a.lds(f"ds_read_b128 {vr(g, 4)}, v{vGaddr} offset:{64 * (56 - f)}", ("G", si))

    def issue_F(idx, E, eps):
        e = 8 * E + eps
        r = Fbase + 32 * idx + 4 * eps
        b, eo = e // 16, e % 16
        a.lds(f"ds_read2_b32 {vr(r, 2)}, v{vFaddr + b} offset0:{16 * eo} offset1:{16 * eo + 1}", None)
        a.lds(f"ds_read2_b32 {vr(r + 2, 2)}, v{vFaddr + b} offset0:{16 * eo + 2} offset1:{16 * eo + 3}", ("F", idx, eps))

    LA = nG - 1
    issued_G = 0
    issue_G(0); issued_G = 1
    for idx, E in enumerate(Es):
        issue_F(idx, E, 0)
    for si, (D, eps, f, mm) in enumerate(steps):
        if D == 0 and eps + 1 < 8:
            if issued_G <= si + 1:
                issue_G(issued_G); issued_G += 1
            for idx, E in enumerate(Es):
                issue_F(idx, E, eps + 1)
        else:
            while issued_G < len(steps) and issued_G <= si + LA:
                issue_G(issued_G); issued_G += 1
        g = Gbuf + 4 * (si % nG)
        a.lds_need(("G", si))
        for idx, E in mm:
            if D == 0:
                a.lds_need(("F", idx, eps))
            p = E + D
            r = Fbase + 32 * idx + 4 * eps
            c = vr(acc + 4 * p, 4)
            if p in first_touch:
                first_touch.discard(p)
                a(f"v_mfma_f32_16x16x32_bf16 {c}, {vr(r, 4)}, {vr(g, 4)}, 0")
            else:
                a(f"v_mfma_f32_16x16x32_bf16 {c}, {vr(r, 4)}, {vr(g, 4)}, {c}")


def conv_addrs(a, vlane, vFaddr, vGaddr, vt, sKC, sXR):
    a(f"v_and_b32 v{vt}, 15, v{vlane}")
    a(f"v_lshrrev_b32 v{vt + 1}, 4, v{vlane}")
    a(f"v_add_u32 v{vt + 2}, 1, v{vt}")
    a(f"v_lshrrev_b32 v{vt + 2}, 1, v{vt + 2}")
    a(f"v_lshl_add_u32 v{vt + 2}, v{vt + 1}, 2, v{vt + 2}")
    a(f"v_lshlrev_b32 v{vt + 2}, 2, v{vt + 2}")
    a(f"v_and_b32 v{vt + 3}, 1, v{vt}")
    a(f"v_xor_b32 v{vt + 3}, 1, v{vt + 3}")
    a(f"v_mul_u32_u24 v{vt + 3}, {COFF}, v{vt + 3}")
    a(f"v_add3_u32 v{vFaddr}, v{vt + 2}, v{vt + 3}, s{sKC}")
    for b in range(1, 4):
        a(f"v_add_u32 v{vFaddr + b}, {1024 * b}, v{vFaddr}")
    a(f"v_lshlrev_b32 v{vt + 2}, 5, v{vt}")
    a(f"v_lshlrev_b32 v{vt + 3}, 4, v{vt + 1}")
    a(f"v_sub_u32 v{vt + 3}, v{vt + 3}, v{vt + 2}")
    a(f"v_add_u32 v{vt + 3}, 480, v{vt + 3}")
    a(f"v_add_u32 v{vGaddr}, s{sXR}, v{vt + 3}")


def gen():
    a = Asm()
    a.dbgt_begin()
    a(f"s_load_dwordx16 s[32:47], s[0:1], 0")
    a(f"s_load_dwordx16 s[48:63], s[0:1], 64")
    if DIAG:
        a("s_load_dwordx2 s[100:101], s[0:1], 136")
    a("s_and_b32 s5, s2, 7")
    a("s_lshr_b32 s6, s2, 3")
    a("v_lshrrev_b32 v2, 6, v0")
    a("v_and_b32 v1, 63, v0")
    a("s_cmp_lt_u32 s5, 4")
    a("s_cselect_b32 s7, 3, 2")
    a(f"v_readfirstlane_b32 s{S_W}, v2")
    a("s_mul_i32 s64, s5, 3")
    a("s_lshl_b32 s65, s5, 1")
    a("s_add_u32 s66, s65, 4")
    a("s_cmp_lt_u32 s5, 4")
    a("s_cselect_b32 s66, s64, s66")
    a("s_sub_u32 s67, s64, 4")
    a("s_cmp_lt_u32 s5, 4")
    a("s_cselect_b32 s67, s65, s67")
    a("s_lshl_b32 s68, s7, 2")
    a("s_sub_u32 s69, 5, s7")
    a("s_lshl_b32 s70, s69, 3")
    a("s_add_u32 s70, s70, s68")
    a("s_cmp_ge_u32 s6, s70")
    a("s_cbranch_scc1 L_end")
    a("s_waitcnt lgkmcnt(0)")
    a.stamp(0)
    if PREFETCH:
        a("s_mul_i32 s71, s7, 3")
        a("s_add_u32 s72, s71, s69")
        a("s_cmp_eq_u32 s72, 11")
        a("s_movk_i32 s73, 7282")
        a("s_cselect_b32 s73, 5958, s73")
        a("s_lshl_b32 s74, s6, 3")
        a(f"s_add_u32 s74, s74, s{S_W}")
        a("s_lshl_b32 s75, s70, 3")
        a("s_lshl_b32 s76, s72, 5")
        a("v_mul_u32_u24 v3, 1280, v1")
        a(f"s_mov_b32 s{SRD_PF + 2}, 2621440")
        a(f"s_mov_b32 s{SRD_PF + 3}, 0x00020000")
        for it in range(2):
            if it == 1:
                a("s_add_u32 s74, s74, s75")
                a("s_cmp_ge_u32 s74, s76")
                a("s_cbranch_scc1 L_pf_done")
            a("s_mul_i32 s77, s74, s73")
            a("s_lshr_b32 s77, s77, 16")
            a("s_mul_i32 s78, s77, s72")
            a("s_sub_u32 s78, s74, s78")
            a("s_mul_i32 s79, s78, 43")
            a("s_lshr_b32 s79, s79, 7")
            a("s_mul_i32 s80, s79, 3")
            a("s_sub_u32 s80, s78, s80")
            a("s_add_u32 s79, s79, s66")
            a("s_cmp_eq_u32 s80, 0")
            a(f"s_cselect_b32 s{SRD_PF}, s{P['k']}, s{P['v']}")
            a(f"s_cselect_b32 s{SRD_PF + 1}, s{P['k'] + 1}, s{P['v'] + 1}")
            a("s_cmp_eq_u32 s80, 2")
            a(f"s_cselect_b32 s{SRD_PF}, s{P['q']}, s{SRD_PF}")
            a(f"s_cselect_b32 s{SRD_PF + 1}, s{P['q'] + 1}, s{SRD_PF + 1}")
            a("s_sub_u32 s81, s78, s71")
            a("s_add_u32 s81, s81, s67")
            a("s_cmp_ge_u32 s78, s71")
            a(f"s_cselect_b32 s{SRD_PF}, s{P['u']}, s{SRD_PF}")
            a(f"s_cselect_b32 s{SRD_PF + 1}, s{P['u'] + 1}, s{SRD_PF + 1}")
            a("s_cselect_b32 s79, s81, s79")
            a("s_lshl_b32 s79, s79, 6")
            a("s_mul_i32 s77, s77, 81920")
            a("s_add_u32 s77, s77, s79")
            a(f"buffer_load_dword v{4 + it}, v3, s[{SRD_PF}:{SRD_PF + 3}], s77 offen")
        a.label("L_pf_done")
    a("s_cmp_ge_u32 s6, s68")
    a("s_cbranch_scc1 L_B")

    a.vm_q = []
    a("s_lshr_b32 s71, s6, 2")
    a("s_add_u32 s71, s71, s66")
    a("s_and_b32 s72, s6, 3")
    a("s_lshl_b32 s71, s71, 5")
    a("s_lshl_b32 s72, s72, 3")
    a(f"s_add_u32 s{S_CH0}, s71, s72")
    mk_srd(a, SRD_K, P['k'], 2621440)
    mk_srd(a, SRD_V, P['v'], 2621440)
    mk_srd(a, SRD_Q, P['q'], 2621440)
    mk_srd(a, SRD_SK, P['ssm_k'], 2621440)
    mk_srd(a, SRD_O, P['out'], 5242880)
    a(f"s_lshl_b32 s5, s{S_CH0}, 3")
    a(f"s_lshl_b32 s6, s{S_CH0}, 1")
    a(f"s_load_dwordx16 s[64:79], s[{P['shift_k']}:{P['shift_k'] + 1}], s5")
    a(f"s_load_dwordx4 s[80:83], s[{P['ssm_D']}:{P['ssm_D'] + 1}], s6")
    a(f"s_add_u32 s7, s{S_CH0}, s{S_W}")
    a("s_lshl_b32 s7, s7, 12")
    a("v_lshlrev_b32 v2, 4, v1")
    for j in range(4):
        a.vm(f"buffer_load_dwordx4 {vr(128 + 4 * j, 4)}, v2, s[{SRD_SK}:{SRD_SK + 3}], s7 offen offset:{1024 * j}", "K")
    for j in range(4):
        a.vm(f"buffer_load_dwordx4 {vr(144 + 4 * j, 4)}, v2, s[{SRD_SK}:{SRD_SK + 3}], s7 offen offset:{1024 * j + 4}", "K")
    a(f"s_mul_i32 s7, s{S_W}, {256 * 1280}")
    a("s_add_u32 s7, s7, s6")
    a("v_mul_u32_u24 v3, 5120, v1")
    a("v_add_u32 v3, s7, v3")
    a("s_sub_u32 s5, s7, 3840")
    a("v_mov_b32 v6, s5")
    KR = 160
    VR = 188
    for j in range(3):
        a.vm(f"buffer_load_dwordx4 {vr(KR + 4 * j, 4)}, v6, s[{SRD_K}:{SRD_K + 3}], 0 offen offset:{1280 * j}", "x")
    for j in range(4):
        a.vm(f"buffer_load_dwordx4 {vr(KR + 12 + 4 * j, 4)}, v3, s[{SRD_K}:{SRD_K + 3}], 0 offen offset:{1280 * j}", "x")
    for j in range(4):
        a.vm(f"buffer_load_dwordx4 {vr(VR + 4 * j, 4)}, v3, s[{SRD_V}:{SRD_V + 3}], 0 offen offset:{1280 * j}", "x")
    a(f"s_mul_i32 s84, s{S_W}, {KSTR}")
    a(f"s_mul_i32 s85, s{S_W}, {XSTR}")
    a(f"s_add_u32 s85, s85, {A_XR}")
    a("v_mov_b32 v8, 0")
    a("v_mov_b32 v9, 0")
    a("v_lshlrev_b32 v7, 3, v1")
    a("v_add_u32 v7, s85, v7")
    a("ds_write_b64 v7, v[8:9] offset:4096")
    a("s_waitcnt lgkmcnt(0)")
    for d in range(8):
        for h in range(2):
            src = 64 + 2 * d + h
            a(f"s_lshl_b32 s{32 + 4 * d + 2 * h}, s{src}, 16")
            a(f"s_and_b32 s{32 + 4 * d + 2 * h + 1}, s{src}, 0xffff0000")
    for h in range(4):
        a(f"s_lshl_b32 s{88 + 2 * h}, s{80 + h}, 16")
        a(f"s_and_b32 s{88 + 2 * h + 1}, s{80 + h}, 0xffff0000")
    a.stamp(1)
    a.vm_need("K")
    a.stamp(2)
    a("v_add_u32 v7, s84, v2")
    for j in range(4):
        a(f"ds_write_b128 v7, {vr(128 + 4 * j, 4)} offset:{32 + 1024 * j}")
    a("v_readlane_b32 s5, v128, 0")
    for j in range(4):
        for x in range(4):
            a(f"v_alignbit_b32 v{144 + 4 * j + x}, v{144 + 4 * j + x}, v{128 + 4 * j + x}, 16")
    a("s_lshl_b32 s5, s5, 16")
    for j in range(4):
        a(f"ds_write_b128 v7, {vr(144 + 4 * j, 4)} offset:{COFF + 32 + 1024 * j}")
    a("v_writelane_b32 v9, s5, 7")
    a("v_lshlrev_b32 v7, 2, v1")
    a("v_add_u32 v7, s84, v7")
    a("v_cmp_gt_u32 vcc, 8, v1")
    a("s_and_saveexec_b64 s[86:87], vcc")
    a("ds_write_b32 v7, v8")
    a(f"ds_write_b32 v7, v9 offset:{COFF}")
    a("s_mov_b64 exec, s[86:87]")
    a.stamp(3)
    a.vm_need("x")
    a.stamp(4)
    for j in range(3):
        for c in range(4):
            a(f"v_mov_b32_dpp v{KR + 4 * j + c}, v{KR + 12 + 4 * (j + 1) + c} wave_shr:1 row_mask:0xf bank_mask:0xf")
    a(f"s_lshl_b32 s5, s{S_W}, 9")
    a(f"s_sub_u32 s5, {A_XR + 4088}, s5")
    a("v_lshlrev_b32 v7, 3, v1")
    a("v_sub_u32 v7, s5, v7")
    KV = 64
    T = 16
    for c in range(4):
        for hh in range(2):
            d = 2 * c + hh
            for r in range(7):
                if hh == 0:
                    a(f"v_lshlrev_b32 v{T + r}, 16, v{KR + 4 * r + c}")
                else:
                    a(f"v_and_b32 v{T + r}, 0xffff0000, v{KR + 4 * r + c}")
            for r in range(4):
                if hh == 0:
                    a(f"v_lshlrev_b32 v{T + 8 + r}, 16, v{VR + 4 * r + c}")
                else:
                    a(f"v_and_b32 v{T + 8 + r}, 0xffff0000, v{VR + 4 * r + c}")
            for r in range(4):
                a(f"v_mul_f32 v{T + 12 + r}, s{32 + 4 * d + 3}, v{T + r}")
            for jj in (2, 1, 0):
                for r in range(4):
                    a(f"v_fmac_f32 v{T + 12 + r}, s{32 + 4 * d + jj}, v{T + 3 + r - jj}")
            for r in range(4):
                a(f"v_mul_f32 v{T + 12 + r}, v{T + 12 + r}, v{T + 8 + r}")
            a(f"v_cvt_pk_bf16_f32 v{KV + 2 * d}, v{T + 15}, v{T + 14}")
            a(f"v_cvt_pk_bf16_f32 v{KV + 2 * d + 1}, v{T + 13}, v{T + 12}")
            a(f"ds_write_b64 v7, {vr(KV + 2 * d, 2)} offset:{XSTR * d}")
    QR = 48
    for j in range(4):
        a.vm(f"buffer_load_dwordx4 {vr(QR + 4 * j, 4)}, v3, s[{SRD_Q}:{SRD_Q + 3}], 0 offen offset:{1280 * j}", "q")
    conv_addrs(a, 1, 8, 12, T, 84, 85)
    a("s_waitcnt lgkmcnt(0)")
    a.stamp(5)
    a("s_barrier")
    a.stamp(6)
    a.lds_q = []
    ACC = 96
    ft = set(range(8))
    conv_pass(a, [4, 5, 6, 7], 128, ACC, 80, 4, 8, 12, ft)
    a.stamp(7)
    conv_pass(a, [0, 1, 2, 3], 128, ACC, 80, 4, 8, 12, ft)
    a.stamp(8)
    a(f"s_lshl_b32 s5, s{S_W}, 12")
    a(f"s_add_u32 s5, s5, {A_S}")
    a("v_lshlrev_b32 v7, 3, v1")
    a("v_add_u32 v7, s5, v7")
    a("s_nop 7")
    for p in range(8):
        a(f"v_cvt_pk_bf16_f32 v{T + 2 * p}, v{ACC + 4 * p}, v{ACC + 4 * p + 1}")
        a(f"v_cvt_pk_bf16_f32 v{T + 2 * p + 1}, v{ACC + 4 * p + 2}, v{ACC + 4 * p + 3}")
        a(f"ds_write_b64 v7, {vr(T + 2 * p, 2)} offset:{512 * p}")
    a("v_and_b32 v8, 3, v1")
    a("v_lshrrev_b32 v9, 2, v1")
    a("v_lshl_add_u32 v8, v8, 4, v9")
    a("v_lshlrev_b32 v8, 3, v8")
    a(f"s_lshl_b32 s5, s{S_W}, 9")
    a(f"s_add_u32 s5, s5, {A_S}")
    a("v_add_u32 v8, s5, v8")
    a("s_waitcnt lgkmcnt(0)")
    a("s_barrier")
    a.stamp(9)
    Y = 128
    for d in range(8):
        a(f"ds_read_b64 {vr(Y + 2 * d, 2)}, v8 offset:{4096 * d}")
    a("v_lshlrev_b32 v9, 1, v3")
    a("v_subrev_u32 v9, s6, v9")
    a.vm_need("q")
    a("s_waitcnt lgkmcnt(0)")
    a.stamp(10)
    O = 160
    for d in range(8):
        c, hh = d // 2, d % 2
        a(f"v_lshlrev_b32 v{T}, 16, v{Y + 2 * d}")
        a(f"v_and_b32 v{T + 1}, 0xffff0000, v{Y + 2 * d}")
        a(f"v_lshlrev_b32 v{T + 2}, 16, v{Y + 2 * d + 1}")
        a(f"v_and_b32 v{T + 3}, 0xffff0000, v{Y + 2 * d + 1}")
        a(f"v_and_b32 v{T + 4}, 0xffff0000, v{KV + 2 * d + 1}")
        a(f"v_lshlrev_b32 v{T + 5}, 16, v{KV + 2 * d + 1}")
        a(f"v_and_b32 v{T + 6}, 0xffff0000, v{KV + 2 * d}")
        a(f"v_lshlrev_b32 v{T + 7}, 16, v{KV + 2 * d}")
        for r in range(4):
            a(f"v_fmac_f32 v{T + r}, s{88 + d}, v{T + 4 + r}")
        for r in range(4):
            if hh == 0:
                a(f"v_lshlrev_b32 v{T + 4 + r}, 16, v{QR + 4 * r + c}")
            else:
                a(f"v_and_b32 v{T + 4 + r}, 0xffff0000, v{QR + 4 * r + c}")
        for r in range(4):
            a(f"v_mul_f32 v{O + 8 * r + d}, v{T + r}, v{T + 4 + r}")
    for r in range(4):
        for c in range(4):
            a(f"v_cvt_pk_bf16_f32 v{Y + 4 * r + c}, v{O + 8 * r + 2 * c}, v{O + 8 * r + 2 * c + 1}")
        if r == 0:
            a(f"buffer_store_dwordx4 {vr(Y, 4)}, v9, s[{SRD_O}:{SRD_O + 3}], 0 offen")
        elif r == 1:
            a(f"buffer_store_dwordx4 {vr(Y + 4, 4)}, v9, s[{SRD_O}:{SRD_O + 3}], 0 offen offset:2560")
        else:
            if r == 2:
                a("v_add_u32 v9, 5120, v9")
            a(f"buffer_store_dwordx4 {vr(Y + 4 * r, 4)}, v9, s[{SRD_O}:{SRD_O + 3}], 0 offen offset:{2560 * (r - 2)}")
    a.stamp(11)
    if DIAG:
        a("s_waitcnt vmcnt(0)")
    a.stamp(12)
    a.stamp_out()
    a.dbgt_end()
    a("s_endpgm")

    a.label("L_B")
    a.vm_q = []
    a.lds_q = []
    a("s_sub_u32 s6, s6, s68")
    a("s_lshr_b32 s71, s6, 3")
    a("s_add_u32 s71, s71, s67")
    a("s_and_b32 s72, s6, 7")
    a("s_lshl_b32 s71, s71, 5")
    a("s_lshl_b32 s72, s72, 2")
    a(f"s_add_u32 s{S_CH0}, s71, s72")
    mk_srd(a, SRD_K, P['u'], 2621440)
    mk_srd(a, SRD_O, P['out'], 5242880)
    a(f"s_lshl_b32 s6, s{S_CH0}, 1")
    a(f"s_load_dwordx2 s[80:81], s[{P['log_dt']}:{P['log_dt'] + 1}], s6")
    a(f"s_load_dwordx2 s[82:83], s[{P['Dskip']}:{P['Dskip'] + 1}], s6")
    a(f"s_lshr_b32 s64, s{S_W}, 1")
    a(f"s_and_b32 s65, s{S_W}, 1")
    a(f"s_add_u32 s5, s{S_CH0}, s64")
    a("s_lshl_b32 s5, s5, 8")
    a("s_lshl_b32 s7, s65, 7")
    a("s_add_u32 s5, s5, s7")
    a("v_lshlrev_b32 v2, 1, v1")
    a("v_add_u32 v2, s5, v2")
    PR = 16
    names = ["A_re", "A_im", "B_re", "B_im", "C_re", "C_im"]
    for i, nm in enumerate(names):
        a.vm(f"global_load_ushort v{PR + i}, v2, s[{P[nm]}:{P[nm] + 1}]", "par")
    a(f"s_mul_i32 s7, s{S_W}, {256 * 1280}")
    a("s_add_u32 s7, s7, s6")
    a("v_mul_u32_u24 v3, 5120, v1")
    a("v_add_u32 v3, s7, v3")
    UR = 40
    for j in range(4):
        a.vm(f"buffer_load_dwordx2 {vr(UR + 2 * j, 2)}, v3, s[{SRD_K}:{SRD_K + 3}], 0 offen offset:{1280 * j}", "u")
    a(f"s_mul_i32 s84, s64, {KSTR}")
    a(f"s_mul_i32 s85, s64, {XSTR}")
    a(f"s_add_u32 s85, s85, {B_XR}")
    a(f"s_mul_i32 s86, s{S_W}, 9216")
    a(f"s_add_u32 s86, s86, {B_ST}")
    a(f"s_mul_i32 s87, s64, 6144")
    a(f"s_add_u32 s87, s87, {B_TAB}")
    a("v_mov_b32 v8, 0")
    a("v_mov_b32 v9, 0")
    a("v_lshlrev_b32 v7, 3, v1")
    a("v_add_u32 v7, s85, v7")
    a("ds_write_b64 v7, v[8:9] offset:4096")
    a("s_waitcnt lgkmcnt(0)")
    a("s_lshr_b32 s5, s64, 1")
    a("s_cmp_eq_u32 s5, 0")
    a("s_cselect_b32 s66, s80, s81")
    a("s_and_b32 s5, s64, 1")
    a("s_lshl_b32 s67, s66, 16")
    a("s_and_b32 s66, s66, 0xffff0000")
    a("s_cmp_eq_u32 s5, 0")
    a("s_cselect_b32 s66, s67, s66")
    for h in range(2):
        a(f"s_lshl_b32 s{88 + 2 * h}, s{82 + h}, 16")
        a(f"s_and_b32 s{88 + 2 * h + 1}, s{82 + h}, 0xffff0000")
    L2E = 1.4426950408889634
    L2E_hi = struct.unpack("<f", struct.pack("<f", L2E))[0]
    L2E_lo = L2E - L2E_hi
    a(f"s_mov_b32 s68, {f32bits(L2E_hi):#x}")
    a(f"s_mov_b32 s69, {f32bits(L2E_lo):#x}")
    a(f"s_mov_b32 s70, {f32bits(0.6931471805599453):#x}")
    a("v_mov_b32 v10, s66")
    a("v_mul_f32 v11, s68, v10")
    a("v_fma_f32 v12, v10, s68, -v11")
    a("v_fmac_f32 v12, s69, v10")
    a("v_exp_f32 v13, v11")
    a("v_mul_f32 v12, s70, v12")
    a("s_nop 0")
    a("v_fma_f32 v13, v13, v12, v13")
    a("v_cvt_pk_bf16_f32 v13, v13, v13")
    a("v_lshlrev_b32 v13, 16, v13")
    a.stamp(1)
    a.vm_need("par")
    a.stamp(2)
    for i in range(6):
        a(f"v_lshlrev_b32 v{PR + i}, 16, v{PR + i}")
    for i in range(4):
        a(f"v_mul_f32 v{PR + i}, v13, v{PR + i}")

    def cmul(d, x, y):
        a(f"v_pk_mul_f32 {vr(14, 2)}, {vr(x, 2)}, {vr(y, 2)} op_sel:[0,0] op_sel_hi:[1,0]")
        a(f"v_pk_fma_f32 {vr(d, 2)}, {vr(x, 2)}, {vr(y, 2)}, {vr(14, 2)} op_sel:[1,1,0] op_sel_hi:[0,1,1] neg_lo:[1,0,0]")

    I2P = 0.15915494309189535
    I2P_hi = struct.unpack("<f", struct.pack("<f", I2P))[0]
    I2P_lo = I2P - I2P_hi
    a(f"s_mov_b32 s71, {f32bits(I2P_hi):#x}")
    a(f"s_mov_b32 s72, {f32bits(I2P_lo):#x}")

    def anchor(d, lam, conj=False):
        t = 10
        a(f"s_mov_b32 s73, {f32bits(float(lam)):#x}")
        a(f"v_mul_f32 v{t}, s73, v{PR}")
        a(f"v_mul_f32 v{t + 1}, s73, v{PR + 1}")
        a(f"v_mul_f32 v{t}, s68, v{t}")
        a(f"v_mul_f32 v{t + 2}, s71, v{t + 1}")
        a(f"v_exp_f32 v{t}, v{t}")
        a(f"v_fma_f32 v{t + 3}, v{t + 1}, s71, -v{t + 2}")
        a(f"v_fmac_f32 v{t + 3}, s72, v{t + 1}")
        a(f"v_fract_f32 v{t + 2}, v{t + 2}")
        a(f"v_add_f32 v{t + 2}, v{t + 2}, v{t + 3}")
        a(f"v_cos_f32 v{t + 1}, v{t + 2}")
        a(f"v_sin_f32 v{t + 3}, v{t + 2}")
        a("s_nop 0")
        a(f"v_mul_f32 v{d}, v{t}, v{t + 1}")
        if conj:
            a(f"v_mul_f32 v{d + 1}, -v{t}, v{t + 3}" if False else f"v_mul_f32_e64 v{d + 1}, -v{t}, v{t + 3}")
        else:
            a(f"v_mul_f32 v{d + 1}, v{t}, v{t + 3}")

    a("v_lshlrev_b32 v4, 2, v1")
    a("v_add_u32 v4, s86, v4")
    a("v_and_b32 v5, 15, v1")
    a("v_mul_u32_u24 v5, 288, v5")
    a("v_lshrrev_b32 v6, 4, v1")
    a("v_lshl_add_u32 v5, v6, 4, v5")
    a("v_add_u32 v5, s86, v5")

    def put(x, row):
        a(f"v_cvt_pk_bf16_f32 v10, v{x}, v{x + 1}")
        a("v_lshlrev_b32 v12, 16, v10")
        a("v_and_b32 v13, 0xffff0000, v10")
        a(f"ds_write_b32 v4, v10 offset:{288 * row}")
        a(f"v_pk_add_f32 v[12:13], {vr(x, 2)}, v[12:13] neg_lo:[0,1] neg_hi:[0,1]")
        a("v_cvt_pk_bf16_f32 v11, v12, v13")
        a(f"ds_write_b32 v4, v11 offset:{4608 + 288 * row}")

    Z8, Z64, ZC = 22, 24, 26
    ZE = 48
    CT = 28
    Z128, Z1024 = 30, 32
    HH = 34
    TMP = 36
    E2F = 64
    E1F = 96
    KD = 128
    anchor(Z8, 8, conj=True)
    anchor(Z64, 64, conj=True)
    a(f"v_mov_b32 v{ZC}, 1.0")
    a(f"v_mov_b32 v{ZC + 1}, 0")
    put(ZC, 0)
    put(Z8, 1)
    cur = Z8
    for r in range(2, 16):
        if r == 8:
            put(Z64, 8)
            cur = Z64
            continue
        dst = ZC if cur != ZC else TMP
        cmul(dst, cur, Z8)
        put(dst, r)
        cur = dst
    a("s_waitcnt lgkmcnt(0)")
    for ks in range(4):
        a(f"ds_read_b128 {vr(E2F + 4 * ks, 4)}, v5 offset:{64 * ks}")
        a(f"ds_read_b128 {vr(E2F + 16 + 4 * ks, 4)}, v5 offset:{4608 + 64 * ks}")
    anchor(ZE + 2, 1)
    cmul(ZE + 4, ZE + 2, ZE + 2)
    cmul(ZE + 6, ZE + 4, ZE + 2)
    cmul(ZE + 8, ZE + 4, ZE + 4)
    cmul(ZE + 10, ZE + 8, ZE + 2)
    cmul(ZE + 12, ZE + 8, ZE + 4)
    cmul(ZE + 14, ZE + 8, ZE + 6)
    cmul(CT, PR + 4, PR + 2)
    anchor(Z128, 128)
    anchor(Z1024, 1024)
    a("s_waitcnt lgkmcnt(0)")

    def mfma_tile(m):
        a("s_waitcnt lgkmcnt(0)")
        for ks in range(4):
            a(f"ds_read_b128 {vr(E1F + 4 * ks, 4)}, v5 offset:{64 * ks}")
            a(f"ds_read_b128 {vr(E1F + 16 + 4 * ks, 4)}, v5 offset:{4608 + 64 * ks}")
        a("s_waitcnt lgkmcnt(0)")
        c = vr(KD + 4 * m, 4)
        first = True
        for ks in range(4):
            for (x, y) in ((16, 0), (0, 16), (0, 0)):
                src = "0" if first else c
                first = False
                a(f"v_mfma_f32_16x16x32_bf16 {c}, {vr(E1F + x + 4 * ks, 4)}, {vr(E2F + y + 4 * ks, 4)}, {src}")

    HA, HB = HH, 38
    state = {"cur": CT, "h": 0}

    def next_H():
        h = state["h"] + 1
        dst = HA if state["cur"] != HA else HB
        if h == 8:
            cmul(dst, CT, Z1024)
        else:
            cmul(dst, state["cur"], Z128)
        state["cur"] = dst
        state["h"] = h
        return dst

    for h in range(2):
        H = state["cur"] if h == 0 else next_H()
        put(H, 8 * h)
        for eps in range(1, 8):
            cmul(TMP, H, ZE + 2 * eps)
            put(TMP, 8 * h + eps)
    mfma_tile(0)
    for hp in range(2):
        H = next_H()
        put(H, 4 * hp)
        for ep in range(1, 4):
            cmul(TMP, H, ZE + 4 * ep)
            put(TMP, 4 * hp + ep)
    for hp in range(4):
        H = next_H()
        put(H, 8 + 2 * hp)
        cmul(TMP, H, ZE + 8)
        put(TMP, 8 + 2 * hp + 1)
    mfma_tile(1)
    for hp in range(9):
        H = next_H()
        put(H, hp)
    mfma_tile(2)
    a.stamp(3)
    a("v_and_b32 v10, 15, v1")
    a("v_lshrrev_b32 v11, 4, v1")
    a("s_lshl_b32 s5, s65, 2")
    a("s_add_u32 s5, s5, s87")
    a("v_lshrrev_b32 v12, 1, v11")
    a("v_lshlrev_b32 v12, 7, v12")
    a("v_and_b32 v13, 1, v11")
    a("v_lshl_add_u32 v12, v13, 2, v12")
    a("v_lshl_add_u32 v12, v10, 3, v12")
    a("v_lshl_add_u32 v12, v12, 3, s5")
    a("v_lshlrev_b32 v13, 6, v11")
    a("v_add_u32 v13, 256, v13")
    a("v_cmp_gt_u32 vcc, 2, v11")
    a("v_lshlrev_b32 v14, 2, v10")
    a("v_lshlrev_b32 v15, 1, v10")
    a("v_cndmask_b32 v14, v15, v14, vcc")
    a("v_add_u32 v13, v13, v14")
    a("v_lshl_add_u32 v13, v13, 3, s5")
    a("v_mov_b32 v14, 256")
    a("v_cndmask_b32 v14, v14, 16, vcc" if False else "v_cndmask_b32_e64 v14, v14, 16, vcc")
    a("v_add_u32 v14, v13, v14")
    a("v_lshl_add_u32 v15, v11, 6, v10")
    a("v_add_u32 v15, 512, v15")
    a("v_lshl_add_u32 v15, v15, 3, s5")
    a("s_nop 7")
    for j in range(4):
        a(f"ds_write_b32 v12, v{KD + j} offset:{8 * j}")
    a(f"ds_write_b32 v13, v{KD + 4}")
    a(f"ds_write_b32 v13, v{KD + 5} offset:8")
    a(f"ds_write_b32 v14, v{KD + 6}")
    a(f"ds_write_b32 v14, v{KD + 7} offset:8")
    for j in range(4):
        a(f"ds_write_b32 v15, v{KD + 8 + j} offset:{128 * j}")
    a.stamp(4)
    a.vm_need("u")
    a.stamp(5)
    UK = 32
    a("s_mov_b32 s71, 0x05040100")
    a("s_mov_b32 s72, 0x07060302")
    a(f"s_lshl_b32 s5, s{S_W}, 9")
    a(f"s_sub_u32 s5, {B_XR + 4088}, s5")
    a("v_lshlrev_b32 v7, 3, v1")
    a("v_sub_u32 v7, s5, v7")
    for d in range(4):
        c, hh = d // 2, d % 2
        sel = "s71" if hh == 0 else "s72"
        a(f"v_perm_b32 v{UK + 2 * d}, v{UR + 2 * 2 + c}, v{UR + 2 * 3 + c}, {sel}")
        a(f"v_perm_b32 v{UK + 2 * d + 1}, v{UR + 2 * 0 + c}, v{UR + 2 * 1 + c}, {sel}")
        a(f"ds_write_b64 v7, {vr(UK + 2 * d, 2)} offset:{XSTR * d}")
    a("s_waitcnt lgkmcnt(0)")
    a("s_barrier")
    a.stamp(6)
    GV = 48
    for rd in range(2):
        a("s_lshl_b32 s5, s65, 10")
        a(f"s_add_u32 s5, s5, {512 * rd}")
        a("v_lshlrev_b32 v10, 3, v1")
        a("v_add_u32 v10, s5, v10")
        for x in range(9):
            a(f"v_add_u32 v11, {x}, v10")
            a("v_cvt_f32_u32 v12, v11")
            a("v_cvt_pk_bf16_f32 v12, v12, v12")
            a("v_and_b32 v12, 0xffff, v12")
            a("v_subrev_u32 v12, 17024, v12")
            a("v_cmp_gt_u32 vcc, 128, v11")
            a("s_nop 1")
            a("v_cndmask_b32 v12, v12, v11, vcc")
            a("v_lshl_add_u32 v12, v12, 3, s87")
            a(f"ds_read_b64 {vr(GV + 2 * x, 2)}, v12")
        a("s_waitcnt lgkmcnt(0)")
        for x in range(9):
            a(f"v_add_f32 v{GV + 2 * x}, v{GV + 2 * x}, v{GV + 2 * x + 1}")
        for x in range(4):
            a(f"v_cvt_pk_bf16_f32 v{16 + x}, v{GV + 4 * x}, v{GV + 4 * x + 2}")
            a(f"v_cvt_pk_bf16_f32 v{20 + x}, v{GV + 4 * x + 2}, v{GV + 4 * x + 4}")
        a("v_lshlrev_b32 v11, 1, v10")
        a("v_add_u32 v11, s84, v11")
        a("ds_write_b128 v11, v[16:19] offset:32")
        a(f"ds_write_b128 v11, v[20:23] offset:{COFF + 32}")
        if rd == 0:
            a("s_cmp_lg_u32 s65, 0")
            a("s_cbranch_scc1 L_B_nopad")
            a("v_readlane_b32 s5, v16, 0")
            a("s_lshl_b32 s5, s5, 16")
            a("v_mov_b32 v8, 0")
            a("v_mov_b32 v9, 0")
            a("v_writelane_b32 v9, s5, 7")
            a("v_lshlrev_b32 v7, 2, v1")
            a("v_add_u32 v7, s84, v7")
            a("v_cmp_gt_u32 vcc, 8, v1")
            a("s_and_saveexec_b64 s[74:75], vcc")
            a("ds_write_b32 v7, v8")
            a(f"ds_write_b32 v7, v9 offset:{COFF}")
            a("s_mov_b64 exec, s[74:75]")
            a.label("L_B_nopad")
    conv_addrs(a, 1, 8, 12, 16, 84, 85)
    a("s_waitcnt lgkmcnt(0)")
    a.stamp(7)
    a("s_barrier")
    a.stamp(8)
    ACCB = 64
    a("s_lshl_b32 s5, s64, 13")
    a(f"s_add_u32 s5, s5, {B_ST}")
    a("v_lshlrev_b32 v13, 4, v1")
    a("v_add_u32 v13, s5, v13")
    a("s_cmp_lg_u32 s65, 0")
    a("s_cbranch_scc1 L_B_h1")
    a.lds_q = []
    ft = set(range(8))
    conv_pass(a, [0, 1, 5], 96, ACCB, 48, 4, 8, 12, ft)
    a.stamp(9)
    a("s_barrier")
    for p in range(2, 8):
        a(f"ds_read_b128 {vr(96 + 4 * p, 4)}, v13 offset:{1024 * p}")
    a("s_waitcnt lgkmcnt(0)")
    for p in range(2, 8):
        for x in range(4):
            a(f"v_add_f32 v{ACCB + 4 * p + x}, v{ACCB + 4 * p + x}, v{96 + 4 * p + x}")
    a("s_lshl_b32 s5, s64, 12")
    a(f"s_add_u32 s5, s5, {B_S}")
    a("v_lshlrev_b32 v7, 3, v1")
    a("v_add_u32 v7, s5, v7")
    for p in range(8):
        a(f"v_cvt_pk_bf16_f32 v{16 + 2 * p}, v{ACCB + 4 * p}, v{ACCB + 4 * p + 1}")
        a(f"v_cvt_pk_bf16_f32 v{16 + 2 * p + 1}, v{ACCB + 4 * p + 2}, v{ACCB + 4 * p + 3}")
        a(f"ds_write_b64 v7, {vr(16 + 2 * p, 2)} offset:{512 * p}")
    a("s_branch L_B_fin")
    a.label("L_B_h1")
    a.lds_q = []
    ft = set(range(8))
    conv_pass(a, [2, 3, 4, 6, 7], 96, ACCB, 48, 4, 8, 12, ft)
    a.stamp(9)
    a("s_nop 7")
    for p in range(2, 8):
        a(f"ds_write_b128 v13, {vr(ACCB + 4 * p, 4)} offset:{1024 * p}")
    a("s_waitcnt lgkmcnt(0)")
    a("s_barrier")
    a.label("L_B_fin")
    a("v_and_b32 v8, 3, v1")
    a("v_lshrrev_b32 v9, 2, v1")
    a("v_lshl_add_u32 v8, v8, 4, v9")
    a("v_lshlrev_b32 v8, 3, v8")
    a(f"s_lshl_b32 s5, s{S_W}, 9")
    a(f"s_add_u32 s5, s5, {B_S}")
    a("v_add_u32 v8, s5, v8")
    a("s_waitcnt lgkmcnt(0)")
    a("s_barrier")
    a.stamp(10)
    Y = 128
    for d in range(4):
        a(f"ds_read_b64 {vr(Y + 2 * d, 2)}, v8 offset:{4096 * d}")
    a("v_lshlrev_b32 v9, 1, v3")
    a("v_subrev_u32 v9, s6, v9")
    a("v_add_u32 v9, 1280, v9")
    a("s_waitcnt lgkmcnt(0)")
    O = 160
    T = 16
    for d in range(4):
        a(f"v_lshlrev_b32 v{O + 0 + d}, 16, v{Y + 2 * d}")
        a(f"v_and_b32 v{O + 4 + d}, 0xffff0000, v{Y + 2 * d}")
        a(f"v_lshlrev_b32 v{O + 8 + d}, 16, v{Y + 2 * d + 1}")
        a(f"v_and_b32 v{O + 12 + d}, 0xffff0000, v{Y + 2 * d + 1}")
        a(f"v_and_b32 v{T + 4}, 0xffff0000, v{UK + 2 * d + 1}")
        a(f"v_lshlrev_b32 v{T + 5}, 16, v{UK + 2 * d + 1}")
        a(f"v_and_b32 v{T + 6}, 0xffff0000, v{UK + 2 * d}")
        a(f"v_lshlrev_b32 v{T + 7}, 16, v{UK + 2 * d}")
        for r in range(4):
            a(f"v_fmac_f32 v{O + 4 * r + d}, s{88 + d}, v{T + 4 + r}")
    for r in range(4):
        for c in range(2):
            a(f"v_cvt_pk_bf16_f32 v{Y + 2 * r + c}, v{O + 4 * r + 2 * c}, v{O + 4 * r + 2 * c + 1}")
        if r == 2:
            a("v_add_u32 v9, 5120, v9")
        a(f"buffer_store_dwordx2 {vr(Y + 2 * r, 2)}, v9, s[{SRD_O}:{SRD_O + 3}], 0 offen offset:{2560 * (r % 2)}")
    a.stamp(11)
    if DIAG:
        a("s_waitcnt vmcnt(0)")
    a.stamp(12)
    a.stamp_out()
    a.dbgt_end()
    a.label("L_end")
    a("s_endpgm")
    return a


def main():
    a = gen()
    ref = open(f"cdna_kernels/{NAME}.s.ref").read()
    head = ref[:ref.index("; @launch")]
    out = head
    out += f"; @launch grid=(256,1,1) block=(512,1,1) lds={LDS_BYTES}\n"
    out += '.amdgcn_target "amdgcn-amd-amdhsa--gfx950"\n.text\n'
    out += f".globl {NAME}_kernel\n.p2align 8\n.type {NAME}_kernel,@function\n{NAME}_kernel:\n"
    out += "\n".join(a.lines) + "\n"
    out += f""".section .rodata,"a"
.p2align 6
.amdhsa_kernel {NAME}_kernel
  .amdhsa_next_free_vgpr 256
  .amdhsa_next_free_sgpr 102
  .amdhsa_accum_offset 256
  .amdhsa_group_segment_fixed_size 0
  .amdhsa_kernarg_size 144
  .amdhsa_user_sgpr_count 2
  .amdhsa_user_sgpr_kernarg_segment_ptr 1
  .amdhsa_system_sgpr_workgroup_id_x 1
.end_amdhsa_kernel
"""
    path = sys.argv[1] if len(sys.argv) > 1 else f"cdna_kernels/{NAME}.s"
    open(path, "w").write(out)
    print("LDS", LDS_BYTES, "lines", len(a.lines))


if __name__ == "__main__":
    main()
```

```python
import sys, struct, os
from collections import deque

NAME = "concat_heads__ssm_conv_h3__ssm_conv_s4__prompt"
PREFETCH = not os.environ.get("NOPF")
DIAG = bool(os.environ.get("DIAG"))


def f32bits(x):
    return struct.unpack("<I", struct.pack("<f", x))[0]


def f32(x):
    return struct.unpack("<f", struct.pack("<f", x))[0]


S_CH0 = 3
S_W = 4


class Asm:
    def __init__(self):
        self.lines = []
        self.lds_q = []
        self.vm_q = []
        self.nlab = 0
        self.tail = []

    def __call__(self, s):
        self.lines.append("    " + s)

    def label(self, s):
        self.lines.append(s + ":")

    def newlabel(self, p="L"):
        self.nlab += 1
        return f"{p}_{self.nlab}"

    def lds(self, s, tag=None):
        self(s)
        self.lds_q.append(tag)

    def lds_need(self, tag):
        idx = None
        for i, t in enumerate(self.lds_q):
            if t == tag:
                idx = i
        if idx is None:
            return
        n = min(len(self.lds_q) - 1 - idx, 15)
        self(f"s_waitcnt lgkmcnt({n})")
        self.lds_q = self.lds_q[len(self.lds_q) - n:] if n else []

    def lds_drain(self):
        self("s_waitcnt lgkmcnt(0)")
        self.lds_q = []

    def vm(self, s, tag=None):
        self(s)
        self.vm_q.append(tag)

    def vm_need(self, tag):
        idx = None
        for i, t in enumerate(self.vm_q):
            if t == tag:
                idx = i
        if idx is None:
            return
        n = min(len(self.vm_q) - 1 - idx, 63)
        self(f"s_waitcnt vmcnt({n})")
        self.vm_q = self.vm_q[len(self.vm_q) - n:] if n else []

    def stamp(self, i):
        if not DIAG:
            return
        self("s_memtime s[98:99]")
        self("s_waitcnt lgkmcnt(0)")
        self(f"v_writelane_b32 v0, s98, {i}")
        self.lds_q = []

    def stamp_out(self):
        if not DIAG:
            return
        self("s_waitcnt vmcnt(0)")
        self.stamp(15)
        self("s_lshl_b32 s98, s2, 3")
        self(f"s_add_u32 s98, s98, s{S_W}")
        self("s_lshl_b32 s98, s98, 8")
        self("v_lshlrev_b32 v1, 2, v1")
        self("v_add_u32 v1, s98, v1")
        self("global_store_dword v1, v0, s[100:101]")


def vr(a, n=1):
    return f"v{a}" if n == 1 else f"v[{a}:{a + n - 1}]"


KSTR = 8320
COFF = 4160
XSTR = 4608
FLAGS = 0
A_KC = 640
A_XR = A_KC + 8 * KSTR
A_S = A_XR + 8 * XSTR
A_END = A_S + 8 * 4096
B_KC = 640
B_XR = B_KC + 4 * KSTR
B_TAB = B_XR + 4 * XSTR
B_ST = B_TAB + 4 * 6144
STW = 8704
B_END = B_ST + 8 * STW
LDS_BYTES = max(A_END, B_END)

SRD_K, SRD_V, SRD_Q, SRD_SK, SRD_O, SRD_PF = 8, 12, 16, 20, 24, 28
P = dict(q=32, k=34, v=36, shift_k=38, ssm_k=40, ssm_D=42, u=44, A_re=46, A_im=48,
         B_re=50, B_im=52, C_re=54, C_im=56, log_dt=58, Dskip=60, out=62)

V_LANE = 1
V_ROW = 3
V_FA = 8
V_GA = 12
V_ZERO = 13
V_ONE = 14
V_FLG = 15
S_MASK = 97
DUMMY = 128


def mk_srd(a, d, p, nbytes):
    a(f"s_mov_b32 s{d}, s{p}")
    a(f"s_mov_b32 s{d + 1}, s{p + 1}")
    a(f"s_mov_b32 s{d + 2}, {nbytes}")
    a(f"s_mov_b32 s{d + 3}, 0x00020000")


def conv_addrs(a, vt, sKC, sXR):
    a(f"v_and_b32 v{vt}, 15, v{V_LANE}")
    a(f"v_lshrrev_b32 v{vt + 1}, 4, v{V_LANE}")
    a(f"v_add_u32 v{vt + 2}, 1, v{vt}")
    a(f"v_lshrrev_b32 v{vt + 2}, 1, v{vt + 2}")
    a(f"v_lshl_add_u32 v{vt + 2}, v{vt + 1}, 2, v{vt + 2}")
    a(f"v_lshlrev_b32 v{vt + 2}, 2, v{vt + 2}")
    a(f"v_and_b32 v{vt + 3}, 1, v{vt}")
    a(f"v_xor_b32 v{vt + 3}, 1, v{vt + 3}")
    a(f"v_mul_u32_u24 v{vt + 3}, {COFF}, v{vt + 3}")
    a(f"v_add3_u32 v{V_FA}, v{vt + 2}, v{vt + 3}, s{sKC}")
    for b in range(1, 4):
        a(f"v_add_u32 v{V_FA + b}, {1024 * b}, v{V_FA}")
    a(f"v_lshlrev_b32 v{vt + 2}, 5, v{vt}")
    a(f"v_lshlrev_b32 v{vt + 3}, 4, v{vt + 1}")
    a(f"v_sub_u32 v{vt + 3}, v{vt + 3}, v{vt + 2}")
    a(f"v_add_u32 v{vt + 3}, 480, v{vt + 3}")
    a(f"v_add_u32 v{V_GA}, s{sXR}, v{vt + 3}")


def flag_issue(a, off, tag):
    a.lds(f"ds_read_b32 v{V_FLG}, v{V_ZERO} offset:{off}", tag)


def flag_check(a, off, tag, want, vaddr=V_ZERO):
    a.lds_need(tag)
    ok, spin = a.newlabel("L_ok"), a.newlabel("L_spin")
    a(f"v_readfirstlane_b32 s5, v{V_FLG}")
    a(f"s_cmp_lt_u32 s5, {want}")
    a(f"s_cbranch_scc1 {spin}")
    a.label(ok)
    t = a.tail
    t.append(f"{spin}:")
    t.append("    s_mov_b32 s96, 0")
    t.append(f"{spin}_l:")
    t.append("    s_sleep 1")
    t.append(f"    ds_read_b32 v{V_FLG}, v{vaddr} offset:{off}")
    t.append("    s_add_u32 s96, s96, 1")
    t.append("    s_cmp_gt_u32 s96, 0x40000")
    t.append(f"    s_cbranch_scc1 {ok}")
    t.append("    s_waitcnt lgkmcnt(0)")
    t.append(f"    v_readfirstlane_b32 s5, v{V_FLG}")
    t.append(f"    s_cmp_lt_u32 s5, {want}")
    t.append(f"    s_cbranch_scc1 {spin}_l")
    t.append(f"    s_branch {ok}")


def one_lane(a, s, tag=None):
    a.lds(s, tag)


def lane0_addr(a, vd, sbase):
    a(f"v_lshlrev_b32 v{vd}, 2, v{V_LANE}")
    a(f"v_add_u32 v{vd}, {DUMMY}, v{vd}")
    a(f"v_writelane_b32 v{vd}, 0, 0")
    if sbase is not None:
        a(f"v_add_u32 v{vd}, s{sbase}, v{vd}")


def need_tile(a, t):
    ok, spin = a.newlabel("L_ok"), a.newlabel("L_spin")
    a(f"s_bitcmp1_b32 s{S_MASK}, {t}")
    a(f"s_cbranch_scc0 {spin}")
    a.label(ok)
    tl = a.tail
    tl.append(f"{spin}:")
    tl.append("    s_mov_b32 s96, 0")
    tl.append(f"{spin}_l:")
    tl.append(f"    v_lshlrev_b32 v{V_FLG}, 2, v{V_LANE}")
    tl.append(f"    v_and_b32 v{V_FLG}, 31, v{V_FLG}")
    tl.append(f"    ds_read_b32 v{V_FLG}, v{V_FLG} offset:{FLAGS}")
    tl.append("    s_add_u32 s96, s96, 1")
    tl.append("    s_cmp_gt_u32 s96, 0x40000")
    tl.append(f"    s_cbranch_scc1 {ok}")
    tl.append("    s_waitcnt lgkmcnt(0)")
    tl.append(f"    v_cmp_ne_u32 vcc, 0, v{V_FLG}")
    tl.append("    s_nop 1")
    tl.append(f"    s_mov_b32 s{S_MASK}, vcc_lo")
    tl.append(f"    s_bitcmp1_b32 s{S_MASK}, {t}")
    tl.append(f"    s_cbranch_scc1 {ok}")
    tl.append("    s_sleep 1")
    tl.append(f"    s_branch {spin}_l")


class Conv:
    def __init__(self, a, Fbase, acc, pool, slots, FD=None, maxla=10):
        self.a, self.Fbase, self.acc = a, Fbase, acc
        self.FD = FD
        self.free = deque(pool)
        self.slot_of = dict(slots)
        self.touched = set()
        self.maxla = maxla

    def issue_F(self, slot, E, eps):
        a = self.a
        e = 8 * E + eps
        r = self.Fbase + 32 * slot + 4 * eps
        b, eo = e // 16, e % 16
        a.lds(f"ds_read2_b32 {vr(r, 2)}, v{V_FA + b} offset0:{16 * eo} offset1:{16 * eo + 1}", None)
        a.lds(f"ds_read2_b32 {vr(r + 2, 2)}, v{V_FA + b} offset0:{16 * eo + 2} offset1:{16 * eo + 3}", ("F", E, eps))

    def run(self, steps, on_done, jit_first=False):
        a = self.a
        seq = [(k, eps) for k in range(len(steps)) for eps in range(8)]
        issued = 0
        checked, started, flag_issued = set(), set(), set()
        pending_done = []
        gbuf = {}

        def can_issue(i):
            k, eps = seq[i]
            st = steps[k]
            if not self.free:
                return False
            if st.get("pre") is not None and k not in started:
                return False
            return st.get("need") is None or k in checked

        def issue_G(i):
            k, eps = seq[i]
            f = 8 * steps[k]["D"] - eps
            g = self.free.popleft()
            gbuf[i] = g
            a.lds(f"ds_read_b128 {vr(g, 4)}, v{V_GA} offset:{64 * (56 - f)}", ("G", i))

        for i, (k, eps) in enumerate(seq):
            st = steps[k]
            if eps == 0:
                if os.environ.get("FINE"):
                    a.stamp(16 + k)
                if st.get("pre") is not None:
                    if pending_done:
                        a("s_nop 7")
                        for t, _ in pending_done:
                            on_done(t)
                        pending_done = []
                    st["pre"]()
                    if "pool" in st:
                        self.free = deque(st["pool"])
                elif "pool_add" in st:
                    self.free.extend(st["pool_add"])
                started.add(k)
                if st.get("need") is not None and k not in checked:
                    need_tile(a, st["need"])
                    checked.add(k)
                if jit_first and k == 0:
                    for E in st["Es"]:
                        self.issue_F(self.slot_of[E], E, 0)
            if k + 1 < len(steps):
                nx = steps[k + 1]
                if nx.get("need") is not None and nx.get("pre") is None:
                    if (k + 1) not in checked and issued >= 8 * (k + 1) and self.free and eps >= nx.get("chk", 0):
                        need_tile(a, nx["need"])
                        checked.add(k + 1)
            la = 2 if (jit_first and k == 0) else self.maxla
            while issued < len(seq) and issued <= i + la and can_issue(issued):
                issue_G(issued)
                issued += 1
            if jit_first and k == 0 and eps + 1 < 8:
                for E in st["Es"]:
                    self.issue_F(self.slot_of[E], E, eps + 1)
            g = gbuf[i]
            a.lds_need(("G", i))
            for E in st["Es"]:
                a.lds_need(("F", E, eps))
                p = E + st["D"]
                r = self.Fbase + 32 * self.slot_of[E] + 4 * eps
                c = vr(self.acc + 4 * p, 4)
                src = c if p in self.touched else "0"
                self.touched.add(p)
                a(f"v_mfma_f32_16x16x32_bf16 {c}, {vr(r, 4)}, {vr(g, 4)}, {src}")
                if E == 0 and eps == 0 and self.FD is not None:
                    a(f"v_mfma_f32_16x16x32_bf16 {c}, {vr(self.FD, 4)}, {vr(g, 4)}, {c}")
                rl = st.get("reload")
                if rl and rl[0] == E:
                    self.issue_F(self.slot_of[E], rl[1], eps)
                if E == st["Es"][0]:
                    for En in st.get("load", []):
                        self.issue_F(self.slot_of[En], En, eps)
                npd = []
                for t, cnt in pending_done:
                    if cnt <= 0:
                        on_done(t)
                    else:
                        npd.append((t, cnt - 1))
                pending_done = npd
                fl = st.get("fill")
                if fl:
                    fl.popleft()()
            self.free.append(g)
            if eps == 7:
                rl = st.get("reload")
                if rl:
                    self.slot_of[rl[1]] = self.slot_of.pop(rl[0])
                for t in st.get("done", []):
                    pending_done.append((t, 7))
                fl = st.get("fill")
                while fl:
                    fl.popleft()()
        if pending_done:
            a("s_nop 7")
            for t, _ in pending_done:
                on_done(t)


def prologue(a):
    if DIAG:
        a("s_load_dwordx2 s[100:101], s[0:1], 136")
    a("s_load_dwordx16 s[32:47], s[0:1], 0")
    a("s_load_dwordx16 s[48:63], s[0:1], 64")
    a("s_and_b32 s5, s2, 7")
    a("s_lshr_b32 s6, s2, 3")
    a("v_lshrrev_b32 v2, 6, v0")
    a(f"v_and_b32 v{V_LANE}, 63, v0")
    a("s_cmp_lt_u32 s5, 4")
    a("s_cselect_b32 s7, 3, 2")
    a(f"v_readfirstlane_b32 s{S_W}, v2")
    a("s_mul_i32 s64, s5, 3")
    a("s_lshl_b32 s65, s5, 1")
    a("s_add_u32 s66, s65, 4")
    a("s_cmp_lt_u32 s5, 4")
    a("s_cselect_b32 s66, s64, s66")
    a("s_sub_u32 s67, s64, 4")
    a("s_cmp_lt_u32 s5, 4")
    a("s_cselect_b32 s67, s65, s67")
    a("s_lshl_b32 s68, s7, 2")
    a("s_sub_u32 s69, 5, s7")
    a("s_lshl_b32 s70, s69, 3")
    a("s_add_u32 s70, s70, s68")
    a("s_cmp_ge_u32 s6, s70")
    a("s_cbranch_scc1 L_end")
    a(f"v_mov_b32 v{V_ZERO}, 0")
    a(f"v_mov_b32 v{V_ONE}, 1")
    a(f"s_mov_b32 s{S_MASK}, 0")
    zero_flags(a, 2)
    lane0_addr(a, V_ZERO, None)
    a("s_waitcnt lgkmcnt(0)")
    a.stamp(0)
    a("s_cmp_ge_u32 s6, s68")
    a("s_cbranch_scc1 L_B")


def zero_flags(a, vt):
    a(f"v_lshlrev_b32 v{vt}, 2, v{V_LANE}")
    a(f"v_and_b32 v{vt}, 127, v{vt}")
    a(f"ds_write_b32 v{vt}, v{V_ZERO} offset:{FLAGS}")


def build_FD(a, FD, vt, sD):
    a(f"v_and_b32 v{vt}, 15, v{V_LANE}")
    a(f"v_lshrrev_b32 v{vt + 1}, 4, v{V_LANE}")
    a(f"v_lshlrev_b32 v{vt + 1}, 3, v{vt + 1}")
    a(f"v_add_u32 v{vt}, v{vt}, v{vt + 1}")
    a(f"v_sub_u32 v{vt}, 15, v{vt}")
    a(f"v_and_b32 v{vt + 1}, 1, v{vt}")
    a(f"v_lshlrev_b32 v{vt + 1}, 4, v{vt + 1}")
    a(f"v_lshlrev_b32 v{vt + 1}, v{vt + 1}, s{sD}" if False else f"v_lshlrev_b32_e64 v{vt + 1}, v{vt + 1}, s{sD}")
    a(f"v_ashrrev_i32 v{vt}, 1, v{vt}")
    for j in range(4):
        a(f"v_cmp_eq_u32 vcc, {j}, v{vt}")
        a("s_nop 1")
        a(f"v_cndmask_b32 v{FD + j}, 0, v{vt + 1}, vcc")


def prefetch_B(a):
    a("s_lshl_b32 s71, s7, 1")
    a("s_add_u32 s72, s71, s69")
    a("s_cmp_eq_u32 s72, 8")
    a("s_movk_i32 s73, 9363")
    a("s_cselect_b32 s73, 8192, s73")
    a("s_lshl_b32 s74, s6, 3")
    a(f"s_add_u32 s74, s74, s{S_W}")
    a("s_lshl_b32 s75, s69, 6")
    a("s_lshl_b32 s76, s72, 5")
    a("s_lshl_b32 s82, s7, 5")
    a("s_add_u32 s82, s82, s76")
    a(f"v_mul_u32_u24 v22, 1280, v{V_LANE}")
    a(f"s_mov_b32 s{SRD_PF + 2}, 2621440")
    a(f"s_mov_b32 s{SRD_PF + 3}, 0x00020000")
    for it in range(3):
        lq, lgo = a.newlabel("L_pfq"), a.newlabel("L_pfgo")
        if it:
            a("s_add_u32 s74, s74, s75")
        a("s_cmp_ge_u32 s74, s76")
        a(f"s_cbranch_scc1 {lq}")
        a("s_mul_i32 s77, s74, s73")
        a("s_lshr_b32 s77, s77, 16")
        a("s_mul_i32 s78, s77, s72")
        a("s_sub_u32 s78, s74, s78")
        a("s_lshr_b32 s79, s78, 1")
        a("s_add_u32 s79, s79, s66")
        a("s_and_b32 s80, s78, 1")
        a("s_cmp_eq_u32 s80, 0")
        a(f"s_cselect_b32 s{SRD_PF}, s{P['k']}, s{P['v']}")
        a(f"s_cselect_b32 s{SRD_PF + 1}, s{P['k'] + 1}, s{P['v'] + 1}")
        a("s_sub_u32 s81, s78, s71")
        a("s_add_u32 s81, s81, s67")
        a("s_cmp_ge_u32 s78, s71")
        a(f"s_cselect_b32 s{SRD_PF}, s{P['u']}, s{SRD_PF}")
        a(f"s_cselect_b32 s{SRD_PF + 1}, s{P['u'] + 1}, s{SRD_PF + 1}")
        a("s_cselect_b32 s79, s81, s79")
        a(f"s_branch {lgo}")
        a.label(lq)
        a("s_sub_u32 s78, s74, s76")
        a("s_and_b32 s77, s78, 31")
        a("s_lshr_b32 s79, s78, 5")
        a("s_add_u32 s79, s79, s66")
        a(f"s_mov_b32 s{SRD_PF}, s{P['q']}")
        a(f"s_mov_b32 s{SRD_PF + 1}, s{P['q'] + 1}")
        a.label(lgo)
        a("s_lshl_b32 s79, s79, 6")
        a("s_mul_i32 s77, s77, 81920")
        a("s_add_u32 s77, s77, s79")
        a("s_cmp_ge_u32 s74, s82")
        a("s_cselect_b32 s77, 0x70000000, s77")
        a.vm(f"buffer_load_dword v251, v22, s[{SRD_PF}:{SRD_PF + 3}], s77 offen", "pf")


def path_A(a):
    a.vm_q = []
    a.lds_q = []
    a("s_lshr_b32 s71, s6, 2")
    a("s_add_u32 s71, s71, s66")
    a("s_and_b32 s72, s6, 3")
    a("s_lshl_b32 s71, s71, 5")
    a("s_lshl_b32 s72, s72, 3")
    a(f"s_add_u32 s{S_CH0}, s71, s72")
    mk_srd(a, SRD_SK, P['ssm_k'], 2621440)
    a(f"s_add_u32 s7, s{S_CH0}, s{S_W}")
    a("s_lshl_b32 s7, s7, 12")
    a(f"v_lshlrev_b32 v2, 4, v{V_LANE}")
    Q0, Q1 = 128, 144
    for j in range(4):
        a.vm(f"buffer_load_dwordx4 {vr(Q0 + 4 * j, 4)}, v2, s[{SRD_SK}:{SRD_SK + 3}], s7 offen offset:{1024 * j}", "K")
    a(f"s_lshl_b32 s5, s{S_CH0}, 3")
    a(f"s_lshl_b32 s6, s{S_CH0}, 1")
    a(f"s_mul_i32 s7, s{S_W}, {256 * 1280}")
    a("s_add_u32 s7, s7, s6")
    a(f"s_load_dwordx16 s[64:79], s[{P['shift_k']}:{P['shift_k'] + 1}], s5")
    a(f"s_load_dwordx4 s[80:83], s[{P['ssm_D']}:{P['ssm_D'] + 1}], s6")
    a("s_sub_u32 s5, s7, 3840")
    a(f"s_cmp_eq_u32 s{S_W}, 0")
    a("s_cselect_b32 s5, s6, s5")
    a("s_add_u32 s28, s5, 1280")
    a("s_add_u32 s29, s5, 2560")
    HS = 84
    a(f"s_load_dwordx4 s[{HS}:{HS + 3}], s[{P['k']}:{P['k'] + 1}], s5")
    a(f"s_load_dwordx4 s[{HS + 4}:{HS + 7}], s[{P['k']}:{P['k'] + 1}], s28")
    a(f"s_load_dwordx4 s[{HS + 8}:{HS + 11}], s[{P['k']}:{P['k'] + 1}], s29")
    mk_srd(a, SRD_K, P['k'], 2621440)
    mk_srd(a, SRD_V, P['v'], 2621440)
    mk_srd(a, SRD_Q, P['q'], 2621440)
    mk_srd(a, SRD_O, P['out'], 5242880)
    a(f"v_mul_u32_u24 v{V_ROW}, 5120, v{V_LANE}")
    a(f"v_add_u32 v{V_ROW}, s7, v{V_ROW}")
    a("s_barrier")
    KR, VR = 16, 32
    T = 48
    FD = 74
    SKC, SXR = 28, 29

    def xload(i):
        if i < 4:
            a.vm(f"buffer_load_dwordx4 {vr(KR + 4 * i, 4)}, v{V_ROW}, s[{SRD_K}:{SRD_K + 3}], 0 offen offset:{1280 * i}", "x")
        else:
            j = i - 4
            a.vm(f"buffer_load_dwordx4 {vr(VR + 4 * j, 4)}, v{V_ROW}, s[{SRD_V}:{SRD_V + 3}], 0 offen offset:{1280 * j}", "x")

    a(f"s_cmp_ge_u32 s{S_W}, 2")
    a("s_cbranch_scc1 L_A_skipx")
    for i in range(8):
        xload(i)
    a.label("L_A_skipx")
    a(f"s_mul_i32 s{SKC}, s{S_W}, {KSTR}")
    a(f"s_add_u32 s{SKC}, s{SKC}, {A_KC}")
    a(f"s_mul_i32 s{SXR}, s{S_W}, {XSTR}")
    a(f"s_add_u32 s{SXR}, s{SXR}, {A_XR}")
    a("v_mov_b32 v6, 0")
    a("v_mov_b32 v7, 0")
    a(f"v_lshlrev_b32 v{T}, 3, v{V_LANE}")
    a(f"v_add_u32 v{T}, s{SXR}, v{T}")
    a(f"ds_write_b64 v{T}, v[6:7] offset:4096")
    conv_addrs(a, T, SKC, SXR)
    a.stamp(1)
    a(f"s_cmp_ge_u32 s{S_W}, 2")
    a("s_cbranch_scc1 L_A_kw1")
    a("s_waitcnt vmcnt(8)")
    a("s_branch L_A_kw2")
    a.label("L_A_kw1")
    a("s_waitcnt vmcnt(0)")
    a(f"s_cmp_ge_u32 s{S_W}, 4")
    a("s_cbranch_scc1 L_A_kw2")
    for i in range(8):
        xload(i)
    a.label("L_A_kw2")
    a.stamp(2)
    a(f"v_add_u32 v5, s{SKC}, v2")
    for j in range(4):
        a(f"ds_write_b128 v5, {vr(Q0 + 4 * j, 4)} offset:{32 + 1024 * j}")
    for j in range(4):
        a(f"v_readlane_b32 s{44 + j}, v{Q0 + 4 * j}, 0")
    for j in range(4):
        for x in range(3):
            a(f"v_alignbit_b32 v{Q1 + 4 * j + x}, v{Q0 + 4 * j + x + 1}, v{Q0 + 4 * j + x}, 16")
    for j in range(4):
        a(f"v_mov_b32 v{T + j}, s{44 + min(j + 1, 3)}")
    a("s_lshl_b32 s5, s44, 16")
    a("v_writelane_b32 v7, s5, 7")
    for j in range(4):
        a(f"v_mov_b32_dpp v{T + j}, v{Q0 + 4 * j} wave_shl:1 row_mask:0xf bank_mask:0xf")
    for j in range(4):
        a(f"v_alignbit_b32 v{Q1 + 4 * j + 3}, v{T + j}, v{Q0 + 4 * j + 3}, 16")
    for j in range(4):
        a(f"ds_write_b128 v5, {vr(Q1 + 4 * j, 4)} offset:{COFF + 32 + 1024 * j}")
    a(f"v_lshlrev_b32 v5, 2, v{V_LANE}")
    a(f"v_add_u32 v5, s{SKC}, v5")
    a("s_mov_b64 exec, 0xff")
    a("ds_write_b32 v5, v6")
    a(f"ds_write_b32 v5, v7 offset:{COFF}")
    a("s_mov_b64 exec, -1")
    a(f"s_lshl_b32 s5, s{S_W}, 9")
    a(f"s_sub_u32 s5, {A_XR + 4088}, s5")
    a(f"v_lshlrev_b32 v4, 3, v{V_LANE}")
    a(f"s_lshl_b32 s30, s{S_W}, 12")
    a(f"s_add_u32 s30, s30, {A_S}")
    a("v_add_u32 v5, s30, v4")
    a("v_sub_u32 v4, s5, v4")
    a(f"v_and_b32 v6, 3, v{V_LANE}")
    a(f"v_lshrrev_b32 v7, 2, v{V_LANE}")
    a("v_lshl_add_u32 v6, v6, 4, v7")
    a("v_lshlrev_b32 v6, 3, v6")
    a(f"s_lshl_b32 s5, s{S_W}, 9")
    a(f"s_add_u32 s5, s5, {A_S}")
    a("v_add_u32 v6, s5, v6")
    a(f"s_lshl_b32 s30, s{S_W}, 2")
    a(f"v_add_u32 v7, s30, v{V_ZERO}")
    a("s_waitcnt lgkmcnt(0)")
    a.lds_q = []
    ACC, GB, FB = 96, 80, 128
    PSTEP = int(os.environ.get("PSTEP", "2"))
    FSTEP = int(os.environ.get("FSTEP", "10"))
    G4 = [80, 84, 88, 92]
    GX = [32 + 4 * i for i in range(8)]
    for c in range(4):
        for j in range(4):
            for hh in range(2):
                src = 64 + 2 * (2 * c + hh) + (j >> 1)
                dst = 32 + 8 * c + 2 * j + hh
                if j & 1:
                    a(f"s_and_b32 s{dst}, s{src}, 0xffff0000")
                else:
                    a(f"s_lshl_b32 s{dst}, s{src}, 16")
    a(f"s_lshr_b32 s5, s{S_W}, 1")
    a("s_cmp_eq_u32 s5, 1")
    a("s_cselect_b32 s30, s81, s80")
    a("s_cmp_eq_u32 s5, 2")
    a("s_cselect_b32 s30, s82, s30")
    a("s_cmp_eq_u32 s5, 3")
    a("s_cselect_b32 s30, s83, s30")
    a(f"s_and_b32 s5, s{S_W}, 1")
    a("s_lshl_b32 s5, s5, 4")
    a("s_lshr_b32 s30, s30, s5")
    a("s_and_b32 s30, s30, 0xffff")
    build_FD(a, FD, T, 30)
    a(f"s_cmp_lg_u32 s{S_W}, 0")
    a("s_cbranch_scc1 L_A_halo_ok")
    for i in range(12):
        a(f"s_mov_b32 s{HS + i}, 0")
    a.label("L_A_halo_ok")

    def produce():
        a.vm_need("x")
        KP, AC = T + 4, T + 18
        for c in range(4):
            for j in range(3):
                a(f"v_mov_b32 v{T + j}, s{HS + 4 * j + c}")
            for r in range(4):
                a(f"v_lshlrev_b32 v{KP + 6 + 2 * r}, 16, v{KR + 4 * r + c}")
                a(f"v_and_b32 v{KP + 7 + 2 * r}, 0xffff0000, v{KR + 4 * r + c}")
            for j in range(3):
                a(f"v_mov_b32_dpp v{T + j}, v{KR + 4 * (j + 1) + c} wave_shr:1 row_mask:0xf bank_mask:0xf")
            W = lambda j: f"s[{32 + 8 * c + 2 * j}:{33 + 8 * c + 2 * j}]"
            for r in range(4):
                a(f"v_pk_mul_f32 {vr(AC + 2 * r, 2)}, {W(0)}, {vr(KP + 6 + 2 * r, 2)}")
            for j in range(3):
                a(f"v_lshlrev_b32 v{KP + 2 * j}, 16, v{T + j}")
                a(f"v_and_b32 v{KP + 1 + 2 * j}, 0xffff0000, v{T + j}")
            for jj in (1, 2, 3):
                for r in range(4):
                    a(f"v_pk_fma_f32 {vr(AC + 2 * r, 2)}, {W(jj)}, {vr(KP + 2 * (3 + r - jj), 2)}, {vr(AC + 2 * r, 2)}")
            for r in range(4):
                a(f"v_lshlrev_b32 v{KP + 2 * r}, 16, v{VR + 4 * r + c}")
                a(f"v_and_b32 v{KP + 1 + 2 * r}, 0xffff0000, v{VR + 4 * r + c}")
            for r in range(4):
                a(f"v_pk_mul_f32 {vr(AC + 2 * r, 2)}, {vr(AC + 2 * r, 2)}, {vr(KP + 2 * r, 2)}")
            for hh in range(2):
                o = KP + 8 + 2 * hh
                a(f"v_cvt_pk_bf16_f32 v{o}, v{AC + 6 + hh}, v{AC + 4 + hh}")
                a(f"v_cvt_pk_bf16_f32 v{o + 1}, v{AC + 2 + hh}, v{AC + hh}")
                a.lds(f"ds_write_b64 v4, {vr(o, 2)} offset:{XSTR * (2 * c + hh)}")
        one_lane(a, f"ds_write_b32 v7, v{V_ONE} offset:{FLAGS}")

    def qload(j):
        if j < 4:
            a.vm(f"buffer_load_dwordx4 {vr(16 + 4 * j, 4)}, v2, s[{SRD_Q}:{SRD_Q + 3}], 0 offen offset:{1280 * j}", "q0")
        else:
            a.vm(f"buffer_load_dwordx4 {vr(16 + 4 * j, 4)}, v{V_ROW}, s[{SRD_Q}:{SRD_Q + 3}], 0 offen offset:{1280 * (j - 4)}", "q1")

    def on_done(p):
        a(f"v_cvt_pk_bf16_f32 v78, v{ACC + 4 * p}, v{ACC + 4 * p + 1}")
        a(f"v_cvt_pk_bf16_f32 v79, v{ACC + 4 * p + 2}, v{ACC + 4 * p + 3}")
        a.lds(f"ds_write_b64 v5, v[78:79] offset:{512 * p}")
        one_lane(a, f"ds_add_u32 v{V_ZERO}, v{V_ONE} offset:{FLAGS + 32 + 4 * p}")

    def final(second):
        QR = 16 + 16 * second
        co = FLAGS + 32 - (0 if second else 16)
        so = 2048 if second else 0
        a.lds(f"ds_read_b32 v{V_FLG}, v7 offset:{co}", "cnt")
        flag_check(a, co, "cnt", 8, vaddr=7)
        Y = 48
        for d in range(8):
            a.lds(f"ds_read_b64 {vr(Y + 2 * d, 2)}, v6 offset:{4096 * d + so}", ("y", d))
        if second:
            a(f"v_lshlrev_b32 v2, 1, v{V_ROW}")
        else:
            a("v_lshlrev_b32 v2, 1, v2")
        a("v_subrev_u32 v2, s6, v2")
        a.vm_need("q1" if second else "q0")
        SP, QP = 80, 88
        for c in range(4):
            for r in range(4):
                a(f"v_lshlrev_b32 v{QP + 2 * r}, 16, v{QR + 4 * r + c}")
                a(f"v_and_b32 v{QP + 2 * r + 1}, 0xffff0000, v{QR + 4 * r + c}")
            a.lds_need(("y", 2 * c + 1))
            for hh in range(2):
                y = Y + 2 * (2 * c + hh)
                a(f"v_lshlrev_b32 v{SP + hh}, 16, v{y}")
                a(f"v_and_b32 v{SP + 2 + hh}, 0xffff0000, v{y}")
                a(f"v_lshlrev_b32 v{SP + 4 + hh}, 16, v{y + 1}")
                a(f"v_and_b32 v{SP + 6 + hh}, 0xffff0000, v{y + 1}")
            for r in range(4):
                a(f"v_pk_mul_f32 {vr(SP + 2 * r, 2)}, {vr(SP + 2 * r, 2)}, {vr(QP + 2 * r, 2)}")
            for r in range(4):
                a(f"v_cvt_pk_bf16_f32 v{QR + 4 * r + c}, v{SP + 2 * r}, v{SP + 2 * r + 1}")
        for r in range(4):
            if r == 2:
                a("v_add_u32 v2, 5120, v2")
            a.vm(f"buffer_store_dwordx4 {vr(QR + 4 * r, 4)}, v2, s[{SRD_O}:{SRD_O + 3}], 0 offen offset:{2560 * (r % 2)}", "st")

    def sched(hi):
        st = [
            dict(D=0, Es=[7, 6, 5, 4], reload=(7, 3), need=0),
            dict(D=1, Es=[6, 5, 4, 3], reload=(6, 2), need=1),
            dict(D=2, Es=[5, 4, 3, 2], reload=(5, 1), need=2),
            dict(D=3, Es=[4, 3, 2, 1], reload=(4, 0), need=3),
            dict(D=0, Es=[3, 2, 1, 0], done=[0]),
            dict(D=1, Es=[2, 1, 0], done=[1]),
            dict(D=2, Es=[1, 0], done=[2]),
            dict(D=3, Es=[0], done=[3]),
            dict(D=4, Es=[3, 2, 1, 0], done=[4], need=4),
            dict(D=5, Es=[2, 1, 0], done=[5], need=5),
            dict(D=6, Es=[1, 0], done=[6], need=6),
            dict(D=7, Es=[0], done=[7], need=7),
        ]
        nop = lambda: None
        if hi:
            st[PSTEP]["pool"] = G4 + [48 + 4 * i for i in range(6)]
            st[FSTEP]["pre"] = lambda: final(0)
            st[FSTEP]["pool"] = G4 + [48 + 4 * i for i in range(6)]
            st[PSTEP]["pre"] = produce
            st[PSTEP + 1]["fill"] = deque(sum([[(lambda j=j: qload(j)), nop, nop, nop] for j in range(8)], []))
        else:
            st[1]["pool_add"] = GX
        return st

    a(f"s_cmp_ge_u32 s{S_W}, 4")
    a("s_cbranch_scc1 L_A_hi")
    for hi in (0, 1):
        if hi:
            a.label("L_A_hi")
            a.vm_q = []
            a(f"v_subrev_u32 v2, {1024 * 1280}, v{V_ROW}")
            a("v_subrev_u32 v6, 2048, v6")
        else:
            a.vm_q = ["x"] * 8
        a.lds_q = []
        cv = Conv(a, FB, ACC, G4, {7: 0, 6: 1, 5: 2, 4: 3}, FD=FD)
        a.stamp(3)
        if not hi:
            produce()
        else:
            for eps in range(8):
                for E in (7, 6, 5, 4):
                    cv.issue_F(cv.slot_of[E], E, eps)
            for i in range(8):
                xload(i)
            if not os.environ.get("NOPRIO"):
                a("s_setprio 1")
        a.stamp(4)
        cv.run(sched(hi), on_done, jit_first=not hi)
        a.stamp(8)
        if hi:
            a("s_setprio 0")
            final(1)
        a.stamp(11)
        a.stamp_out()
        a("s_endpgm")


def path_B(a):
    a.label("L_B")
    a.vm_q = []
    a.lds_q = []
    a("s_sub_u32 s6, s6, s68")
    a("s_lshr_b32 s71, s6, 3")
    a("s_add_u32 s71, s71, s67")
    a("s_and_b32 s72, s6, 7")
    a("s_lshl_b32 s71, s71, 5")
    a("s_lshl_b32 s72, s72, 2")
    a(f"s_add_u32 s{S_CH0}, s71, s72")
    a(f"s_lshr_b32 s64, s{S_W}, 1")
    a(f"s_and_b32 s65, s{S_W}, 1")
    a(f"s_add_u32 s5, s{S_CH0}, s64")
    a("s_lshl_b32 s5, s5, 8")
    a("s_lshl_b32 s71, s65, 7")
    a("s_add_u32 s5, s5, s71")
    a(f"v_lshlrev_b32 v2, 1, v{V_LANE}")
    a("v_add_u32 v2, s5, v2")
    PR = 16
    for i, nm in enumerate(["A_re", "A_im", "B_re", "B_im", "C_re", "C_im"]):
        a.vm(f"global_load_ushort v{PR + i}, v2, s[{P[nm]}:{P[nm] + 1}]", "par")
    a(f"s_lshl_b32 s5, s{S_CH0}, 1")
    a(f"s_load_dwordx2 s[88:89], s[{P['log_dt']}:{P['log_dt'] + 1}], s5")
    a(f"s_load_dwordx2 s[90:91], s[{P['Dskip']}:{P['Dskip'] + 1}], s5")
    a("s_barrier")
    if PREFETCH:
        prefetch_B(a)
    a(f"s_lshl_b32 s6, s{S_CH0}, 1")
    mk_srd(a, SRD_K, P['u'], 2621440)
    mk_srd(a, SRD_O, P['out'], 5242880)
    a(f"s_mul_i32 s7, s{S_W}, {256 * 1280}")
    a("s_add_u32 s7, s7, s6")
    a(f"v_mul_u32_u24 v{V_ROW}, 5120, v{V_LANE}")
    a(f"v_add_u32 v{V_ROW}, s7, v{V_ROW}")
    UR = [202, 230, 252, 254]
    UR2 = [170, 172, 174, 176]

    def uloads(R, second):
        so = "s93" if second else "0"
        for j in range(4):
            a(f"buffer_load_dwordx2 {vr(R[j], 2)}, v{V_ROW}, s[{SRD_K}:{SRD_K + 3}], {so} offen offset:{1280 * j}")

    def uprod(R, t, second, cnt):
        a(f"s_waitcnt vmcnt({cnt})")
        for d in range(4):
            c, hh = d // 2, d % 2
            sel = "s78" if hh == 0 else "s79"
            a(f"v_perm_b32 v{t + 2 * d}, v{R[2] + c}, v{R[3] + c}, {sel}")
            a(f"v_perm_b32 v{t + 2 * d + 1}, v{R[0] + c}, v{R[1] + c}, {sel}")
            a(f"ds_write_b64 v4, {vr(t + 2 * d, 2)} offset:{XSTR * d + (0 if second else 2048)}")
        a(f"ds_write_b32 v5, v{V_ONE} offset:{FLAGS + 16 * second}")

    a(f"s_mov_b32 s93, {1024 * 1280}")
    a(f"s_mul_i32 s84, s64, {KSTR}")
    a(f"s_add_u32 s84, s84, {B_KC}")
    a(f"s_mul_i32 s85, s64, {XSTR}")
    a(f"s_add_u32 s85, s85, {B_XR}")
    a(f"s_mul_i32 s86, s{S_W}, {STW}")
    a(f"s_add_u32 s86, s86, {B_ST}")
    a("s_mul_i32 s87, s64, 6144")
    a(f"s_add_u32 s87, s87, {B_TAB}")
    a("v_mov_b32 v6, 0")
    a("v_mov_b32 v7, 0")
    T = 24
    a(f"v_lshlrev_b32 v{T}, 3, v{V_LANE}")
    a(f"v_add_u32 v{T}, s85, v{T}")
    a(f"ds_write_b64 v{T}, v[6:7] offset:4096")
    conv_addrs(a, T, 84, 85)
    GA = 232
    a("s_lshl_b32 s5, s65, 10")
    a(f"v_lshlrev_b32 v{T}, 3, v{V_LANE}")
    a(f"v_add_u32 v{T}, s5, v{T}")
    a(f"v_cvt_f32_u32 v{T + 1}, v{T}")
    a(f"s_sub_u32 s5, s87, {17024 * 8}")
    a("s_movk_i32 s71, 127")
    for rd in range(2):
        for x in range(0, 9, 2):
            g = GA + 9 * rd + x
            o0, o1 = float(512 * rd + x), float(512 * rd + x + 1)
            a(f"v_add_f32 v{T + 2}, {f32bits(o0):#x}, v{T + 1}")
            a(f"v_add_f32 v{T + 3}, {f32bits(o1):#x}, v{T + 1}")
            a(f"v_cvt_pk_bf16_f32 v{T + 2}, v{T + 2}, v{T + 3}")
            for y in range(2):
                if x + y > 8:
                    continue
                if y == 0:
                    a(f"v_and_b32 v{g}, 0xffff, v{T + 2}")
                else:
                    a(f"v_lshrrev_b32 v{g + 1}, 16, v{T + 2}")
                if rd == 0:
                    a(f"v_subrev_u32 v{g + y}, 17024, v{g + y}")
                    a(f"v_add_u32 v{T + 3}, {x + y}, v{T}")
                    a(f"v_med3_i32 v{g + y}, v{g + y}, v{T + 3}, s71")
                    a(f"v_lshl_add_u32 v{g + y}, v{g + y}, 3, s87")
                else:
                    a(f"v_lshl_add_u32 v{g + y}, v{g + y}, 3, s5")
    a(f"v_lshlrev_b32 v250, 1, v{T}")
    a("v_add_u32 v250, s84, v250")
    WA, RA = 216, 224
    a(f"v_lshlrev_b32 v{WA}, 2, v{V_LANE}")
    a(f"v_add_u32 v{WA}, s86, v{WA}")
    for i in range(1, 8):
        a(f"v_add_u32 v{WA + i}, {1088 * i}, v{WA}")
    a(f"v_and_b32 v{T}, 15, v{V_LANE}")
    a(f"v_lshrrev_b32 v{T + 1}, 4, v{V_LANE}")
    a(f"v_mul_u32_u24 v{RA}, 544, v{T}")
    a(f"v_lshl_add_u32 v{RA}, v{T + 1}, 4, v{RA}")
    a(f"v_add_u32 v{RA}, s86, v{RA}")
    SA = 225
    a("s_lshl_b32 s5, s65, 2")
    a("s_add_u32 s5, s5, s87")
    a(f"v_lshrrev_b32 v{SA}, 1, v{T + 1}")
    a(f"v_lshlrev_b32 v{SA}, 7, v{SA}")
    a(f"v_and_b32 v{T + 2}, 1, v{T + 1}")
    a(f"v_lshl_add_u32 v{SA}, v{T + 2}, 2, v{SA}")
    a(f"v_lshl_add_u32 v{SA}, v{T}, 3, v{SA}")
    a(f"v_lshl_add_u32 v{SA}, v{SA}, 3, s5")
    a(f"v_lshlrev_b32 v{SA + 1}, 6, v{T + 1}")
    a(f"v_add_u32 v{SA + 1}, 256, v{SA + 1}")
    a(f"v_cmp_gt_u32 vcc, 2, v{T + 1}")
    a(f"v_lshlrev_b32 v{T + 2}, 2, v{T}")
    a(f"v_lshlrev_b32 v{T + 3}, 1, v{T}")
    a(f"v_cndmask_b32 v{T + 2}, v{T + 3}, v{T + 2}, vcc")
    a(f"v_add_u32 v{SA + 1}, v{SA + 1}, v{T + 2}")
    a(f"v_lshl_add_u32 v{SA + 1}, v{SA + 1}, 3, s5")
    a(f"v_mov_b32 v{T + 2}, 256")
    a(f"v_cndmask_b32_e64 v{T + 2}, v{T + 2}, 16, vcc")
    a(f"v_add_u32 v{SA + 2}, v{SA + 1}, v{T + 2}")
    a(f"v_lshl_add_u32 v{SA + 3}, v{T + 1}, 6, v{T}")
    a(f"v_add_u32 v{SA + 3}, 512, v{SA + 3}")
    a(f"v_lshl_add_u32 v{SA + 3}, v{SA + 3}, 3, s5")
    a(f"s_lshl_b32 s5, s{S_W}, 9")
    a(f"s_sub_u32 s5, {B_XR + 4088 - 2048}, s5")
    a(f"v_lshlrev_b32 v4, 3, v{V_LANE}")
    a("v_sub_u32 v4, s5, v4")
    a("s_lshl_b32 s5, s64, 2")
    a(f"v_add_u32 v2, s5, v{V_ZERO}")
    a(f"s_lshl_b32 s5, s{S_W}, 2")
    a(f"v_add_u32 v5, s5, v{V_ZERO}")
    a("s_waitcnt lgkmcnt(0)")
    a("s_lshr_b32 s5, s64, 1")
    a("s_cmp_eq_u32 s5, 0")
    a("s_cselect_b32 s66, s88, s89")
    a("s_cselect_b32 s92, s90, s91")
    a("s_and_b32 s5, s64, 1")
    a("s_lshl_b32 s5, s5, 4")
    a("s_lshr_b32 s66, s66, s5")
    a("s_lshl_b32 s66, s66, 16")
    a("s_lshr_b32 s92, s92, s5")
    a("s_and_b32 s92, s92, 0xffff")
    L2E = 1.4426950408889634
    I2P = 0.15915494309189535
    a(f"s_mov_b32 s68, {f32bits(f32(L2E)):#x}")
    a(f"s_mov_b32 s69, {f32bits(L2E - f32(L2E)):#x}")
    a(f"s_mov_b32 s70, {f32bits(0.6931471805599453):#x}")
    a(f"s_mov_b32 s71, {f32bits(f32(I2P)):#x}")
    a(f"s_mov_b32 s72, {f32bits(I2P - f32(I2P)):#x}")
    a(f"v_mov_b32 v{T}, s66")
    a(f"v_mul_f32 v{T + 1}, s68, v{T}")
    a(f"v_fma_f32 v{T + 2}, v{T}, s68, -v{T + 1}")
    a(f"v_fmac_f32 v{T + 2}, s69, v{T}")
    a(f"v_exp_f32 v{T + 3}, v{T + 1}")
    a(f"v_mul_f32 v{T + 2}, s70, v{T + 2}")
    a("s_nop 0")
    a(f"v_fma_f32 v{T + 3}, v{T + 3}, v{T + 2}, v{T + 3}")
    a(f"v_cvt_pk_bf16_f32 v{T + 3}, v{T + 3}, v{T + 3}")
    a(f"v_lshlrev_b32 v{T + 3}, 16, v{T + 3}")
    a.stamp(1)
    a.vm_need("par")
    a(f"s_cmp_ge_u32 s{S_W}, 4")
    a("s_cbranch_scc1 L_B_nou3")
    uloads(UR, 0)
    a.label("L_B_nou3")
    a.stamp(2)
    for i in range(6):
        a(f"v_lshlrev_b32 v{PR + i}, 16, v{PR + i}")
    for i in range(4):
        a(f"v_mul_f32 v{PR + i}, v{T + 3}, v{PR + i}")

    EE, ZZ, HH = 48, 80, 96
    Z128, Z256, Z512, Z1024 = 130, 132, 134, 136
    TP, PK, KD = 138, 170, 204

    def batch(fns):
        n = max(len(f) for f in fns)
        for i in range(n):
            for f in fns:
                if i < len(f):
                    a(f[i])

    def cmul_i(d, x, y, t):
        return [f"v_pk_mul_f32 {vr(t, 2)}, {vr(x, 2)}, {vr(y, 2)} op_sel:[0,0] op_sel_hi:[1,0]",
                f"v_pk_fma_f32 {vr(d, 2)}, {vr(x, 2)}, {vr(y, 2)}, {vr(t, 2)} op_sel:[1,1,0] op_sel_hi:[0,1,1] neg_lo:[1,0,0]"]

    def cmuls(lst):
        batch([cmul_i(d, x, y, TP + 2 * i) for i, (d, x, y) in enumerate(lst)])

    def anchor_i(d, sreg, t, conj):
        return [f"v_mul_f32 v{t}, s{sreg}, v{PR}",
                f"v_mul_f32 v{t + 1}, s{sreg}, v{PR + 1}",
                f"v_mul_f32 v{t}, s68, v{t}",
                f"v_mul_f32 v{t + 2}, s71, v{t + 1}",
                f"v_exp_f32 v{t}, v{t}",
                f"v_fma_f32 v{t + 3}, v{t + 1}, s71, -v{t + 2}",
                f"v_fmac_f32 v{t + 3}, s72, v{t + 1}",
                f"v_fract_f32 v{t + 2}, v{t + 2}",
                f"v_add_f32 v{t + 2}, v{t + 2}, v{t + 3}",
                f"v_cos_f32 v{t + 1}, v{t + 2}",
                f"v_sin_f32 v{t + 3}, v{t + 2}",
                f"v_mul_f32 v{d}, v{t}, v{t + 1}",
                (f"v_mul_f32_e64 v{d + 1}, -v{t}, v{t + 3}" if conj else f"v_mul_f32 v{d + 1}, v{t}, v{t + 3}")]

    a("s_mov_b32 s80, 0x0000bf80")
    a("s_mov_b32 s81, 0xbf800000")
    anchors = [(EE + 2, 8, True), (EE + 16, 64, True), (ZZ + 2, 1, False), (Z128, 128, False), (Z1024, 1024, False)]
    for i, (d, lam, cj) in enumerate(anchors):
        a(f"s_mov_b32 s{73 + i}, {f32bits(float(lam)):#x}")
    batch([anchor_i(d, 73 + i, TP + 4 * i, cj) for i, (d, lam, cj) in enumerate(anchors)]
          + [cmul_i(HH, PR + 4, PR + 2, TP + 20)])
    a(f"v_mov_b32 v{EE}, 1.0")
    a(f"v_mov_b32 v{EE + 1}, 0")
    e = lambda r: EE + 2 * r
    z = lambda r: ZZ + 2 * r
    H = lambda h: HH + 2 * h
    cmuls([(e(2), e(1), e(1)), (z(2), z(1), z(1)), (Z256, Z128, Z128), (H(1), H(0), Z128), (e(9), e(8), e(1)),
           (H(8), H(0), Z1024)])
    cmuls([(e(3), e(2), e(1)), (e(4), e(2), e(2)), (z(3), z(2), z(1)), (z(4), z(2), z(2)), (Z512, Z256, Z256),
           (H(2), H(0), Z256), (H(3), H(1), Z256), (e(10), e(8), e(2)), (H(9), H(1), Z1024), (H(16), H(8), Z1024)])
    cmuls([(e(5), e(4), e(1)), (e(6), e(4), e(2)), (e(7), e(4), e(3)), (e(11), e(8), e(3)), (e(12), e(8), e(4)),
           (z(5), z(4), z(1)), (z(6), z(4), z(2)), (z(7), z(4), z(3)),
           (H(4), H(0), Z512), (H(5), H(1), Z512), (H(6), H(2), Z512), (H(7), H(3), Z512),
           (H(10), H(2), Z1024), (H(11), H(3), Z1024)])
    cmuls([(e(13), e(8), e(5)), (e(14), e(8), e(6)), (e(15), e(8), e(7)),
           (H(12), H(4), Z1024), (H(13), H(5), Z1024), (H(14), H(6), Z1024), (H(15), H(7), Z1024)])

    def split_i(x, row, t):
        hi, lo = PK + 2 * row, PK + 2 * row + 1
        return [f"v_cvt_pk_bf16_f32 v{hi}, v{x}, v{x + 1}",
                f"v_dot2_f32_bf16 v{t}, v{hi}, s80, v{x}",
                f"v_dot2_f32_bf16 v{t + 1}, v{hi}, s81, v{x + 1}",
                f"v_cvt_pk_bf16_f32 v{lo}, v{t}, v{t + 1}"]

    def wr_row(row):
        o = 136 * (row % 2)
        a.lds(f"ds_write2_b32 v{WA + row // 2}, v{PK + 2 * row}, v{PK + 2 * row + 1} offset0:{o} offset1:{o + 64}")

    def put_rows(vals, write=True):
        gs = 8 if len(vals) % 8 == 0 else 5
        for i0 in range(0, len(vals), gs):
            grp = vals[i0:i0 + gs]
            assert len(grp) >= 4
            batch([split_i(x, row, TP + 2 * i) for i, (x, row) in enumerate(grp)])
            if write:
                for x, row in grp:
                    wr_row(row)

    def read_frags(base, tag):
        for ks in range(4):
            a.lds(f"ds_read_b128 {vr(base + 4 * ks, 4)}, v{RA} offset:{64 * ks}", None)
            a.lds(f"ds_read_b128 {vr(base + 16 + 4 * ks, 4)}, v{RA} offset:{256 + 64 * ks}", tag)

    put_rows([(e(r), r) for r in range(16)])
    E2F = EE
    read_frags(E2F, "E2")
    RT = TP + 16

    def mfma_tile(m, E1F, tag):
        a.lds_need(tag)
        c = vr(KD + 4 * m, 4)
        first = True
        for ks in range(4):
            for (x, y) in ((16, 0), (0, 16), (0, 0)):
                src = "0" if first else c
                first = False
                a(f"v_mfma_f32_16x16x32_bf16 {c}, {vr(E1F + x + 4 * ks, 4)}, {vr(E2F + y + 4 * ks, 4)}, {src}")

    free_pairs = [16 + 2 * i for i in range(16)]
    t0, lst, k = [], [], 0
    for h in range(2):
        t0.append((H(h), 8 * h))
        for eps in range(1, 8):
            lst.append((free_pairs[k], H(h), z(eps)))
            t0.append((free_pairs[k], 8 * h + eps))
            k += 1
    cmuls(lst)
    put_rows(sorted(t0, key=lambda v: v[1]))
    t1, lst, k = [], [], 0
    for hp in range(2):
        t1.append((H(2 + hp), 4 * hp))
        for ep in range(1, 4):
            lst.append((free_pairs[k], H(2 + hp), z(2 * ep)))
            t1.append((free_pairs[k], 4 * hp + ep))
            k += 1
    for hp in range(4):
        t1.append((H(4 + hp), 8 + 2 * hp))
        lst.append((free_pairs[k], H(4 + hp), z(4)))
        t1.append((free_pairs[k], 8 + 2 * hp + 1))
        k += 1
    cmuls(lst)
    put_rows(sorted(t1, key=lambda v: v[1]), write=False)
    E1F, E1G = 80, 16
    read_frags(E1F, "T0")
    for row in range(16):
        wr_row(row)
    read_frags(E1G, "T1")
    put_rows([(H(8 + hp), hp) for hp in range(9)])
    a(f"s_cmp_ge_u32 s{S_W}, 4")
    a("s_cbranch_scc1 L_B_nou5")
    uloads([188, 190, 192, 194], 1)
    a.label("L_B_nou5")
    mfma_tile(0, E1F, "T0")
    mfma_tile(1, E1G, "T1")
    read_frags(E1F, "T2")
    mfma_tile(2, E1F, "T2")
    a.stamp(3)
    a("s_nop 7")
    for j in range(4):
        a.lds(f"ds_write_b32 v{SA}, v{KD + j} offset:{8 * j}")
    a.lds(f"ds_write_b32 v{SA + 1}, v{KD + 4}")
    a.lds(f"ds_write_b32 v{SA + 1}, v{KD + 5} offset:8")
    a.lds(f"ds_write_b32 v{SA + 2}, v{KD + 6}")
    a.lds(f"ds_write_b32 v{SA + 2}, v{KD + 7} offset:8")
    for j in range(4):
        a.lds(f"ds_write_b32 v{SA + 3}, v{KD + 8 + j} offset:{128 * j}")
    one_lane(a, f"ds_add_u32 v2, v{V_ONE} offset:{FLAGS + 64}")
    a(f"s_cmp_ge_u32 s{S_W}, 4")
    a("s_cbranch_scc1 L_B_nou4")
    a("s_mov_b32 s78, 0x05040100")
    a("s_mov_b32 s79, 0x07060302")
    uprod(UR, TP, 0, 4)
    a.label("L_B_nou4")
    a.lds_drain()
    a.lds(f"ds_read_b32 v{V_FLG}, v2 offset:{FLAGS + 64}", "tc")
    flag_check(a, FLAGS + 64, "tc", 2, vaddr=2)
    a.stamp(6)
    GV = 48
    for i in range(18):
        a.lds(f"ds_read_b64 {vr(GV + 2 * i, 2)}, v{GA + i}", ("g", i))
    FD = 44
    build_FD(a, FD, 32, 92)
    for rd in range(2):
        a.lds_need(("g", 9 * rd + 8))
        g0 = GV + 18 * rd
        for x in range(9):
            a(f"v_add_f32 v{g0 + 2 * x}, v{g0 + 2 * x}, v{g0 + 2 * x + 1}")
        o = 16 + 8 * rd
        for x in range(4):
            a(f"v_cvt_pk_bf16_f32 v{o + x}, v{g0 + 4 * x}, v{g0 + 4 * x + 2}")
            a(f"v_cvt_pk_bf16_f32 v{o + 4 + x}, v{g0 + 4 * x + 2}, v{g0 + 4 * x + 4}")
        a.lds(f"ds_write_b128 v250, {vr(o, 4)} offset:{32 + 1024 * rd}")
        a.lds(f"ds_write_b128 v250, {vr(o + 4, 4)} offset:{COFF + 32 + 1024 * rd}")
    a("s_cmp_lg_u32 s65, 0")
    a("s_cbranch_scc1 L_B_nopad")
    a("v_readlane_b32 s5, v16, 0")
    a("s_lshl_b32 s5, s5, 16")
    a("v_writelane_b32 v7, s5, 7")
    a(f"v_lshlrev_b32 v32, 2, v{V_LANE}")
    a("v_add_u32 v32, s84, v32")
    a("s_mov_b64 exec, 0xff")
    a("ds_write_b32 v32, v6")
    a(f"ds_write_b32 v32, v7 offset:{COFF}")
    a("s_mov_b64 exec, -1")
    a.label("L_B_nopad")
    one_lane(a, f"ds_add_u32 v2, v{V_ONE} offset:{FLAGS + 80}")
    a(f"s_cmp_ge_u32 s{S_W}, 4")
    a("s_cbranch_scc1 L_B_nou6")
    uprod([188, 190, 192, 194], TP, 1, 0)
    a.label("L_B_nou6")
    a("s_waitcnt vmcnt(0)")
    a("v_mov_b32 v7, v5")
    a(f"v_lshlrev_b32 v5, 4, v{V_LANE}")
    a("v_add_u32 v5, s86, v5")
    a(f"v_and_b32 v6, 3, v{V_LANE}")
    a(f"v_lshrrev_b32 v32, 2, v{V_LANE}")
    a("v_lshl_add_u32 v6, v6, 4, v32")
    a("v_lshlrev_b32 v6, 4, v6")
    a(f"s_lshl_b32 s5, s{S_W}, 10")
    a(f"s_add_u32 s5, s5, {B_ST}")
    a("v_add_u32 v6, s5, v6")
    a.lds_drain()
    a.lds(f"ds_read_b32 v{V_FLG}, v2 offset:{FLAGS + 80}", "kc")
    flag_check(a, FLAGS + 80, "kc", 2, vaddr=2)
    a.stamp(8)
    ACC, GB, FB = 64, 48, 96

    def on_done(p):
        if os.environ.get("X_NODONE"):
            return
        a.lds(f"ds_write_b128 v5, {vr(ACC + 4 * p, 4)} offset:{1024 * p}")
        if os.environ.get("X_NOSIG"):
            return
        one_lane(a, f"ds_add_u32 v{V_ZERO}, v{V_ONE} offset:{FLAGS + 32 + 4 * p}")

    def final(second):
        co = FLAGS + 32 + 16 * second
        so = 4096 * second
        if second:
            a("s_mov_b32 s7, 8")
        else:
            a(f"s_cmp_lt_u32 s{S_W}, 2")
            a("s_cselect_b32 s7, 4, 8")
        a.lds(f"ds_read_b32 v{V_FLG}, v7 offset:{co}", "cnt")
        flag_check(a, co, "cnt", "s7", vaddr=7)
        Y0, Y1 = 16, 32
        O = 48 + 8 * second
        for d in range(4):
            a(f"ds_read_b128 {vr(Y0 + 4 * d, 4)}, v6 offset:{2 * STW * d + so}")
        sk = a.newlabel("L_sk")
        a(f"v_lshlrev_b32 v2, 1, v{V_ROW}")
        a("v_subrev_u32 v2, s6, v2")
        a(f"v_add_u32 v2, {1280 + second * 1024 * 2560}, v2")
        if not second:
            a(f"s_cmp_lt_u32 s{S_W}, 2")
            a(f"s_cbranch_scc1 {sk}")
        for d in range(4):
            a(f"ds_read_b128 {vr(Y1 + 4 * d, 4)}, v6 offset:{2 * STW * d + STW + so}")
        a("s_waitcnt lgkmcnt(0)")
        for i in range(16):
            a(f"v_add_f32 v{Y0 + i}, v{Y0 + i}, v{Y1 + i}")
        a.label(sk)
        a.lds_drain()
        for r in range(4):
            for c in range(2):
                a(f"v_cvt_pk_bf16_f32 v{O + 2 * r + c}, v{Y0 + 8 * c + r}, v{Y0 + 8 * c + 4 + r}")
            if r == 2:
                a("v_add_u32 v2, 5120, v2")
            a(f"buffer_store_dwordx2 {vr(O + 2 * r, 2)}, v2, s[{SRD_O}:{SRD_O + 3}], 0 offen offset:{2560 * (r % 2)}")

    a("s_cmp_lg_u32 s65, 0")
    a("s_cbranch_scc1 L_B_h1")
    for h in (0, 1):
        if h:
            a.label("L_B_h1")
        a.lds_q = []
        Es = [0, 1, 5] if h == 0 else [2, 3, 4, 6, 7]
        pool = [48, 52, 56, 60] + [16 + 4 * i for i in range(7)]
        cv = Conv(a, FB, ACC, pool, {E: i for i, E in enumerate(Es)}, FD=FD)
        if h == 0:
            plan = [(0, [0], [1]), (1, [0, 1], [5]), (2, [0, 1, 5], []), (0, [1, 5], []), (1, [5], []),
                    (3, [0, 1], []), (4, [0, 1], []), (5, [0, 1], []), (6, [0, 1], []), (7, [0], [])]
        else:
            plan = [(0, [2], [3]), (1, [2, 3], [4]), (2, [2, 3, 4], [6]), (3, [2, 3, 4], [7]), (0, [3, 4, 6, 7], []),
                    (1, [4, 6], []), (4, [2, 3], []), (5, [2], [])]
        last = {}
        for k, (D, E_, ld) in enumerate(plan):
            for E in E_:
                last[E + D] = k
        assert sorted((E, D) for D, E_, _ in plan for E in E_) == sorted((E, D) for E in Es for D in range(8 - E))
        st = [dict(D=D, Es=E_, load=ld, need=D, done=[p for p in last if last[p] == k]) for k, (D, E_, ld) in enumerate(plan)]
        cv.run(st, on_done, jit_first=True)
        a.stamp(9)
        if h == 0:
            a("s_branch L_B_fin")
    a.label("L_B_fin")
    a.lds_drain()
    a(f"s_cmp_ge_u32 s{S_W}, 4")
    a("s_cbranch_scc1 L_B_done")
    if not os.environ.get("X_NOFIN"):
        final(0)
        final(1)
    a.label("L_B_done")
    a.stamp(11)
    a.stamp_out()
    a("s_endpgm")


def gen():
    a = Asm()
    prologue(a)
    path_A(a)
    path_B(a)
    a.lines += a.tail
    a.label("L_end")
    a("s_endpgm")
    return a


def main():
    a = gen()
    ref = open(f"cdna_kernels/{NAME}.s.ref").read()
    head = ref[:ref.index("; @launch")]
    out = head
    out += f"; @launch grid=(256,1,1) block=(512,1,1) lds={LDS_BYTES}\n"
    out += '.amdgcn_target "amdgcn-amd-amdhsa--gfx950"\n.text\n'
    out += f".globl {NAME}_kernel\n.p2align 8\n.type {NAME}_kernel,@function\n{NAME}_kernel:\n"
    out += "\n".join(a.lines) + "\n"
    out += f""".section .rodata,"a"
.p2align 6
.amdhsa_kernel {NAME}_kernel
  .amdhsa_next_free_vgpr 256
  .amdhsa_next_free_sgpr 102
  .amdhsa_accum_offset 256
  .amdhsa_group_segment_fixed_size 0
  .amdhsa_kernarg_size 144
  .amdhsa_user_sgpr_count 2
  .amdhsa_user_sgpr_kernarg_segment_ptr 1
  .amdhsa_system_sgpr_workgroup_id_x 1
.end_amdhsa_kernel
"""
    path = sys.argv[1] if len(sys.argv) > 1 else f"cdna_kernels/{NAME}.s"
    open(path, "w").write(out)
    print("LDS", LDS_BYTES, "lines", len(a.lines))


if __name__ == "__main__":
    main()
```

```python
import sys, struct, os
from collections import deque

NAME = "concat_heads__ssm_conv_h3__ssm_conv_s4__prompt"
PREFETCH = not os.environ.get("NOPF")
DIAG = bool(os.environ.get("DIAG"))


def f32bits(x):
    return struct.unpack("<I", struct.pack("<f", x))[0]


def f32(x):
    return struct.unpack("<f", struct.pack("<f", x))[0]


S_CH0 = 3
S_W = 4


class Asm:
    def __init__(self):
        self.lines = []
        self.lds_q = []
        self.vm_q = []
        self.nlab = 0
        self.tail = []

    def __call__(self, s):
        self.lines.append("    " + s)

    def label(self, s):
        self.lines.append(s + ":")

    def newlabel(self, p="L"):
        self.nlab += 1
        return f"{p}_{self.nlab}"

    def lds(self, s, tag=None):
        self(s)
        self.lds_q.append(tag)

    def lds_need(self, tag):
        idx = None
        for i, t in enumerate(self.lds_q):
            if t == tag:
                idx = i
        if idx is None:
            return
        n = min(len(self.lds_q) - 1 - idx, 15)
        self(f"s_waitcnt lgkmcnt({n})")
        self.lds_q = self.lds_q[len(self.lds_q) - n:] if n else []

    def lds_drain(self):
        self("s_waitcnt lgkmcnt(0)")
        self.lds_q = []

    def vm(self, s, tag=None):
        self(s)
        self.vm_q.append(tag)

    def vm_need(self, tag):
        idx = None
        for i, t in enumerate(self.vm_q):
            if t == tag:
                idx = i
        if idx is None:
            return
        n = min(len(self.vm_q) - 1 - idx, 63)
        self(f"s_waitcnt vmcnt({n})")
        self.vm_q = self.vm_q[len(self.vm_q) - n:] if n else []

    def stamp(self, i):
        if not DIAG:
            return
        self("s_memtime s[98:99]")
        self("s_waitcnt lgkmcnt(0)")
        self(f"v_writelane_b32 v0, s98, {i}")
        self.lds_q = []

    def rstamp(self, i):
        if not DIAG:
            return
        self("s_memrealtime s[98:99]")
        self("s_waitcnt lgkmcnt(0)")
        self(f"v_writelane_b32 v0, s98, {i}")

    def stamp_out(self):
        if not DIAG:
            return
        self("s_waitcnt vmcnt(0)")
        self.stamp(15)
        self.rstamp(14)
        self("s_lshl_b32 s98, s2, 3")
        self(f"s_add_u32 s98, s98, s{S_W}")
        self("s_lshl_b32 s98, s98, 8")
        self("v_lshlrev_b32 v1, 2, v1")
        self("v_add_u32 v1, s98, v1")
        self("global_store_dword v1, v0, s[100:101]")


def vr(a, n=1):
    return f"v{a}" if n == 1 else f"v[{a}:{a + n - 1}]"


XSTR = 4608
FLAGS = 0
CSTR_A = 2112
KSTR_A = 4 * CSTR_A
CSTR_B = 4160
KSTR_B = 4 * CSTR_B
A_KC = 640
A_XR = A_KC + 8 * KSTR_A
A_S = A_XR + 8 * XSTR
A_END = A_S + 8 * 4096
B_KC = 640
B_XR = B_KC + 4 * KSTR_B
B_ST = B_XR + 4 * XSTR
STW = 8704
B_END = B_ST + 8 * STW
LDS_BYTES = max(A_END, B_END)
assert LDS_BYTES <= 163840

SRD_K, SRD_V, SRD_Q, SRD_SK, SRD_O, SRD_PF = 8, 12, 16, 20, 24, 28
P = dict(q=32, k=34, v=36, shift_k=38, ssm_k=40, ssm_D=42, u=44, A_re=46, A_im=48,
         B_re=50, B_im=52, C_re=54, C_im=56, log_dt=58, Dskip=60, out=62)

V_LANE = 1
V_ROW = 3
V_FA = 8
V_GA = 12
V_ZERO = 13
V_ONE = 14
V_FLG = 15
S_MASK = 97
DUMMY = 128


def mk_srd(a, d, p, nbytes):
    a(f"s_mov_b32 s{d}, s{p}")
    a(f"s_mov_b32 s{d + 1}, s{p + 1}")
    a(f"s_mov_b32 s{d + 2}, {nbytes}")
    a(f"s_mov_b32 s{d + 3}, 0x00020000")


def conv_addrs(a, vt, sKC, sXR, cstr):
    a(f"v_and_b32 v{vt}, 15, v{V_LANE}")
    a(f"v_lshrrev_b32 v{vt + 1}, 4, v{V_LANE}")
    a(f"v_add_u32 v{vt + 2}, 1, v{vt}")
    a(f"v_lshrrev_b32 v{vt + 2}, 2, v{vt + 2}")
    a(f"v_lshl_add_u32 v{vt + 2}, v{vt + 1}, 1, v{vt + 2}")
    a(f"v_lshlrev_b32 v{vt + 2}, 3, v{vt + 2}")
    a(f"v_add_u32 v{vt + 3}, 1, v{vt}")
    a(f"v_and_b32 v{vt + 3}, 3, v{vt + 3}")
    a(f"v_mul_u32_u24 v{vt + 3}, {cstr}, v{vt + 3}")
    a(f"v_add3_u32 v{V_FA}, v{vt + 2}, v{vt + 3}, s{sKC}")
    a(f"v_lshlrev_b32 v{vt + 2}, 5, v{vt}")
    a(f"v_lshlrev_b32 v{vt + 3}, 4, v{vt + 1}")
    a(f"v_sub_u32 v{vt + 3}, v{vt + 3}, v{vt + 2}")
    a(f"v_add_u32 v{vt + 3}, 480, v{vt + 3}")
    a(f"v_add_u32 v{V_GA}, s{sXR}, v{vt + 3}")


def write4(a, va, Rs, off, cstr):
    for c, R in enumerate(Rs):
        a.lds(f"ds_write_b128 v{va}, {vr(R, 4)} offset:{off + c * cstr}")


def shift_quad(a, D, R, nx):
    a(f"v_pk_mov_b32 {vr(D, 2)}, {vr(R, 2)}, {vr(R + 2, 2)} op_sel:[1,0]")
    a(f"v_pk_mov_b32 {vr(D + 2, 2)}, {vr(R + 2, 2)}, {vr(nx, 2)} op_sel:[1,0]")


def write_pads(a, va, vp, N0, O0, cstr):
    a(f"v_readlane_b32 s30, v{N0}, 0")
    a(f"v_readlane_b32 s31, v{O0}, 0")
    for i in range(4):
        a(f"v_mov_b32 v{vp + i}, 0")
    a("s_lshl_b32 s5, s30, 16")
    a(f"v_writelane_b32 v{vp + 1}, s5, 7")
    a(f"v_writelane_b32 v{vp + 2}, s30, 7")
    a(f"v_writelane_b32 v{vp + 3}, s5, 6")
    a(f"v_writelane_b32 v{vp + 3}, s31, 7")
    a("s_mov_b64 exec, 0xff")
    for c in range(4):
        a.lds(f"ds_write_b32 v{va}, v{vp + c} offset:{c * cstr}")
    a("s_mov_b64 exec, -1")


def flag_issue(a, off, tag):
    a.lds(f"ds_read_b32 v{V_FLG}, v{V_ZERO} offset:{off}", tag)


def flag_check(a, off, tag, want, vaddr=V_ZERO):
    a.lds_need(tag)
    ok, spin = a.newlabel("L_ok"), a.newlabel("L_spin")
    a(f"v_readfirstlane_b32 s5, v{V_FLG}")
    a(f"s_cmp_lt_u32 s5, {want}")
    a(f"s_cbranch_scc1 {spin}")
    a.label(ok)
    t = a.tail
    t.append(f"{spin}:")
    t.append("    s_mov_b32 s96, 0")
    t.append(f"{spin}_l:")
    t.append("    s_sleep 1")
    t.append(f"    ds_read_b32 v{V_FLG}, v{vaddr} offset:{off}")
    t.append("    s_add_u32 s96, s96, 1")
    t.append("    s_cmp_gt_u32 s96, 0x40000")
    t.append(f"    s_cbranch_scc1 {ok}")
    t.append("    s_waitcnt lgkmcnt(0)")
    t.append(f"    v_readfirstlane_b32 s5, v{V_FLG}")
    t.append(f"    s_cmp_lt_u32 s5, {want}")
    t.append(f"    s_cbranch_scc1 {spin}_l")
    t.append(f"    s_branch {ok}")


def one_lane(a, s, tag=None):
    a.lds(s, tag)


def lane0_addr(a, vd, sbase):
    a(f"v_lshlrev_b32 v{vd}, 2, v{V_LANE}")
    a(f"v_add_u32 v{vd}, {DUMMY}, v{vd}")
    a(f"v_writelane_b32 v{vd}, 0, 0")
    if sbase is not None:
        a(f"v_add_u32 v{vd}, s{sbase}, v{vd}")


def need_tile(a, t):
    ok, spin = a.newlabel("L_ok"), a.newlabel("L_spin")
    a(f"s_bitcmp1_b32 s{S_MASK}, {t}")
    a(f"s_cbranch_scc0 {spin}")
    a.label(ok)
    tl = a.tail
    tl.append(f"{spin}:")
    tl.append("    s_mov_b32 s96, 0")
    tl.append(f"{spin}_l:")
    tl.append(f"    v_lshlrev_b32 v{V_FLG}, 2, v{V_LANE}")
    tl.append(f"    v_and_b32 v{V_FLG}, 31, v{V_FLG}")
    tl.append(f"    ds_read_b32 v{V_FLG}, v{V_FLG} offset:{FLAGS}")
    tl.append("    s_add_u32 s96, s96, 1")
    tl.append("    s_cmp_gt_u32 s96, 0x40000")
    tl.append(f"    s_cbranch_scc1 {ok}")
    tl.append("    s_waitcnt lgkmcnt(0)")
    tl.append(f"    v_cmp_ne_u32 vcc, 0, v{V_FLG}")
    tl.append("    s_nop 1")
    tl.append(f"    s_mov_b32 s{S_MASK}, vcc_lo")
    tl.append(f"    s_bitcmp1_b32 s{S_MASK}, {t}")
    tl.append(f"    s_cbranch_scc1 {ok}")
    tl.append("    s_sleep 1")
    tl.append(f"    s_branch {spin}_l")


JLA = 4


class Conv:
    def __init__(self, a, Fbase, acc, pool, slots, FD=None, maxla=10, emod=64):
        self.a, self.Fbase, self.acc = a, Fbase, acc
        self.emod = emod
        self.FD = FD
        self.free = deque(pool)
        self.slot_of = dict(slots)
        self.touched = set()
        self.maxla = maxla

    def issue_F(self, slot, E, eps):
        a = self.a
        e = 8 * E + eps
        r = self.Fbase + 32 * slot + 4 * eps
        eo = e % self.emod
        a.lds(f"ds_read_b64 {vr(r, 2)}, v{V_FA} offset:{64 * eo}", None)
        a.lds(f"ds_read_b64 {vr(r + 2, 2)}, v{V_FA} offset:{64 * eo + 8}", ("F", E, eps))

    def run(self, steps, on_done, jit_first=False):
        a = self.a
        seq = [(k, eps) for k in range(len(steps)) for eps in range(8)]
        issued = 0
        checked, started, flag_issued = set(), set(), set()
        pending_done = []
        gbuf = {}

        def can_issue(i):
            k, eps = seq[i]
            st = steps[k]
            if not self.free:
                return False
            if st.get("pre") is not None and k not in started:
                return False
            return st.get("need") is None or k in checked

        def issue_G(i):
            k, eps = seq[i]
            f = 8 * steps[k]["D"] - eps
            g = self.free.popleft()
            gbuf[i] = g
            a.lds(f"ds_read_b128 {vr(g, 4)}, v{V_GA} offset:{64 * (56 - f)}", ("G", i))

        for i, (k, eps) in enumerate(seq):
            st = steps[k]
            if eps == 0:
                if os.environ.get("FINE"):
                    a.stamp(16 + k)
                if st.get("pre") is not None:
                    if pending_done:
                        a("s_nop 7")
                        for t, _ in pending_done:
                            on_done(t)
                        pending_done = []
                    st["pre"]()
                    if "pool" in st:
                        self.free = deque(st["pool"])
                elif "pool_add" in st:
                    self.free.extend(st["pool_add"])
                started.add(k)
                if st.get("need") is not None and k not in checked:
                    need_tile(a, st["need"])
                    checked.add(k)
                if jit_first and k == 0:
                    for e2 in range(JLA):
                        for E in st["Es"]:
                            self.issue_F(self.slot_of[E], E, e2)
                        issue_G(issued)
                        issued += 1
            if k + 1 < len(steps):
                nx = steps[k + 1]
                if nx.get("need") is not None and nx.get("pre") is None:
                    if (k + 1) not in checked and issued >= 8 * (k + 1) and self.free and eps >= nx.get("chk", 0):
                        need_tile(a, nx["need"])
                        checked.add(k + 1)
            la = JLA if (jit_first and k == 0) else self.maxla
            while issued < len(seq) and issued <= i + la and can_issue(issued):
                issue_G(issued)
                issued += 1
            if jit_first and k == 0 and eps + JLA < 8:
                for E in st["Es"]:
                    self.issue_F(self.slot_of[E], E, eps + JLA)
            g = gbuf[i]
            a.lds_need(("G", i))
            for E in st["Es"]:
                a.lds_need(("F", E, eps))
                p = E + st["D"]
                r = self.Fbase + 32 * self.slot_of[E] + 4 * eps
                c = vr(self.acc + 4 * p, 4)
                src = c if p in self.touched else "0"
                self.touched.add(p)
                a(f"v_mfma_f32_16x16x32_bf16 {c}, {vr(r, 4)}, {vr(g, 4)}, {src}")
                if E == 0 and eps == 0 and self.FD is not None:
                    a(f"v_mfma_f32_16x16x32_bf16 {c}, {vr(self.FD, 4)}, {vr(g, 4)}, {c}")
                rl = st.get("reload")
                if rl and rl[0] == E:
                    self.issue_F(self.slot_of[E], rl[1], eps)
                if E == st["Es"][0]:
                    for En in st.get("load", []):
                        if jit_first and k == 0:
                            if eps >= 4:
                                self.issue_F(self.slot_of[En], En, 2 * (eps - 4))
                                self.issue_F(self.slot_of[En], En, 2 * (eps - 4) + 1)
                        else:
                            self.issue_F(self.slot_of[En], En, eps)
                npd = []
                for t, cnt in pending_done:
                    if cnt <= 0:
                        on_done(t)
                    else:
                        npd.append((t, cnt - 1))
                pending_done = npd
                fl = st.get("fill")
                if fl:
                    fl.popleft()()
            self.free.append(g)
            if eps == 7:
                rl = st.get("reload")
                if rl:
                    self.slot_of[rl[1]] = self.slot_of.pop(rl[0])
                for t in st.get("done", []):
                    pending_done.append((t, 7))
                fl = st.get("fill")
                while fl:
                    fl.popleft()()
        if pending_done:
            a("s_nop 7")
            for t, _ in pending_done:
                on_done(t)


def prologue(a):
    if DIAG:
        a("s_load_dwordx2 s[100:101], s[0:1], 136")
    a("s_load_dwordx16 s[32:47], s[0:1], 0")
    a("s_load_dwordx16 s[48:63], s[0:1], 64")
    a("s_and_b32 s5, s2, 7")
    a("s_lshr_b32 s6, s2, 3")
    a("v_lshrrev_b32 v2, 6, v0")
    a(f"v_and_b32 v{V_LANE}, 63, v0")
    a("s_cmp_lt_u32 s5, 4")
    a("s_cselect_b32 s7, 3, 2")
    a(f"v_readfirstlane_b32 s{S_W}, v2")
    a("s_mul_i32 s64, s5, 3")
    a("s_lshl_b32 s65, s5, 1")
    a("s_add_u32 s66, s65, 4")
    a("s_cmp_lt_u32 s5, 4")
    a("s_cselect_b32 s66, s64, s66")
    a("s_sub_u32 s67, s64, 4")
    a("s_cmp_lt_u32 s5, 4")
    a("s_cselect_b32 s67, s65, s67")
    a("s_lshl_b32 s68, s7, 2")
    a("s_sub_u32 s69, 5, s7")
    a("s_lshl_b32 s70, s69, 3")
    a("s_add_u32 s70, s70, s68")
    a("s_cmp_ge_u32 s6, s70")
    a("s_cbranch_scc1 L_end")
    a(f"v_mov_b32 v{V_ZERO}, 0")
    a(f"v_mov_b32 v{V_ONE}, 1")
    a(f"s_mov_b32 s{S_MASK}, 0")
    zero_flags(a, 2)
    lane0_addr(a, V_ZERO, None)
    a("s_waitcnt lgkmcnt(0)")
    a.stamp(0)
    a.rstamp(13)
    a("s_cmp_ge_u32 s6, s68")
    a("s_cbranch_scc1 L_B")


def zero_flags(a, vt):
    a(f"v_lshlrev_b32 v{vt}, 2, v{V_LANE}")
    a(f"v_and_b32 v{vt}, 127, v{vt}")
    a(f"ds_write_b32 v{vt}, v{V_ZERO} offset:{FLAGS}")


def build_FD(a, FD, vt, sD):
    a(f"v_and_b32 v{vt}, 15, v{V_LANE}")
    a(f"v_lshrrev_b32 v{vt + 1}, 4, v{V_LANE}")
    a(f"v_lshlrev_b32 v{vt + 1}, 3, v{vt + 1}")
    a(f"v_add_u32 v{vt}, v{vt}, v{vt + 1}")
    a(f"v_sub_u32 v{vt}, 15, v{vt}")
    a(f"v_and_b32 v{vt + 1}, 1, v{vt}")
    a(f"v_lshlrev_b32 v{vt + 1}, 4, v{vt + 1}")
    a(f"v_lshlrev_b32 v{vt + 1}, v{vt + 1}, s{sD}" if False else f"v_lshlrev_b32_e64 v{vt + 1}, v{vt + 1}, s{sD}")
    a(f"v_ashrrev_i32 v{vt}, 1, v{vt}")
    for j in range(4):
        a(f"v_cmp_eq_u32 vcc, {j}, v{vt}")
        a("s_nop 1")
        a(f"v_cndmask_b32 v{FD + j}, 0, v{vt + 1}, vcc")


def prefetch_setup(a):
    a("s_lshl_b32 s71, s7, 1")
    a("s_cmp_eq_u32 s71, 4")
    a("s_movk_i32 s73, 10923")
    a("s_cselect_b32 s73, 16384, s73")
    a("s_lshl_b32 s74, s6, 2")
    a(f"s_and_b32 s75, s{S_W}, 3")
    a("s_add_u32 s74, s74, s75")
    a("s_lshl_b32 s75, s69, 5")
    a("s_lshl_b32 s76, s71, 4")
    a("s_mov_b32 s81, 0")
    a(f"v_mul_u32_u24 v229, 1280, v{V_LANE}")
    for it in range(2):
        d = 12 + 4 * it
        if it:
            a("s_add_u32 s77, s74, s75")
        else:
            a("s_mov_b32 s77, s74")
        a("s_mul_i32 s78, s77, s73")
        a("s_lshr_b32 s78, s78, 16")
        a("s_mul_i32 s79, s78, s71")
        a("s_sub_u32 s79, s77, s79")
        a("s_add_u32 s78, s78, s81")
        a("s_and_b32 s80, s79, 1")
        a("s_lshr_b32 s79, s79, 1")
        a("s_add_u32 s79, s79, s66")
        a("s_cmp_eq_u32 s80, 0")
        a(f"s_cselect_b32 s{d}, s{P['k']}, s{P['v']}")
        a(f"s_cselect_b32 s{d + 1}, s{P['k'] + 1}, s{P['v'] + 1}")
        a(f"s_mov_b32 s{d + 2}, 2621440")
        a(f"s_mov_b32 s{d + 3}, 0x00020000")
        a("s_lshl_b32 s79, s79, 6")
        a("s_mul_i32 s78, s78, 81920")
        a("s_add_u32 s78, s78, s79")
        a("s_cmp_ge_u32 s77, s76")
        a(f"s_cselect_b32 s{94 + it}, 0x70000000, s78")
        a("s_lshl_b32 s78, s77, 1")
        a("s_mul_i32 s78, s78, s73")
        a("s_lshr_b32 s78, s78, 16")
        a("s_mul_i32 s79, s78, s7")
        a("s_sub_u32 s79, s77, s79")
        a("s_add_u32 s79, s79, s66")
        a("s_lshl_b32 s79, s79, 6")
        a("s_mul_i32 s78, s78, 81920")
        a("s_add_u32 s78, s78, s79")
        a("s_cmp_ge_u32 s77, s76")
        a(f"s_cselect_b32 s{28 + it}, 0x70000000, s78")
    mk_srd(a, 20, P['q'], 2621440)
    a(f"s_mov_b32 m0, {DUMMY}")


def prefetch_kv(a, second=False):
    for i in range(2):
        if second:
            a(f"s_add_u32 s{94 + i}, s{94 + i}, {16 * 81920}")
        a(f"buffer_load_dword v229, s[{12 + 4 * i}:{15 + 4 * i}], s{94 + i} offen lds")


def prefetch_q(a):
    for i in range(2):
        a(f"buffer_load_dword v229, s[20:23], s{28 + i} offen lds")


def path_A(a):
    a.vm_q = []
    a.lds_q = []
    a("s_lshr_b32 s71, s6, 2")
    a("s_add_u32 s71, s71, s66")
    a("s_and_b32 s72, s6, 3")
    a("s_lshl_b32 s71, s71, 5")
    a("s_lshl_b32 s72, s72, 3")
    a(f"s_add_u32 s{S_CH0}, s71, s72")
    mk_srd(a, SRD_SK, P['ssm_k'], 2621440)
    a(f"s_add_u32 s7, s{S_CH0}, s{S_W}")
    a("s_lshl_b32 s7, s7, 12")
    a(f"v_lshlrev_b32 v2, 4, v{V_LANE}")
    Q0, Q1 = 96, 112
    for j in range(4):
        a.vm(f"buffer_load_dwordx4 {vr(Q0 + 4 * j, 4)}, v2, s[{SRD_SK}:{SRD_SK + 3}], s7 offen offset:{1024 * j}", "K")
    a(f"s_lshl_b32 s5, s{S_CH0}, 3")
    a(f"s_lshl_b32 s6, s{S_CH0}, 1")
    a(f"s_mul_i32 s7, s{S_W}, {256 * 1280}")
    a("s_add_u32 s7, s7, s6")
    a(f"s_load_dwordx16 s[64:79], s[{P['shift_k']}:{P['shift_k'] + 1}], s5")
    a(f"s_load_dwordx4 s[80:83], s[{P['ssm_D']}:{P['ssm_D'] + 1}], s6")
    a("s_sub_u32 s5, s7, 3840")
    a(f"s_cmp_eq_u32 s{S_W}, 0")
    a("s_cselect_b32 s5, s6, s5")
    a("s_add_u32 s28, s5, 1280")
    a("s_add_u32 s29, s5, 2560")
    HS = 84
    a(f"s_load_dwordx4 s[{HS}:{HS + 3}], s[{P['k']}:{P['k'] + 1}], s5")
    a(f"s_load_dwordx4 s[{HS + 4}:{HS + 7}], s[{P['k']}:{P['k'] + 1}], s28")
    a(f"s_load_dwordx4 s[{HS + 8}:{HS + 11}], s[{P['k']}:{P['k'] + 1}], s29")
    mk_srd(a, SRD_K, P['k'], 2621440)
    mk_srd(a, SRD_V, P['v'], 2621440)
    mk_srd(a, SRD_Q, P['q'], 2621440)
    mk_srd(a, SRD_O, P['out'], 5242880)
    a(f"v_mul_u32_u24 v{V_ROW}, 5120, v{V_LANE}")
    a(f"v_add_u32 v{V_ROW}, s7, v{V_ROW}")
    a("s_barrier")
    KR, VR = 16, 32
    T = 48
    FD = 74
    SKC, SXR = 28, 29

    def xload(i):
        if i < 4:
            a.vm(f"buffer_load_dwordx4 {vr(KR + 4 * i, 4)}, v{V_ROW}, s[{SRD_K}:{SRD_K + 3}], 0 offen offset:{1280 * i}", "x")
        else:
            j = i - 4
            a.vm(f"buffer_load_dwordx4 {vr(VR + 4 * j, 4)}, v{V_ROW}, s[{SRD_V}:{SRD_V + 3}], 0 offen offset:{1280 * j}", "x")

    a(f"s_cmp_ge_u32 s{S_W}, 2")
    a("s_cbranch_scc1 L_A_skipx")
    for i in range(8):
        xload(i)
    a.label("L_A_skipx")
    a(f"s_mul_i32 s{SKC}, s{S_W}, {KSTR_A}")
    a(f"s_add_u32 s{SKC}, s{SKC}, {A_KC}")
    a(f"s_mul_i32 s{SXR}, s{S_W}, {XSTR}")
    a(f"s_add_u32 s{SXR}, s{SXR}, {A_XR}")
    a("v_mov_b32 v6, 0")
    a("v_mov_b32 v7, 0")
    a(f"v_lshlrev_b32 v{T}, 3, v{V_LANE}")
    a(f"v_add_u32 v{T}, s{SXR}, v{T}")
    a(f"ds_write_b64 v{T}, v[6:7] offset:4096")
    conv_addrs(a, T, SKC, SXR, CSTR_A)
    a.stamp(1)
    a(f"s_cmp_ge_u32 s{S_W}, 2")
    a("s_cbranch_scc1 L_A_kw1")
    a("s_waitcnt vmcnt(8)")
    a("s_branch L_A_kw2")
    a.label("L_A_kw1")
    a("s_waitcnt vmcnt(0)")
    a(f"s_cmp_ge_u32 s{S_W}, 4")
    a("s_cbranch_scc1 L_A_kw2")
    for i in range(8):
        xload(i)
    a.label("L_A_kw2")
    a.stamp(2)
    a(f"v_add_u32 v5, s{SKC}, v2")
    Q2, Q3, NX = 80, 48, 64
    for j in range(4):
        a(f"v_readlane_b32 s{44 + 2 * j}, v{Q0 + 4 * j}, 0")
        a(f"v_readlane_b32 s{45 + 2 * j}, v{Q0 + 4 * j + 1}, 0")
    for j in range(4):
        for x in range(3):
            a(f"v_alignbit_b32 v{Q1 + 4 * j + x}, v{Q0 + 4 * j + x + 1}, v{Q0 + 4 * j + x}, 16")
    for j in range(4):
        a(f"v_mov_b32 v{NX + 2 * j}, s{44 + 2 * min(j + 1, 3)}")
        a(f"v_mov_b32 v{NX + 2 * j + 1}, s{45 + 2 * min(j + 1, 3)}")
    a("s_nop 0")
    for j in range(4):
        a(f"v_mov_b32_dpp v{NX + 2 * j}, v{Q0 + 4 * j} wave_shl:1 row_mask:0xf bank_mask:0xf")
        a(f"v_mov_b32_dpp v{NX + 2 * j + 1}, v{Q0 + 4 * j + 1} wave_shl:1 row_mask:0xf bank_mask:0xf")
    for j in range(4):
        a(f"v_alignbit_b32 v{Q1 + 4 * j + 3}, v{NX + 2 * j}, v{Q0 + 4 * j + 3}, 16")
        shift_quad(a, Q2 + 4 * j, Q0 + 4 * j, NX + 2 * j)
    for j in range(4):
        a(f"v_alignbit_b32 v{NX + 2 * j}, v{NX + 2 * j + 1}, v{NX + 2 * j}, 16")
    for j in range(4):
        shift_quad(a, Q3 + 4 * j, Q1 + 4 * j, NX + 2 * j)
    a("s_waitcnt lgkmcnt(0)")
    a.lds_q = []
    Rs = lambda j: [Q0 + 4 * j, Q1 + 4 * j, Q2 + 4 * j, Q3 + 4 * j]
    for j in (2, 3):
        write4(a, 5, Rs(j), 32 + 1024 * (j - 2), CSTR_A)
    a("v_subrev_u32 v72, 992, v5")
    a("s_mov_b32 exec_lo, 0")
    a("s_mov_b32 exec_hi, 0xc0000000")
    write4(a, 72, Rs(1), 0, CSTR_A)
    a("s_mov_b64 exec, -1")
    cv0 = Conv(a, 128, 96, [], {7: 0, 6: 1, 5: 2, 4: 3}, emod=32)
    for eps in range(8):
        for E in (7, 6, 5, 4):
            cv0.issue_F(cv0.slot_of[E], E, eps)
    for j in (0, 1):
        write4(a, 5, Rs(j), 32 + 1024 * j, CSTR_A)
    a(f"v_lshlrev_b32 v5, 2, v{V_LANE}")
    a(f"v_add_u32 v5, s{SKC}, v5")
    write_pads(a, 5, 64, Q0, Q1, CSTR_A)
    q0 = list(a.lds_q)
    a(f"s_lshl_b32 s5, s{S_W}, 9")
    a(f"s_sub_u32 s5, {A_XR + 4088}, s5")
    a(f"v_lshlrev_b32 v4, 3, v{V_LANE}")
    a(f"s_lshl_b32 s30, s{S_W}, 12")
    a(f"s_add_u32 s30, s30, {A_S}")
    a("v_add_u32 v5, s30, v4")
    a("v_sub_u32 v4, s5, v4")
    a(f"v_and_b32 v6, 3, v{V_LANE}")
    a(f"v_lshrrev_b32 v7, 2, v{V_LANE}")
    a("v_lshl_add_u32 v6, v6, 4, v7")
    a("v_lshlrev_b32 v6, 3, v6")
    a(f"s_lshl_b32 s5, s{S_W}, 9")
    a(f"s_add_u32 s5, s5, {A_S}")
    a("v_add_u32 v6, s5, v6")
    a(f"s_lshl_b32 s30, s{S_W}, 2")
    a(f"v_add_u32 v7, s30, v{V_ZERO}")
    ACC, GB, FB = 96, 80, 128
    PSTEP = int(os.environ.get("PSTEP", "7"))
    FSTEP = int(os.environ.get("FSTEP", "10"))
    G4 = [80, 84, 88, 92]
    GX = [32 + 4 * i for i in range(8)]
    for c in range(4):
        for j in range(4):
            for hh in range(2):
                src = 64 + 2 * (2 * c + hh) + (j >> 1)
                dst = 32 + 8 * c + 2 * j + hh
                if j & 1:
                    a(f"s_and_b32 s{dst}, s{src}, 0xffff0000")
                else:
                    a(f"s_lshl_b32 s{dst}, s{src}, 16")
    a(f"s_lshr_b32 s5, s{S_W}, 1")
    a("s_cmp_eq_u32 s5, 1")
    a("s_cselect_b32 s30, s81, s80")
    a("s_cmp_eq_u32 s5, 2")
    a("s_cselect_b32 s30, s82, s30")
    a("s_cmp_eq_u32 s5, 3")
    a("s_cselect_b32 s30, s83, s30")
    a(f"s_and_b32 s5, s{S_W}, 1")
    a("s_lshl_b32 s5, s5, 4")
    a("s_lshr_b32 s30, s30, s5")
    a("s_and_b32 s30, s30, 0xffff")
    build_FD(a, FD, T, 30)
    a(f"s_cmp_lg_u32 s{S_W}, 0")
    a("s_cbranch_scc1 L_A_halo_ok")
    for i in range(12):
        a(f"s_mov_b32 s{HS + i}, 0")
    a.label("L_A_halo_ok")

    def produce():
        a.vm_need("x")
        KP, AC = T + 4, T + 18
        for c in range(4):
            for j in range(3):
                a(f"v_mov_b32 v{T + j}, s{HS + 4 * j + c}")
            for r in range(4):
                a(f"v_lshlrev_b32 v{KP + 6 + 2 * r}, 16, v{KR + 4 * r + c}")
                a(f"v_and_b32 v{KP + 7 + 2 * r}, 0xffff0000, v{KR + 4 * r + c}")
            for j in range(3):
                a(f"v_mov_b32_dpp v{T + j}, v{KR + 4 * (j + 1) + c} wave_shr:1 row_mask:0xf bank_mask:0xf")
            W = lambda j: f"s[{32 + 8 * c + 2 * j}:{33 + 8 * c + 2 * j}]"
            for r in range(4):
                a(f"v_pk_mul_f32 {vr(AC + 2 * r, 2)}, {W(0)}, {vr(KP + 6 + 2 * r, 2)}")
            for j in range(3):
                a(f"v_lshlrev_b32 v{KP + 2 * j}, 16, v{T + j}")
                a(f"v_and_b32 v{KP + 1 + 2 * j}, 0xffff0000, v{T + j}")
            for jj in (1, 2, 3):
                for r in range(4):
                    a(f"v_pk_fma_f32 {vr(AC + 2 * r, 2)}, {W(jj)}, {vr(KP + 2 * (3 + r - jj), 2)}, {vr(AC + 2 * r, 2)}")
            for r in range(4):
                a(f"v_lshlrev_b32 v{KP + 2 * r}, 16, v{VR + 4 * r + c}")
                a(f"v_and_b32 v{KP + 1 + 2 * r}, 0xffff0000, v{VR + 4 * r + c}")
            for r in range(4):
                a(f"v_pk_mul_f32 {vr(AC + 2 * r, 2)}, {vr(AC + 2 * r, 2)}, {vr(KP + 2 * r, 2)}")
            for hh in range(2):
                o = KP + 8 + 2 * hh
                a(f"v_cvt_pk_bf16_f32 v{o}, v{AC + 6 + hh}, v{AC + 4 + hh}")
                a(f"v_cvt_pk_bf16_f32 v{o + 1}, v{AC + 2 + hh}, v{AC + hh}")
                a.lds(f"ds_write_b64 v4, {vr(o, 2)} offset:{XSTR * (2 * c + hh)}")
        one_lane(a, f"ds_write_b32 v7, v{V_ONE} offset:{FLAGS}")

    def qload(j):
        if j < 4:
            a.vm(f"buffer_load_dwordx4 {vr(16 + 4 * j, 4)}, v2, s[{SRD_Q}:{SRD_Q + 3}], 0 offen offset:{1280 * j}", "q0")
        else:
            a.vm(f"buffer_load_dwordx4 {vr(16 + 4 * j, 4)}, v{V_ROW}, s[{SRD_Q}:{SRD_Q + 3}], 0 offen offset:{1280 * (j - 4)}", "q1")

    def on_done(p):
        a(f"v_cvt_pk_bf16_f32 v78, v{ACC + 4 * p}, v{ACC + 4 * p + 1}")
        a(f"v_cvt_pk_bf16_f32 v79, v{ACC + 4 * p + 2}, v{ACC + 4 * p + 3}")
        a.lds(f"ds_write_b64 v5, v[78:79] offset:{512 * p}")
        one_lane(a, f"ds_add_u32 v{V_ZERO}, v{V_ONE} offset:{FLAGS + 32 + 4 * p}")

    def final(second):
        QR = 16 + 16 * second
        co = FLAGS + 32 - (0 if second else 16)
        so = 2048 if second else 0
        a.lds(f"ds_read_b32 v{V_FLG}, v7 offset:{co}", "cnt")
        flag_check(a, co, "cnt", 8, vaddr=7)
        Y = 48
        for d in range(8):
            a.lds(f"ds_read_b64 {vr(Y + 2 * d, 2)}, v6 offset:{4096 * d + so}", ("y", d))
        if second:
            a(f"v_lshlrev_b32 v2, 1, v{V_ROW}")
        else:
            a("v_lshlrev_b32 v2, 1, v2")
        a("v_subrev_u32 v2, s6, v2")
        a.vm_need("q1" if second else "q0")
        SP, QP = 80, 88
        for c in range(4):
            for r in range(4):
                a(f"v_lshlrev_b32 v{QP + 2 * r}, 16, v{QR + 4 * r + c}")
                a(f"v_and_b32 v{QP + 2 * r + 1}, 0xffff0000, v{QR + 4 * r + c}")
            a.lds_need(("y", 2 * c + 1))
            for hh in range(2):
                y = Y + 2 * (2 * c + hh)
                a(f"v_lshlrev_b32 v{SP + hh}, 16, v{y}")
                a(f"v_and_b32 v{SP + 2 + hh}, 0xffff0000, v{y}")
                a(f"v_lshlrev_b32 v{SP + 4 + hh}, 16, v{y + 1}")
                a(f"v_and_b32 v{SP + 6 + hh}, 0xffff0000, v{y + 1}")
            for r in range(4):
                a(f"v_pk_mul_f32 {vr(SP + 2 * r, 2)}, {vr(SP + 2 * r, 2)}, {vr(QP + 2 * r, 2)}")
            for r in range(4):
                a(f"v_cvt_pk_bf16_f32 v{QR + 4 * r + c}, v{SP + 2 * r}, v{SP + 2 * r + 1}")
        for r in range(4):
            if r == 2:
                a("v_add_u32 v2, 5120, v2")
            a.vm(f"buffer_store_dwordx4 {vr(QR + 4 * r, 4)}, v2, s[{SRD_O}:{SRD_O + 3}], 0 offen offset:{2560 * (r % 2)}", "st")

    def sched(hi):
        st = [
            dict(D=0, Es=[7, 6, 5, 4], reload=(7, 3), need=0),
            dict(D=1, Es=[6, 5, 4, 3], reload=(6, 2), need=1),
            dict(D=2, Es=[5, 4, 3, 2], reload=(5, 1), need=2),
            dict(D=3, Es=[4, 3, 2, 1], reload=(4, 0), need=3),
            dict(D=0, Es=[3, 2, 1, 0], done=[0]),
            dict(D=1, Es=[2, 1, 0], done=[1]),
            dict(D=2, Es=[1, 0], done=[2]),
            dict(D=3, Es=[0], done=[3]),
            dict(D=4, Es=[3, 2, 1, 0], done=[4], need=4),
            dict(D=5, Es=[2, 1, 0], done=[5], need=5),
            dict(D=6, Es=[1, 0], done=[6], need=6),
            dict(D=7, Es=[0], done=[7], need=7),
        ]
        nop = lambda: None
        if hi:
            st[PSTEP]["pool"] = G4 + [48 + 4 * i for i in range(6)]
            st[FSTEP]["pre"] = lambda: final(0)
            st[FSTEP]["pool"] = G4 + [48 + 4 * i for i in range(6)]
            st[PSTEP]["pre"] = produce
            st[PSTEP]["fill"] = deque([(lambda j=j: qload(j)) for j in range(8)])
        else:
            st[1]["pool_add"] = GX
        return st

    a(f"s_cmp_ge_u32 s{S_W}, 4")
    a("s_cbranch_scc1 L_A_hi")
    for hi in (0, 1):
        if hi:
            a.label("L_A_hi")
            a.vm_q = []
            a(f"v_subrev_u32 v2, {1024 * 1280}, v{V_ROW}")
            a("v_subrev_u32 v6, 2048, v6")
        else:
            a.vm_q = ["x"] * 8
        a.lds_q = list(q0)
        cv = Conv(a, FB, ACC, G4, {7: 0, 6: 1, 5: 2, 4: 3}, FD=FD, emod=32)
        a.stamp(3)
        if not hi:
            produce()
        else:
            for i in range(8):
                xload(i)
            if not os.environ.get("NOPRIO"):
                a("s_setprio 1")
        a.stamp(4)
        cv.run(sched(hi), on_done)
        a.stamp(8)
        if hi:
            a("s_setprio 0")
            final(1)
        a.stamp(11)
        a.stamp_out()
        a("s_endpgm")


def path_B(a):
    a.label("L_B")
    a.vm_q = []
    a.lds_q = []
    a("s_sub_u32 s6, s6, s68")
    a("s_lshr_b32 s71, s6, 3")
    a("s_add_u32 s71, s71, s67")
    a("s_and_b32 s72, s6, 7")
    a("s_lshl_b32 s71, s71, 5")
    a("s_lshl_b32 s72, s72, 2")
    a(f"s_add_u32 s{S_CH0}, s71, s72")
    a(f"s_lshr_b32 s64, s{S_W}, 1")
    a(f"s_and_b32 s65, s{S_W}, 1")
    a(f"s_add_u32 s5, s{S_CH0}, s64")
    a("s_lshl_b32 s5, s5, 8")
    a("s_lshl_b32 s71, s65, 7")
    a("s_add_u32 s5, s5, s71")
    a(f"v_lshlrev_b32 v2, 1, v{V_LANE}")
    a("v_add_u32 v2, s5, v2")
    PR = 16
    for i, nm in enumerate(["A_re", "A_im", "B_re", "B_im", "C_re", "C_im"]):
        a.vm(f"global_load_ushort v{PR + i}, v2, s[{P[nm]}:{P[nm] + 1}]", "par")
    a(f"s_lshl_b32 s5, s{S_CH0}, 1")
    a(f"s_load_dwordx2 s[88:89], s[{P['log_dt']}:{P['log_dt'] + 1}], s5")
    a(f"s_load_dwordx2 s[90:91], s[{P['Dskip']}:{P['Dskip'] + 1}], s5")
    a("s_barrier")
    prefetch_setup(a)
    a(f"s_cmp_lt_u32 s{S_W}, 4")
    a("s_cbranch_scc1 L_B_nopf0")
    prefetch_kv(a)
    a.label("L_B_nopf0")
    UPF = True
    a(f"s_lshl_b32 s6, s{S_CH0}, 1")
    mk_srd(a, SRD_K, P['u'], 2621440)
    mk_srd(a, SRD_O, P['out'], 5242880)
    if not os.environ.get("NOUPF"):
        a(f"s_cmp_lt_u32 s{S_W}, 4")
        a("s_cbranch_scc1 L_B_nopf1")
        a(f"s_lshr_b32 s5, s{S_CH0}, 2")
        a("s_and_b32 s5, s5, 7")
        a("s_lshl_b32 s5, s5, 2")
        a(f"s_add_u32 s5, s5, s{S_W}")
        a("s_sub_u32 s5, s5, 4")
        a("s_mul_i32 s5, s5, 81920")
        a("s_add_u32 s5, s5, s6")
        a(f"buffer_load_dword v229, s[{SRD_K}:{SRD_K + 3}], s5 offen lds")
        prefetch_kv(a, True)
        a.label("L_B_nopf1")
    a(f"s_mul_i32 s7, s{S_W}, {256 * 1280}")
    a("s_add_u32 s7, s7, s6")
    a(f"v_mul_u32_u24 v{V_ROW}, 5120, v{V_LANE}")
    a(f"v_add_u32 v{V_ROW}, s7, v{V_ROW}")
    UR = [202, 230, 252, 254]
    UR2 = [170, 172, 174, 176]

    def uloads(R, second):
        so = "s93" if second else "0"
        for j in range(4):
            a(f"buffer_load_dwordx2 {vr(R[j], 2)}, v{V_ROW}, s[{SRD_K}:{SRD_K + 3}], {so} offen offset:{1280 * j}")

    def uprod(R, t, second, cnt):
        a(f"s_waitcnt vmcnt({cnt})")
        for d in range(4):
            c, hh = d // 2, d % 2
            sel = "s78" if hh == 0 else "s79"
            a(f"v_perm_b32 v{t + 2 * d}, v{R[2] + c}, v{R[3] + c}, {sel}")
            a(f"v_perm_b32 v{t + 2 * d + 1}, v{R[0] + c}, v{R[1] + c}, {sel}")
            a(f"ds_write_b64 v4, {vr(t + 2 * d, 2)} offset:{XSTR * d + (0 if second else 2048)}")
        a(f"ds_write_b32 v5, v{V_ONE} offset:{FLAGS + 16 * second}")

    a(f"s_mov_b32 s93, {1024 * 1280}")
    a(f"s_mul_i32 s84, s64, {KSTR_B}")
    a(f"s_add_u32 s84, s84, {B_KC}")
    a(f"s_mul_i32 s85, s64, {XSTR}")
    a(f"s_add_u32 s85, s85, {B_XR}")
    a(f"s_mul_i32 s86, s{S_W}, {STW}")
    a(f"s_add_u32 s86, s86, {B_ST}")
    a(f"s_mul_i32 s87, s64, {2 * STW}")
    a(f"s_add_u32 s87, s87, {B_ST}")
    a("v_mov_b32 v6, 0")
    a("v_mov_b32 v7, 0")
    T = 24
    a(f"v_lshlrev_b32 v{T}, 3, v{V_LANE}")
    a(f"v_add_u32 v{T}, s85, v{T}")
    a(f"ds_write_b64 v{T}, v[6:7] offset:4096")
    conv_addrs(a, T, 84, 85, CSTR_B)
    GA = 232
    a("s_lshl_b32 s5, s65, 10")
    a(f"v_lshlrev_b32 v{T}, 3, v{V_LANE}")
    a(f"v_add_u32 v{T}, s5, v{T}")
    a(f"v_cvt_f32_u32 v{T + 1}, v{T}")
    a(f"s_sub_u32 s5, s87, {17024 * 4}")
    a("s_movk_i32 s71, 127")
    for rd in range(2):
        for x in range(0, 9, 2):
            g = GA + 9 * rd + x
            o0, o1 = float(512 * rd + x), float(512 * rd + x + 1)
            a(f"v_add_f32 v{T + 2}, {f32bits(o0):#x}, v{T + 1}")
            a(f"v_add_f32 v{T + 3}, {f32bits(o1):#x}, v{T + 1}")
            a(f"v_cvt_pk_bf16_f32 v{T + 2}, v{T + 2}, v{T + 3}")
            for y in range(2):
                if x + y > 8:
                    continue
                if y == 0:
                    a(f"v_and_b32 v{g}, 0xffff, v{T + 2}")
                else:
                    a(f"v_lshrrev_b32 v{g + 1}, 16, v{T + 2}")
                a(f"v_subrev_u32 v{g + y}, 17024, v{g + y}")
                if rd == 0:
                    a(f"v_add_u32 v{T + 3}, {x + y}, v{T}")
                    a(f"v_med3_i32 v{g + y}, v{g + y}, v{T + 3}, s71")
                a(f"v_lshrrev_b32 v{T + 3}, 3, v{g + y}")
                a(f"v_add_u32 v{g + y}, v{g + y}, v{T + 3}")
                a(f"v_lshl_add_u32 v{g + y}, v{g + y}, 2, s87")
    a(f"v_lshlrev_b32 v250, 1, v{T}")
    a("v_add_u32 v250, s84, v250")
    WA, RA = 216, 224
    a(f"v_lshlrev_b32 v{WA}, 2, v{V_LANE}")
    a(f"v_add_u32 v{WA}, s86, v{WA}")
    for i in range(1, 8):
        a(f"v_add_u32 v{WA + i}, {1088 * i}, v{WA}")
    a(f"v_and_b32 v{T}, 15, v{V_LANE}")
    a(f"v_lshrrev_b32 v{T + 1}, 4, v{V_LANE}")
    a(f"v_mul_u32_u24 v{RA}, 544, v{T}")
    a(f"v_lshl_add_u32 v{RA}, v{T + 1}, 4, v{RA}")
    a(f"v_add_u32 v{RA}, s86, v{RA}")
    SA = 225
    a("s_mov_b32 s5, s86")
    a(f"v_lshrrev_b32 v{SA}, 1, v{T + 1}")
    a(f"v_lshlrev_b32 v{SA}, 7, v{SA}")
    a(f"v_and_b32 v{T + 2}, 1, v{T + 1}")
    a(f"v_lshl_add_u32 v{SA}, v{T + 2}, 2, v{SA}")
    a(f"v_lshl_add_u32 v{SA}, v{T}, 3, v{SA}")
    a(f"v_lshrrev_b32 v{T + 4}, 3, v{SA}")
    a(f"v_add_u32 v{SA}, v{SA}, v{T + 4}")
    a(f"v_lshl_add_u32 v{SA}, v{SA}, 2, s5")
    a(f"v_lshlrev_b32 v{SA + 1}, 6, v{T + 1}")
    a(f"v_add_u32 v{SA + 1}, 256, v{SA + 1}")
    a(f"v_cmp_gt_u32 vcc, 2, v{T + 1}")
    a(f"v_lshlrev_b32 v{T + 2}, 2, v{T}")
    a(f"v_lshlrev_b32 v{T + 3}, 1, v{T}")
    a(f"v_cndmask_b32 v{T + 2}, v{T + 3}, v{T + 2}, vcc")
    a(f"v_add_u32 v{SA + 1}, v{SA + 1}, v{T + 2}")
    a(f"v_lshrrev_b32 v{T + 4}, 3, v{SA + 1}")
    a(f"v_add_u32 v{SA + 1}, v{SA + 1}, v{T + 4}")
    a(f"v_lshl_add_u32 v{SA + 1}, v{SA + 1}, 2, s5")
    a(f"v_mov_b32 v{T + 2}, 144")
    a(f"v_cndmask_b32_e64 v{T + 2}, v{T + 2}, 8, vcc")
    a(f"v_add_u32 v{SA + 2}, v{SA + 1}, v{T + 2}")
    a(f"v_lshl_add_u32 v{SA + 3}, v{T + 1}, 6, v{T}")
    a(f"v_add_u32 v{SA + 3}, 512, v{SA + 3}")
    a(f"v_lshrrev_b32 v{T + 4}, 3, v{SA + 3}")
    a(f"v_add_u32 v{SA + 3}, v{SA + 3}, v{T + 4}")
    a(f"v_lshl_add_u32 v{SA + 3}, v{SA + 3}, 2, s5")
    a(f"s_lshl_b32 s5, s{S_W}, 9")
    a(f"s_sub_u32 s5, {B_XR + 4088 - 2048}, s5")
    a(f"v_lshlrev_b32 v4, 3, v{V_LANE}")
    a("v_sub_u32 v4, s5, v4")
    a("s_lshl_b32 s5, s64, 2")
    a(f"v_add_u32 v2, s5, v{V_ZERO}")
    a(f"s_lshl_b32 s5, s{S_W}, 2")
    a(f"v_add_u32 v5, s5, v{V_ZERO}")
    a("s_waitcnt lgkmcnt(0)")
    a("s_lshr_b32 s5, s64, 1")
    a("s_cmp_eq_u32 s5, 0")
    a("s_cselect_b32 s66, s88, s89")
    a("s_cselect_b32 s92, s90, s91")
    a("s_and_b32 s5, s64, 1")
    a("s_lshl_b32 s5, s5, 4")
    a("s_lshr_b32 s66, s66, s5")
    a("s_lshl_b32 s66, s66, 16")
    a("s_lshr_b32 s92, s92, s5")
    a("s_and_b32 s92, s92, 0xffff")
    L2E = 1.4426950408889634
    I2P = 0.15915494309189535
    a(f"s_mov_b32 s68, {f32bits(f32(L2E)):#x}")
    a(f"s_mov_b32 s69, {f32bits(L2E - f32(L2E)):#x}")
    a(f"s_mov_b32 s70, {f32bits(0.6931471805599453):#x}")
    a(f"s_mov_b32 s71, {f32bits(f32(I2P)):#x}")
    a(f"s_mov_b32 s72, {f32bits(I2P - f32(I2P)):#x}")
    a(f"v_mov_b32 v{T}, s66")
    a(f"v_mul_f32 v{T + 1}, s68, v{T}")
    a(f"v_fma_f32 v{T + 2}, v{T}, s68, -v{T + 1}")
    a(f"v_fmac_f32 v{T + 2}, s69, v{T}")
    a(f"v_exp_f32 v{T + 3}, v{T + 1}")
    a(f"v_mul_f32 v{T + 2}, s70, v{T + 2}")
    a("s_nop 0")
    a(f"v_fma_f32 v{T + 3}, v{T + 3}, v{T + 2}, v{T + 3}")
    a(f"v_cvt_pk_bf16_f32 v{T + 3}, v{T + 3}, v{T + 3}")
    a(f"v_lshlrev_b32 v{T + 3}, 16, v{T + 3}")
    a.stamp(1)
    a(f"s_cmp_lt_u32 s{S_W}, 4")
    a("s_cbranch_scc1 L_B_w0")
    a("s_waitcnt vmcnt(5)")
    a("s_branch L_B_w1")
    a.label("L_B_w0")
    a("s_waitcnt vmcnt(0)")
    a.label("L_B_w1")
    a.stamp(2)
    for i in range(6):
        a(f"v_lshlrev_b32 v{PR + i}, 16, v{PR + i}")
    for i in range(4):
        a(f"v_mul_f32 v{PR + i}, v{T + 3}, v{PR + i}")

    EE, ZZ, HH = 48, 80, 96
    Z128, Z256, Z512, Z1024 = 130, 132, 134, 136
    TP, PK, KD = 138, 170, 204

    def batch(fns):
        n = max(len(f) for f in fns)
        for i in range(n):
            for f in fns:
                if i < len(f):
                    a(f[i])

    def cmul_i(d, x, y, t):
        return [f"v_pk_mul_f32 {vr(t, 2)}, {vr(x, 2)}, {vr(y, 2)} op_sel:[0,0] op_sel_hi:[1,0]",
                f"v_pk_fma_f32 {vr(d, 2)}, {vr(x, 2)}, {vr(y, 2)}, {vr(t, 2)} op_sel:[1,1,0] op_sel_hi:[0,1,1] neg_lo:[1,0,0]"]

    def cmuls(lst):
        batch([cmul_i(d, x, y, TP + 2 * i) for i, (d, x, y) in enumerate(lst)])

    def anchor_i(d, sreg, t, conj):
        return [f"v_mul_f32 v{t}, s{sreg}, v{PR}",
                f"v_mul_f32 v{t + 1}, s{sreg}, v{PR + 1}",
                f"v_mul_f32 v{t}, s68, v{t}",
                f"v_mul_f32 v{t + 2}, s71, v{t + 1}",
                f"v_exp_f32 v{t}, v{t}",
                f"v_fma_f32 v{t + 3}, v{t + 1}, s71, -v{t + 2}",
                f"v_fmac_f32 v{t + 3}, s72, v{t + 1}",
                f"v_fract_f32 v{t + 2}, v{t + 2}",
                f"v_add_f32 v{t + 2}, v{t + 2}, v{t + 3}",
                f"v_cos_f32 v{t + 1}, v{t + 2}",
                f"v_sin_f32 v{t + 3}, v{t + 2}",
                f"v_mul_f32 v{d}, v{t}, v{t + 1}",
                (f"v_mul_f32_e64 v{d + 1}, -v{t}, v{t + 3}" if conj else f"v_mul_f32 v{d + 1}, v{t}, v{t + 3}")]

    a("s_mov_b32 s80, 0x0000bf80")
    a("s_mov_b32 s81, 0xbf800000")
    anchors = [(EE + 2, 8, True), (EE + 16, 64, True), (ZZ + 2, 1, False), (Z128, 128, False), (Z1024, 1024, False)]
    for i, (d, lam, cj) in enumerate(anchors):
        a(f"s_mov_b32 s{73 + i}, {f32bits(float(lam)):#x}")
    batch([anchor_i(d, 73 + i, TP + 4 * i, cj) for i, (d, lam, cj) in enumerate(anchors)]
          + [cmul_i(HH, PR + 4, PR + 2, TP + 20)])
    a(f"v_mov_b32 v{EE}, 1.0")
    a(f"v_mov_b32 v{EE + 1}, 0")
    e = lambda r: EE + 2 * r
    z = lambda r: ZZ + 2 * r
    H = lambda h: HH + 2 * h
    cmuls([(e(2), e(1), e(1)), (z(2), z(1), z(1)), (Z256, Z128, Z128), (H(1), H(0), Z128), (e(9), e(8), e(1)),
           (H(8), H(0), Z1024)])
    cmuls([(e(3), e(2), e(1)), (e(4), e(2), e(2)), (z(3), z(2), z(1)), (z(4), z(2), z(2)), (Z512, Z256, Z256),
           (H(2), H(0), Z256), (H(3), H(1), Z256), (e(10), e(8), e(2)), (H(9), H(1), Z1024), (H(16), H(8), Z1024)])
    cmuls([(e(5), e(4), e(1)), (e(6), e(4), e(2)), (e(7), e(4), e(3)), (e(11), e(8), e(3)), (e(12), e(8), e(4)),
           (z(5), z(4), z(1)), (z(6), z(4), z(2)), (z(7), z(4), z(3)),
           (H(4), H(0), Z512), (H(5), H(1), Z512), (H(6), H(2), Z512), (H(7), H(3), Z512),
           (H(10), H(2), Z1024), (H(11), H(3), Z1024)])
    cmuls([(e(13), e(8), e(5)), (e(14), e(8), e(6)), (e(15), e(8), e(7)),
           (H(12), H(4), Z1024), (H(13), H(5), Z1024), (H(14), H(6), Z1024), (H(15), H(7), Z1024)])

    def split_i(x, row, t):
        hi, lo = PK + 2 * row, PK + 2 * row + 1
        return [f"v_cvt_pk_bf16_f32 v{hi}, v{x}, v{x + 1}",
                f"v_dot2_f32_bf16 v{t}, v{hi}, s80, v{x}",
                f"v_dot2_f32_bf16 v{t + 1}, v{hi}, s81, v{x + 1}",
                f"v_cvt_pk_bf16_f32 v{lo}, v{t}, v{t + 1}"]

    def wr_row(row):
        o = 136 * (row % 2)
        a.lds(f"ds_write2_b32 v{WA + row // 2}, v{PK + 2 * row}, v{PK + 2 * row + 1} offset0:{o} offset1:{o + 64}")

    def put_rows(vals, write=True):
        gs = 8 if len(vals) % 8 == 0 else 5
        for i0 in range(0, len(vals), gs):
            grp = vals[i0:i0 + gs]
            assert len(grp) >= 4
            batch([split_i(x, row, TP + 2 * i) for i, (x, row) in enumerate(grp)])
            if write:
                for x, row in grp:
                    wr_row(row)

    def read_frags(base, tag):
        for ks in range(4):
            a.lds(f"ds_read_b128 {vr(base + 4 * ks, 4)}, v{RA} offset:{64 * ks}", None)
            a.lds(f"ds_read_b128 {vr(base + 16 + 4 * ks, 4)}, v{RA} offset:{256 + 64 * ks}", tag)

    put_rows([(e(r), r) for r in range(16)])
    E2F = EE
    read_frags(E2F, "E2")
    RT = TP + 16

    def mfma_tile(m, E1F, tag):
        a.lds_need(tag)
        c = vr(KD + 4 * m, 4)
        first = True
        for ks in range(4):
            for (x, y) in ((16, 0), (0, 16), (0, 0)):
                src = "0" if first else c
                first = False
                a(f"v_mfma_f32_16x16x32_bf16 {c}, {vr(E1F + x + 4 * ks, 4)}, {vr(E2F + y + 4 * ks, 4)}, {src}")

    free_pairs = [16 + 2 * i for i in range(16)]
    t0, lst, k = [], [], 0
    for h in range(2):
        t0.append((H(h), 8 * h))
        for eps in range(1, 8):
            lst.append((free_pairs[k], H(h), z(eps)))
            t0.append((free_pairs[k], 8 * h + eps))
            k += 1
    cmuls(lst)
    put_rows(sorted(t0, key=lambda v: v[1]))
    t1, lst, k = [], [], 0
    for hp in range(2):
        t1.append((H(2 + hp), 4 * hp))
        for ep in range(1, 4):
            lst.append((free_pairs[k], H(2 + hp), z(2 * ep)))
            t1.append((free_pairs[k], 4 * hp + ep))
            k += 1
    for hp in range(4):
        t1.append((H(4 + hp), 8 + 2 * hp))
        lst.append((free_pairs[k], H(4 + hp), z(4)))
        t1.append((free_pairs[k], 8 + 2 * hp + 1))
        k += 1
    cmuls(lst)
    put_rows(sorted(t1, key=lambda v: v[1]), write=False)
    E1F, E1G = 80, 16
    read_frags(E1F, "T0")
    for row in range(16):
        wr_row(row)
    read_frags(E1G, "T1")
    put_rows([(H(8 + hp), hp) for hp in range(9)])
    a(f"s_cmp_ge_u32 s{S_W}, 4")
    a("s_cbranch_scc1 L_B_nou5")
    uloads(UR, 0)
    uloads([188, 190, 192, 194], 1)
    prefetch_q(a)
    a.label("L_B_nou5")
    mfma_tile(0, E1F, "T0")
    mfma_tile(1, E1G, "T1")
    read_frags(E1F, "T2")
    mfma_tile(2, E1F, "T2")
    a.stamp(3)
    a("s_nop 7")
    for j in range(4):
        a.lds(f"ds_write_b32 v{SA}, v{KD + j} offset:{4 * j}")
    a.lds(f"ds_write_b32 v{SA + 1}, v{KD + 4}")
    a.lds(f"ds_write_b32 v{SA + 1}, v{KD + 5} offset:4")
    a.lds(f"ds_write_b32 v{SA + 2}, v{KD + 6}")
    a.lds(f"ds_write_b32 v{SA + 2}, v{KD + 7} offset:4")
    for j in range(4):
        a.lds(f"ds_write_b32 v{SA + 3}, v{KD + 8 + j} offset:{72 * j}")
    one_lane(a, f"ds_add_u32 v2, v{V_ONE} offset:{FLAGS + 64}")
    GX2 = 140
    a("s_lshl_b32 s5, s65, 10")
    a(f"v_lshlrev_b32 v144, 3, v{V_LANE}")
    a("v_add_u32 v144, s5, v144")
    a("v_cvt_f32_u32 v145, v144")
    a("s_movk_i32 s71, 127")
    for rd in range(2):
        a(f"v_add_f32 v146, {f32bits(float(512 * rd + 9)):#x}, v145")
        a(f"v_add_f32 v147, {f32bits(float(512 * rd + 10)):#x}, v145")
        a("v_cvt_pk_bf16_f32 v146, v146, v147")
        a(f"v_and_b32 v{GX2 + 2 * rd}, 0xffff, v146")
        a(f"v_lshrrev_b32 v{GX2 + 2 * rd + 1}, 16, v146")
        for y in range(2):
            g = GX2 + 2 * rd + y
            a(f"v_subrev_u32 v{g}, 17024, v{g}")
            if rd == 0:
                a(f"v_add_u32 v147, {9 + y}, v144")
                a(f"v_med3_i32 v{g}, v{g}, v147, s71")
            a(f"v_lshrrev_b32 v147, 3, v{g}")
            a(f"v_add_u32 v{g}, v{g}, v147")
            a(f"v_lshl_add_u32 v{g}, v{g}, 2, s87")
    a.lds(f"ds_read_b32 v{V_FLG}, v2 offset:{FLAGS + 64}", "tc")
    flag_check(a, FLAGS + 64, "tc", 2, vaddr=2)
    a.stamp(6)
    GV = 48
    for rd in range(2):
        for x in range(11):
            ad = GA + 9 * rd + x if x < 9 else GX2 + 2 * rd + (x - 9)
            a.lds(f"ds_read2st64_b32 {vr(GV + 22 * rd + 2 * x, 2)}, v{ad} offset0:0 offset1:{STW // 256}", ("g", rd))
    FD = 44
    build_FD(a, FD, 92, 92)
    for rd in range(2):
        a.lds_need(("g", rd))
        g0 = GV + 22 * rd
        for x in range(11):
            a(f"v_add_f32 v{g0 + 2 * x}, v{g0 + 2 * x}, v{g0 + 2 * x + 1}")
        o = 96 + 16 * rd
        for c in range(4):
            for x in range(4):
                a(f"v_cvt_pk_bf16_f32 v{o + 4 * c + x}, v{g0 + 2 * (2 * x + c)}, v{g0 + 2 * (2 * x + c + 1)}")
        write4(a, 250, [o, o + 4, o + 8, o + 12], 32 + 1024 * rd, CSTR_B)
    a("s_cmp_lg_u32 s65, 0")
    a("s_cbranch_scc1 L_B_nopad")
    a(f"v_lshlrev_b32 v32, 2, v{V_LANE}")
    a("v_add_u32 v32, s84, v32")
    write_pads(a, 32, 34, 96, 100, CSTR_B)
    a.label("L_B_nopad")
    one_lane(a, f"ds_add_u32 v2, v{V_ONE} offset:{FLAGS + 80}")
    a(f"s_cmp_ge_u32 s{S_W}, 4")
    a("s_cbranch_scc1 L_B_nou6")
    a("s_mov_b32 s78, 0x05040100")
    a("s_mov_b32 s79, 0x07060302")
    uprod(UR, TP, 0, 6)
    uprod([188, 190, 192, 194], TP + 8, 1, 2)
    a.label("L_B_nou6")
    a("v_mov_b32 v7, v5")
    a(f"v_lshlrev_b32 v5, 4, v{V_LANE}")
    a("v_add_u32 v5, s86, v5")
    a(f"v_and_b32 v6, 3, v{V_LANE}")
    a(f"v_lshrrev_b32 v32, 2, v{V_LANE}")
    a("v_lshl_add_u32 v6, v6, 4, v32")
    a("v_lshlrev_b32 v6, 4, v6")
    a(f"s_lshl_b32 s5, s{S_W}, 10")
    a(f"s_add_u32 s5, s5, {B_ST}")
    a("v_add_u32 v6, s5, v6")
    a.lds_drain()
    a.lds(f"ds_read_b32 v{V_FLG}, v2 offset:{FLAGS + 80}", "kc")
    flag_check(a, FLAGS + 80, "kc", 2, vaddr=2)
    a.stamp(8)
    ACC, GB, FB = 64, 48, 96

    def on_done(p):
        if os.environ.get("X_NODONE"):
            return
        a.lds(f"ds_write_b128 v5, {vr(ACC + 4 * p, 4)} offset:{1024 * p}")
        if os.environ.get("X_NOSIG"):
            return
        one_lane(a, f"ds_add_u32 v{V_ZERO}, v{V_ONE} offset:{FLAGS + 32 + 4 * p}")

    def final(second):
        co = FLAGS + 32 + 16 * second
        so = 4096 * second
        if second:
            a("s_mov_b32 s7, 8")
        else:
            a(f"s_cmp_lt_u32 s{S_W}, 2")
            a("s_cselect_b32 s7, 4, 8")
        a.lds(f"ds_read_b32 v{V_FLG}, v7 offset:{co}", "cnt")
        flag_check(a, co, "cnt", "s7", vaddr=7)
        Y0, Y1 = 16, 32
        O = 48 + 8 * second
        for d in range(4):
            a(f"ds_read_b128 {vr(Y0 + 4 * d, 4)}, v6 offset:{2 * STW * d + so}")
        sk = a.newlabel("L_sk")
        a(f"v_lshlrev_b32 v2, 1, v{V_ROW}")
        a("v_subrev_u32 v2, s6, v2")
        a(f"v_add_u32 v2, {1280 + second * 1024 * 2560}, v2")
        if not second:
            a(f"s_cmp_lt_u32 s{S_W}, 2")
            a(f"s_cbranch_scc1 {sk}")
        for d in range(4):
            a(f"ds_read_b128 {vr(Y1 + 4 * d, 4)}, v6 offset:{2 * STW * d + STW + so}")
        a("s_waitcnt lgkmcnt(0)")
        for i in range(16):
            a(f"v_add_f32 v{Y0 + i}, v{Y0 + i}, v{Y1 + i}")
        a.label(sk)
        a.lds_drain()
        for r in range(4):
            for c in range(2):
                a(f"v_cvt_pk_bf16_f32 v{O + 2 * r + c}, v{Y0 + 8 * c + r}, v{Y0 + 8 * c + 4 + r}")
            if r == 2:
                a("v_add_u32 v2, 5120, v2")
            a(f"buffer_store_dwordx2 {vr(O + 2 * r, 2)}, v2, s[{SRD_O}:{SRD_O + 3}], 0 offen offset:{2560 * (r % 2)}")

    a("s_cmp_lg_u32 s65, 0")
    a("s_cbranch_scc1 L_B_h1")
    for h in (0, 1):
        if h:
            a.label("L_B_h1")
        a.lds_q = []
        Es = [0, 1, 5] if h == 0 else [2, 3, 4, 6, 7]
        pool = [48, 52, 56, 60] + [16 + 4 * i for i in range(7)]
        cv = Conv(a, FB, ACC, pool, {E: i for i, E in enumerate(Es)}, FD=FD)
        if h == 0:
            plan = [(0, [0], [1]), (1, [0, 1], [5]), (2, [0, 1, 5], []), (0, [1, 5], []), (1, [5], []),
                    (3, [0, 1], []), (4, [0, 1], []), (5, [0, 1], []), (6, [0, 1], []), (7, [0], [])]
        else:
            plan = [(0, [2], [3]), (1, [2, 3], [4]), (2, [2, 3, 4], [6]), (3, [2, 3, 4], [7]), (0, [3, 4, 6, 7], []),
                    (1, [4, 6], []), (4, [2, 3], []), (5, [2], [])]
        last = {}
        for k, (D, E_, ld) in enumerate(plan):
            for E in E_:
                last[E + D] = k
        assert sorted((E, D) for D, E_, _ in plan for E in E_) == sorted((E, D) for E in Es for D in range(8 - E))
        st = [dict(D=D, Es=E_, load=ld, need=D, done=[p for p in last if last[p] == k]) for k, (D, E_, ld) in enumerate(plan)]
        cv.run(st, on_done, jit_first=True)
        a.stamp(9)
        if h == 0:
            a("s_branch L_B_fin")
    a.label("L_B_fin")
    a.lds_drain()
    a(f"s_cmp_ge_u32 s{S_W}, 4")
    a("s_cbranch_scc1 L_B_done")
    if not os.environ.get("X_NOFIN"):
        final(0)
        final(1)
    a.label("L_B_done")
    a.stamp(11)
    a.stamp_out()
    a("s_endpgm")


def gen():
    a = Asm()
    prologue(a)
    path_A(a)
    path_B(a)
    a.lines += a.tail
    a.label("L_end")
    a("s_endpgm")
    return a


def main():
    a = gen()
    ref = open(f"cdna_kernels/{NAME}.s.ref").read()
    head = ref[:ref.index("; @launch")]
    out = head
    out += f"; @launch grid=(256,1,1) block=(512,1,1) lds={LDS_BYTES}\n"
    out += '.amdgcn_target "amdgcn-amd-amdhsa--gfx950"\n.text\n'
    out += f".globl {NAME}_kernel\n.p2align 8\n.type {NAME}_kernel,@function\n{NAME}_kernel:\n"
    out += "\n".join(a.lines) + "\n"
    out += f""".section .rodata,"a"
.p2align 6
.amdhsa_kernel {NAME}_kernel
  .amdhsa_next_free_vgpr 256
  .amdhsa_next_free_sgpr 102
  .amdhsa_accum_offset 256
  .amdhsa_group_segment_fixed_size 0
  .amdhsa_kernarg_size 144
  .amdhsa_user_sgpr_count 2
  .amdhsa_user_sgpr_kernarg_segment_ptr 1
  .amdhsa_system_sgpr_workgroup_id_x 1
.end_amdhsa_kernel
"""
    path = sys.argv[1] if len(sys.argv) > 1 else f"cdna_kernels/{NAME}.s"
    open(path, "w").write(out)
    print("LDS", LDS_BYTES, "lines", len(a.lines))


if __name__ == "__main__":
    main()
```

```python
import sys, struct, os
from collections import deque

NAME = "concat_heads__ssm_conv_h3__ssm_conv_s4__prompt"
PREFETCH = not os.environ.get("NOPF")
DIAG = bool(os.environ.get("DIAG"))


def f32bits(x):
    return struct.unpack("<I", struct.pack("<f", x))[0]


def f32(x):
    return struct.unpack("<f", struct.pack("<f", x))[0]


S_CH0 = 3
S_W = 4


class Asm:
    def __init__(self):
        self.lines = []
        self.lds_q = []
        self.vm_q = []
        self.nlab = 0
        self.tail = []

    def __call__(self, s):
        self.lines.append("    " + s)

    def label(self, s):
        self.lines.append(s + ":")

    def newlabel(self, p="L"):
        self.nlab += 1
        return f"{p}_{self.nlab}"

    def lds(self, s, tag=None):
        self(s)
        self.lds_q.append(tag)

    def lds_need(self, tag):
        idx = None
        for i, t in enumerate(self.lds_q):
            if t == tag:
                idx = i
        if idx is None:
            return
        n = min(len(self.lds_q) - 1 - idx, 15)
        self(f"s_waitcnt lgkmcnt({n})")
        self.lds_q = self.lds_q[len(self.lds_q) - n:] if n else []

    def lds_drain(self):
        self("s_waitcnt lgkmcnt(0)")
        self.lds_q = []

    def vm(self, s, tag=None):
        self(s)
        self.vm_q.append(tag)

    def vm_need(self, tag):
        idx = None
        for i, t in enumerate(self.vm_q):
            if t == tag:
                idx = i
        if idx is None:
            return
        n = min(len(self.vm_q) - 1 - idx, 63)
        self(f"s_waitcnt vmcnt({n})")
        self.vm_q = self.vm_q[len(self.vm_q) - n:] if n else []

    def stamp(self, i):
        if not DIAG:
            return
        self("s_memtime s[98:99]")
        self("s_waitcnt lgkmcnt(0)")
        self(f"v_writelane_b32 v0, s98, {i}")
        self.lds_q = []

    def rstamp(self, i):
        if not DIAG:
            return
        self("s_memrealtime s[98:99]")
        self("s_waitcnt lgkmcnt(0)")
        self(f"v_writelane_b32 v0, s98, {i}")

    def stamp_out(self):
        if not DIAG:
            return
        self("s_waitcnt vmcnt(0)")
        self.stamp(15)
        self.rstamp(14)
        self("s_lshl_b32 s98, s2, 3")
        self(f"s_add_u32 s98, s98, s{S_W}")
        self("s_lshl_b32 s98, s98, 8")
        self("v_lshlrev_b32 v1, 2, v1")
        self("v_add_u32 v1, s98, v1")
        self("global_store_dword v1, v0, s[100:101]")


def vr(a, n=1):
    return f"v{a}" if n == 1 else f"v[{a}:{a + n - 1}]"


XSTR = 4608
FLAGS = 0
CSTR_A = 2112
KSTR_A = 4 * CSTR_A
CSTR_B = 4160
KSTR_B = 4 * CSTR_B
A_KC = 640
A_XR = A_KC + 8 * KSTR_A
A_S = A_XR + 8 * XSTR
A_END = A_S + 8 * 4096
B_KC = 640
B_XR = B_KC + 4 * KSTR_B
B_ST = B_XR + 4 * XSTR
STW = 8704
B_END = B_ST + 8 * STW
LDS_BYTES = max(A_END, B_END)
assert LDS_BYTES <= 163840

SRD_K, SRD_V, SRD_Q, SRD_SK, SRD_O, SRD_PF = 8, 12, 16, 20, 24, 28
P = dict(q=32, k=34, v=36, shift_k=38, ssm_k=40, ssm_D=42, u=44, A_re=46, A_im=48,
         B_re=50, B_im=52, C_re=54, C_im=56, log_dt=58, Dskip=60, out=62)

V_LANE = 1
V_ROW = 3
V_FA = 8
V_GA = 12
V_ZERO = 13
V_ONE = 14
V_FLG = 15
S_MASK = 97
DUMMY = 128


def mk_srd(a, d, p, nbytes):
    a(f"s_mov_b32 s{d}, s{p}")
    a(f"s_mov_b32 s{d + 1}, s{p + 1}")
    a(f"s_mov_b32 s{d + 2}, {nbytes}")
    a(f"s_mov_b32 s{d + 3}, 0x00020000")


def conv_addrs(a, vt, sKC, sXR, cstr):
    a(f"v_and_b32 v{vt}, 15, v{V_LANE}")
    a(f"v_lshrrev_b32 v{vt + 1}, 4, v{V_LANE}")
    a(f"v_add_u32 v{vt + 2}, 1, v{vt}")
    a(f"v_lshrrev_b32 v{vt + 2}, 2, v{vt + 2}")
    a(f"v_lshl_add_u32 v{vt + 2}, v{vt + 1}, 1, v{vt + 2}")
    a(f"v_lshlrev_b32 v{vt + 2}, 3, v{vt + 2}")
    a(f"v_add_u32 v{vt + 3}, 1, v{vt}")
    a(f"v_and_b32 v{vt + 3}, 3, v{vt + 3}")
    a(f"v_mul_u32_u24 v{vt + 3}, {cstr}, v{vt + 3}")
    a(f"v_add3_u32 v{V_FA}, v{vt + 2}, v{vt + 3}, s{sKC}")
    a(f"v_lshlrev_b32 v{vt + 2}, 5, v{vt}")
    a(f"v_lshlrev_b32 v{vt + 3}, 4, v{vt + 1}")
    a(f"v_sub_u32 v{vt + 3}, v{vt + 3}, v{vt + 2}")
    a(f"v_add_u32 v{vt + 3}, 480, v{vt + 3}")
    a(f"v_add_u32 v{V_GA}, s{sXR}, v{vt + 3}")


def write4(a, va, Rs, off, cstr):
    for c, R in enumerate(Rs):
        a.lds(f"ds_write_b128 v{va}, {vr(R, 4)} offset:{off + c * cstr}")


def shift_quad(a, D, R, nx):
    a(f"v_pk_mov_b32 {vr(D, 2)}, {vr(R, 2)}, {vr(R + 2, 2)} op_sel:[1,0]")
    a(f"v_pk_mov_b32 {vr(D + 2, 2)}, {vr(R + 2, 2)}, {vr(nx, 2)} op_sel:[1,0]")


def write_pads(a, va, vp, N0, O0, cstr):
    a(f"v_readlane_b32 s30, v{N0}, 0")
    a(f"v_readlane_b32 s31, v{O0}, 0")
    for i in range(4):
        a(f"v_mov_b32 v{vp + i}, 0")
    a("s_lshl_b32 s5, s30, 16")
    a(f"v_writelane_b32 v{vp + 1}, s5, 7")
    a(f"v_writelane_b32 v{vp + 2}, s30, 7")
    a(f"v_writelane_b32 v{vp + 3}, s5, 6")
    a(f"v_writelane_b32 v{vp + 3}, s31, 7")
    a("s_mov_b64 exec, 0xff")
    for c in range(4):
        a.lds(f"ds_write_b32 v{va}, v{vp + c} offset:{c * cstr}")
    a("s_mov_b64 exec, -1")


def flag_issue(a, off, tag):
    a.lds(f"ds_read_b32 v{V_FLG}, v{V_ZERO} offset:{off}", tag)


def flag_check(a, off, tag, want, vaddr=V_ZERO):
    a.lds_need(tag)
    ok, spin = a.newlabel("L_ok"), a.newlabel("L_spin")
    a(f"v_readfirstlane_b32 s5, v{V_FLG}")
    a(f"s_cmp_lt_u32 s5, {want}")
    a(f"s_cbranch_scc1 {spin}")
    a.label(ok)
    t = a.tail
    t.append(f"{spin}:")
    t.append("    s_mov_b32 s96, 0")
    t.append(f"{spin}_l:")
    t.append("    s_sleep 1")
    t.append(f"    ds_read_b32 v{V_FLG}, v{vaddr} offset:{off}")
    t.append("    s_add_u32 s96, s96, 1")
    t.append("    s_cmp_gt_u32 s96, 0x40000")
    t.append(f"    s_cbranch_scc1 {ok}")
    t.append("    s_waitcnt lgkmcnt(0)")
    t.append(f"    v_readfirstlane_b32 s5, v{V_FLG}")
    t.append(f"    s_cmp_lt_u32 s5, {want}")
    t.append(f"    s_cbranch_scc1 {spin}_l")
    t.append(f"    s_branch {ok}")


def one_lane(a, s, tag=None):
    a.lds(s, tag)


def lane0_addr(a, vd, sbase):
    a(f"v_lshlrev_b32 v{vd}, 2, v{V_LANE}")
    a(f"v_add_u32 v{vd}, {DUMMY}, v{vd}")
    a(f"v_writelane_b32 v{vd}, 0, 0")
    if sbase is not None:
        a(f"v_add_u32 v{vd}, s{sbase}, v{vd}")


def need_tile(a, t):
    ok, spin = a.newlabel("L_ok"), a.newlabel("L_spin")
    a(f"s_bitcmp1_b32 s{S_MASK}, {t}")
    a(f"s_cbranch_scc0 {spin}")
    a.label(ok)
    tl = a.tail
    tl.append(f"{spin}:")
    tl.append("    s_mov_b32 s96, 0")
    tl.append(f"{spin}_l:")
    tl.append(f"    v_lshlrev_b32 v{V_FLG}, 2, v{V_LANE}")
    tl.append(f"    v_and_b32 v{V_FLG}, 31, v{V_FLG}")
    tl.append(f"    ds_read_b32 v{V_FLG}, v{V_FLG} offset:{FLAGS}")
    tl.append("    s_add_u32 s96, s96, 1")
    tl.append("    s_cmp_gt_u32 s96, 0x40000")
    tl.append(f"    s_cbranch_scc1 {ok}")
    tl.append("    s_waitcnt lgkmcnt(0)")
    tl.append(f"    v_cmp_ne_u32 vcc, 0, v{V_FLG}")
    tl.append("    s_nop 1")
    tl.append(f"    s_mov_b32 s{S_MASK}, vcc_lo")
    tl.append(f"    s_bitcmp1_b32 s{S_MASK}, {t}")
    tl.append(f"    s_cbranch_scc1 {ok}")
    tl.append("    s_sleep 1")
    tl.append(f"    s_branch {spin}_l")


JLA = 4


class Conv:
    def __init__(self, a, Fbase, acc, pool, slots, FD=None, maxla=10, emod=64):
        self.a, self.Fbase, self.acc = a, Fbase, acc
        self.emod = emod
        self.FD = FD
        self.free = deque(pool)
        self.slot_of = dict(slots)
        self.touched = set()
        self.maxla = maxla

    def issue_F(self, slot, E, eps):
        a = self.a
        e = 8 * E + eps
        r = self.Fbase + 32 * slot + 4 * eps
        eo = e % self.emod
        a.lds(f"ds_read_b64 {vr(r, 2)}, v{V_FA} offset:{64 * eo}", None)
        a.lds(f"ds_read_b64 {vr(r + 2, 2)}, v{V_FA} offset:{64 * eo + 8}", ("F", E, eps))

    def run(self, steps, on_done, jit_first=False):
        a = self.a
        seq = [(k, eps) for k in range(len(steps)) for eps in range(8)]
        issued = 0
        checked, started, flag_issued = set(), set(), set()
        pending_done = []
        gbuf = {}

        def can_issue(i):
            k, eps = seq[i]
            st = steps[k]
            if not self.free:
                return False
            if st.get("pre") is not None and k not in started:
                return False
            return st.get("need") is None or k in checked

        def issue_G(i):
            k, eps = seq[i]
            f = 8 * steps[k]["D"] - eps
            g = self.free.popleft()
            gbuf[i] = g
            a.lds(f"ds_read_b128 {vr(g, 4)}, v{V_GA} offset:{64 * (56 - f)}", ("G", i))

        for i, (k, eps) in enumerate(seq):
            st = steps[k]
            if eps == 0:
                if os.environ.get("FINE"):
                    a.stamp(16 + k)
                if st.get("pre") is not None:
                    if pending_done:
                        a("s_nop 7")
                        for t, _ in pending_done:
                            on_done(t)
                        pending_done = []
                    st["pre"]()
                    if "pool" in st:
                        self.free = deque(st["pool"])
                elif "pool_add" in st:
                    self.free.extend(st["pool_add"])
                started.add(k)
                if st.get("need") is not None and k not in checked:
                    need_tile(a, st["need"])
                    checked.add(k)
                if jit_first and k == 0:
                    for e2 in range(JLA):
                        for E in st["Es"]:
                            self.issue_F(self.slot_of[E], E, e2)
                        issue_G(issued)
                        issued += 1
            if k + 1 < len(steps):
                nx = steps[k + 1]
                if nx.get("need") is not None and nx.get("pre") is None:
                    if (k + 1) not in checked and issued >= 8 * (k + 1) and self.free and eps >= nx.get("chk", 0):
                        need_tile(a, nx["need"])
                        checked.add(k + 1)
            la = JLA if (jit_first and k == 0) else self.maxla
            while issued < len(seq) and issued <= i + la and can_issue(issued):
                issue_G(issued)
                issued += 1
            if jit_first and k == 0 and eps + JLA < 8:
                for E in st["Es"]:
                    self.issue_F(self.slot_of[E], E, eps + JLA)
            g = gbuf[i]
            a.lds_need(("G", i))
            for E in st["Es"]:
                a.lds_need(("F", E, eps))
                p = E + st["D"]
                r = self.Fbase + 32 * self.slot_of[E] + 4 * eps
                c = vr(self.acc + 4 * p, 4)
                src = c if p in self.touched else "0"
                self.touched.add(p)
                a(f"v_mfma_f32_16x16x32_bf16 {c}, {vr(r, 4)}, {vr(g, 4)}, {src}")
                if E == 0 and eps == 0 and self.FD is not None:
                    a(f"v_mfma_f32_16x16x32_bf16 {c}, {vr(self.FD, 4)}, {vr(g, 4)}, {c}")
                rl = st.get("reload")
                if rl and rl[0] == E:
                    self.issue_F(self.slot_of[E], rl[1], eps)
                if E == st["Es"][0]:
                    for En in st.get("load", []):
                        if jit_first and k == 0:
                            if eps >= 4:
                                self.issue_F(self.slot_of[En], En, 2 * (eps - 4))
                                self.issue_F(self.slot_of[En], En, 2 * (eps - 4) + 1)
                        else:
                            self.issue_F(self.slot_of[En], En, eps)
                npd = []
                for t, cnt in pending_done:
                    if cnt <= 0:
                        on_done(t)
                    else:
                        npd.append((t, cnt - 1))
                pending_done = npd
                fl = st.get("fill")
                if fl:
                    fl.popleft()()
            self.free.append(g)
            if eps == 7:
                rl = st.get("reload")
                if rl:
                    self.slot_of[rl[1]] = self.slot_of.pop(rl[0])
                for t in st.get("done", []):
                    pending_done.append((t, 7))
                fl = st.get("fill")
                while fl:
                    fl.popleft()()
        if pending_done:
            a("s_nop 7")
            for t, _ in pending_done:
                on_done(t)


def prologue(a):
    if DIAG:
        a("s_load_dwordx2 s[100:101], s[0:1], 136")
    a("s_load_dwordx16 s[32:47], s[0:1], 0")
    a("s_load_dwordx16 s[48:63], s[0:1], 64")
    a("s_and_b32 s5, s2, 7")
    a("s_lshr_b32 s6, s2, 3")
    a("v_lshrrev_b32 v2, 6, v0")
    a(f"v_and_b32 v{V_LANE}, 63, v0")
    a("s_cmp_lt_u32 s5, 4")
    a("s_cselect_b32 s7, 3, 2")
    a(f"v_readfirstlane_b32 s{S_W}, v2")
    a("s_mul_i32 s64, s5, 3")
    a("s_lshl_b32 s65, s5, 1")
    a("s_add_u32 s66, s65, 4")
    a("s_cmp_lt_u32 s5, 4")
    a("s_cselect_b32 s66, s64, s66")
    a("s_sub_u32 s67, s64, 4")
    a("s_cmp_lt_u32 s5, 4")
    a("s_cselect_b32 s67, s65, s67")
    a("s_lshl_b32 s68, s7, 2")
    a("s_sub_u32 s69, 5, s7")
    a("s_lshl_b32 s70, s69, 3")
    a("s_add_u32 s70, s70, s68")
    a("s_cmp_ge_u32 s6, s70")
    a("s_cbranch_scc1 L_end")
    a(f"v_mov_b32 v{V_ZERO}, 0")
    a(f"v_mov_b32 v{V_ONE}, 1")
    a(f"s_mov_b32 s{S_MASK}, 0")
    zero_flags(a, 2)
    lane0_addr(a, V_ZERO, None)
    a("s_waitcnt lgkmcnt(0)")
    a.stamp(0)
    a.rstamp(13)
    a("s_cmp_ge_u32 s6, s68")
    a("s_cbranch_scc1 L_B")


def zero_flags(a, vt):
    a(f"v_lshlrev_b32 v{vt}, 2, v{V_LANE}")
    a(f"v_and_b32 v{vt}, 127, v{vt}")
    a(f"ds_write_b32 v{vt}, v{V_ZERO} offset:{FLAGS}")


def build_FD(a, FD, vt, sD):
    a(f"v_and_b32 v{vt}, 15, v{V_LANE}")
    a(f"v_lshrrev_b32 v{vt + 1}, 4, v{V_LANE}")
    a(f"v_lshlrev_b32 v{vt + 1}, 3, v{vt + 1}")
    a(f"v_add_u32 v{vt}, v{vt}, v{vt + 1}")
    a(f"v_sub_u32 v{vt}, 15, v{vt}")
    a(f"v_and_b32 v{vt + 1}, 1, v{vt}")
    a(f"v_lshlrev_b32 v{vt + 1}, 4, v{vt + 1}")
    a(f"v_lshlrev_b32 v{vt + 1}, v{vt + 1}, s{sD}" if False else f"v_lshlrev_b32_e64 v{vt + 1}, v{vt + 1}, s{sD}")
    a(f"v_ashrrev_i32 v{vt}, 1, v{vt}")
    for j in range(4):
        a(f"v_cmp_eq_u32 vcc, {j}, v{vt}")
        a("s_nop 1")
        a(f"v_cndmask_b32 v{FD + j}, 0, v{vt + 1}, vcc")


def prefetch_setup(a):
    a("s_lshl_b32 s71, s7, 1")
    a("s_cmp_eq_u32 s71, 4")
    a("s_movk_i32 s73, 10923")
    a("s_cselect_b32 s73, 16384, s73")
    a("s_lshl_b32 s74, s6, 2")
    a(f"s_and_b32 s75, s{S_W}, 3")
    a("s_add_u32 s74, s74, s75")
    a("s_lshl_b32 s75, s69, 5")
    a("s_lshl_b32 s76, s71, 4")
    a("s_mov_b32 s81, 0")
    a(f"v_mul_u32_u24 v229, 1280, v{V_LANE}")
    for it in range(2):
        d = 12 + 4 * it
        if it:
            a("s_add_u32 s77, s74, s75")
        else:
            a("s_mov_b32 s77, s74")
        a("s_mul_i32 s78, s77, s73")
        a("s_lshr_b32 s78, s78, 16")
        a("s_mul_i32 s79, s78, s71")
        a("s_sub_u32 s79, s77, s79")
        a("s_add_u32 s78, s78, s81")
        a("s_and_b32 s80, s79, 1")
        a("s_lshr_b32 s79, s79, 1")
        a("s_add_u32 s79, s79, s66")
        a("s_cmp_eq_u32 s80, 0")
        a(f"s_cselect_b32 s{d}, s{P['k']}, s{P['v']}")
        a(f"s_cselect_b32 s{d + 1}, s{P['k'] + 1}, s{P['v'] + 1}")
        a(f"s_mov_b32 s{d + 2}, 2621440")
        a(f"s_mov_b32 s{d + 3}, 0x00020000")
        a("s_lshl_b32 s79, s79, 6")
        a("s_mul_i32 s78, s78, 81920")
        a("s_add_u32 s78, s78, s79")
        a("s_cmp_ge_u32 s77, s76")
        a(f"s_cselect_b32 s{94 + it}, 0x70000000, s78")
        a("s_lshl_b32 s78, s77, 1")
        a("s_mul_i32 s78, s78, s73")
        a("s_lshr_b32 s78, s78, 16")
        a("s_mul_i32 s79, s78, s7")
        a("s_sub_u32 s79, s77, s79")
        a("s_add_u32 s79, s79, s66")
        a("s_lshl_b32 s79, s79, 6")
        a("s_mul_i32 s78, s78, 81920")
        a("s_add_u32 s78, s78, s79")
        a("s_cmp_ge_u32 s77, s76")
        a(f"s_cselect_b32 s{28 + it}, 0x70000000, s78")
    mk_srd(a, 20, P['q'], 2621440)
    a(f"s_mov_b32 m0, {DUMMY}")


def prefetch_kv(a, second=False):
    for i in range(2):
        if second:
            a(f"s_add_u32 s{94 + i}, s{94 + i}, {16 * 81920}")
        if (second and os.environ.get("NOKV2")) or os.environ.get("NOKV"):
            a(f"s_mov_b32 s{94 + i}, 0x70000000")
        a(f"buffer_load_dword v229, s[{12 + 4 * i}:{15 + 4 * i}], s{94 + i} offen lds")


def prefetch_q(a):
    if os.environ.get("NOQPF"):
        a("s_mov_b32 s28, 0x70000000")
        a("s_mov_b32 s29, 0x70000000")
    for i in range(2):
        a(f"buffer_load_dword v229, s[20:23], s{28 + i} offen lds")


def path_A(a):
    a.vm_q = []
    a.lds_q = []
    a("s_lshr_b32 s71, s6, 2")
    a("s_add_u32 s71, s71, s66")
    a("s_and_b32 s72, s6, 3")
    a("s_lshl_b32 s71, s71, 5")
    a("s_lshl_b32 s72, s72, 3")
    a(f"s_add_u32 s{S_CH0}, s71, s72")
    mk_srd(a, SRD_SK, P['ssm_k'], 2621440)
    a(f"s_add_u32 s7, s{S_CH0}, s{S_W}")
    a("s_lshl_b32 s7, s7, 12")
    a(f"v_lshlrev_b32 v2, 4, v{V_LANE}")
    Q0, Q1 = 96, 112
    for j in range(4):
        a.vm(f"buffer_load_dwordx4 {vr(Q0 + 4 * j, 4)}, v2, s[{SRD_SK}:{SRD_SK + 3}], s7 offen offset:{1024 * j}", "K")
    a(f"s_lshl_b32 s5, s{S_CH0}, 3")
    a(f"s_lshl_b32 s6, s{S_CH0}, 1")
    a(f"s_mul_i32 s7, s{S_W}, {256 * 1280}")
    a("s_add_u32 s7, s7, s6")
    a(f"s_load_dwordx16 s[64:79], s[{P['shift_k']}:{P['shift_k'] + 1}], s5")
    a(f"s_load_dwordx4 s[80:83], s[{P['ssm_D']}:{P['ssm_D'] + 1}], s6")
    a("s_sub_u32 s5, s7, 3840")
    a(f"s_cmp_eq_u32 s{S_W}, 0")
    a("s_cselect_b32 s5, s6, s5")
    a("s_add_u32 s28, s5, 1280")
    a("s_add_u32 s29, s5, 2560")
    HS = 84
    a(f"s_load_dwordx4 s[{HS}:{HS + 3}], s[{P['k']}:{P['k'] + 1}], s5")
    a(f"s_load_dwordx4 s[{HS + 4}:{HS + 7}], s[{P['k']}:{P['k'] + 1}], s28")
    a(f"s_load_dwordx4 s[{HS + 8}:{HS + 11}], s[{P['k']}:{P['k'] + 1}], s29")
    mk_srd(a, SRD_K, P['k'], 2621440)
    mk_srd(a, SRD_V, P['v'], 2621440)
    mk_srd(a, SRD_Q, P['q'], 2621440)
    mk_srd(a, SRD_O, P['out'], 5242880)
    a(f"v_mul_u32_u24 v{V_ROW}, 5120, v{V_LANE}")
    a(f"v_add_u32 v{V_ROW}, s7, v{V_ROW}")
    a("s_barrier")
    KR, VR = 16, 32
    T = 48
    FD = 74
    SKC, SXR = 28, 29

    def xload(i):
        if i < 4:
            a.vm(f"buffer_load_dwordx4 {vr(KR + 4 * i, 4)}, v{V_ROW}, s[{SRD_K}:{SRD_K + 3}], 0 offen offset:{1280 * i}", "x")
        else:
            j = i - 4
            a.vm(f"buffer_load_dwordx4 {vr(VR + 4 * j, 4)}, v{V_ROW}, s[{SRD_V}:{SRD_V + 3}], 0 offen offset:{1280 * j}", "x")

    a(f"s_cmp_ge_u32 s{S_W}, 2")
    a("s_cbranch_scc1 L_A_skipx")
    for i in range(8):
        xload(i)
    a.label("L_A_skipx")
    a(f"s_mul_i32 s{SKC}, s{S_W}, {KSTR_A}")
    a(f"s_add_u32 s{SKC}, s{SKC}, {A_KC}")
    a(f"s_mul_i32 s{SXR}, s{S_W}, {XSTR}")
    a(f"s_add_u32 s{SXR}, s{SXR}, {A_XR}")
    a("v_mov_b32 v6, 0")
    a("v_mov_b32 v7, 0")
    a(f"v_lshlrev_b32 v{T}, 3, v{V_LANE}")
    a(f"v_add_u32 v{T}, s{SXR}, v{T}")
    a(f"ds_write_b64 v{T}, v[6:7] offset:4096")
    conv_addrs(a, T, SKC, SXR, CSTR_A)
    a.stamp(1)
    a(f"s_cmp_ge_u32 s{S_W}, 2")
    a("s_cbranch_scc1 L_A_kw1")
    a("s_waitcnt vmcnt(8)")
    a("s_branch L_A_kw2")
    a.label("L_A_kw1")
    a("s_waitcnt vmcnt(0)")
    a(f"s_cmp_ge_u32 s{S_W}, 4")
    a("s_cbranch_scc1 L_A_kw2")
    for i in range(8):
        xload(i)
    a.label("L_A_kw2")
    a.stamp(2)
    a(f"v_add_u32 v5, s{SKC}, v2")
    Q2, Q3, NX = 80, 48, 64
    for j in range(4):
        a(f"v_readlane_b32 s{44 + 2 * j}, v{Q0 + 4 * j}, 0")
        a(f"v_readlane_b32 s{45 + 2 * j}, v{Q0 + 4 * j + 1}, 0")
    for j in range(4):
        for x in range(3):
            a(f"v_alignbit_b32 v{Q1 + 4 * j + x}, v{Q0 + 4 * j + x + 1}, v{Q0 + 4 * j + x}, 16")
    for j in range(4):
        a(f"v_mov_b32 v{NX + 2 * j}, s{44 + 2 * min(j + 1, 3)}")
        a(f"v_mov_b32 v{NX + 2 * j + 1}, s{45 + 2 * min(j + 1, 3)}")
    a("s_nop 0")
    for j in range(4):
        a(f"v_mov_b32_dpp v{NX + 2 * j}, v{Q0 + 4 * j} wave_shl:1 row_mask:0xf bank_mask:0xf")
        a(f"v_mov_b32_dpp v{NX + 2 * j + 1}, v{Q0 + 4 * j + 1} wave_shl:1 row_mask:0xf bank_mask:0xf")
    for j in range(4):
        a(f"v_alignbit_b32 v{Q1 + 4 * j + 3}, v{NX + 2 * j}, v{Q0 + 4 * j + 3}, 16")
        shift_quad(a, Q2 + 4 * j, Q0 + 4 * j, NX + 2 * j)
    for j in range(4):
        a(f"v_alignbit_b32 v{NX + 2 * j}, v{NX + 2 * j + 1}, v{NX + 2 * j}, 16")
    for j in range(4):
        shift_quad(a, Q3 + 4 * j, Q1 + 4 * j, NX + 2 * j)
    a("s_waitcnt lgkmcnt(0)")
    a.lds_q = []
    Rs = lambda j: [Q0 + 4 * j, Q1 + 4 * j, Q2 + 4 * j, Q3 + 4 * j]
    for j in (2, 3):
        write4(a, 5, Rs(j), 32 + 1024 * (j - 2), CSTR_A)
    a("v_subrev_u32 v72, 992, v5")
    a("s_mov_b32 exec_lo, 0")
    a("s_mov_b32 exec_hi, 0xc0000000")
    write4(a, 72, Rs(1), 0, CSTR_A)
    a("s_mov_b64 exec, -1")
    cv0 = Conv(a, 128, 96, [], {7: 0, 6: 1, 5: 2, 4: 3}, emod=32)
    for eps in range(8):
        for E in (7, 6, 5, 4):
            cv0.issue_F(cv0.slot_of[E], E, eps)
    for j in (0, 1):
        write4(a, 5, Rs(j), 32 + 1024 * j, CSTR_A)
    a(f"v_lshlrev_b32 v5, 2, v{V_LANE}")
    a(f"v_add_u32 v5, s{SKC}, v5")
    write_pads(a, 5, 64, Q0, Q1, CSTR_A)
    q0 = list(a.lds_q)
    a(f"s_lshl_b32 s5, s{S_W}, 9")
    a(f"s_sub_u32 s5, {A_XR + 4088}, s5")
    a(f"v_lshlrev_b32 v4, 3, v{V_LANE}")
    a(f"s_lshl_b32 s30, s{S_W}, 12")
    a(f"s_add_u32 s30, s30, {A_S}")
    a("v_add_u32 v5, s30, v4")
    a("v_sub_u32 v4, s5, v4")
    a(f"v_and_b32 v6, 3, v{V_LANE}")
    a(f"v_lshrrev_b32 v7, 2, v{V_LANE}")
    a("v_lshl_add_u32 v6, v6, 4, v7")
    a("v_lshlrev_b32 v6, 3, v6")
    a(f"s_lshl_b32 s5, s{S_W}, 9")
    a(f"s_add_u32 s5, s5, {A_S}")
    a("v_add_u32 v6, s5, v6")
    a(f"s_lshl_b32 s30, s{S_W}, 2")
    a(f"v_add_u32 v7, s30, v{V_ZERO}")
    ACC, GB, FB = 96, 80, 128
    PSTEP = int(os.environ.get("PSTEP", "7"))
    FSTEP = int(os.environ.get("FSTEP", "10"))
    G4 = [80, 84, 88, 92]
    GX = [32 + 4 * i for i in range(8)]
    for c in range(4):
        for j in range(4):
            for hh in range(2):
                src = 64 + 2 * (2 * c + hh) + (j >> 1)
                dst = 32 + 8 * c + 2 * j + hh
                if j & 1:
                    a(f"s_and_b32 s{dst}, s{src}, 0xffff0000")
                else:
                    a(f"s_lshl_b32 s{dst}, s{src}, 16")
    a(f"s_lshr_b32 s5, s{S_W}, 1")
    a("s_cmp_eq_u32 s5, 1")
    a("s_cselect_b32 s30, s81, s80")
    a("s_cmp_eq_u32 s5, 2")
    a("s_cselect_b32 s30, s82, s30")
    a("s_cmp_eq_u32 s5, 3")
    a("s_cselect_b32 s30, s83, s30")
    a(f"s_and_b32 s5, s{S_W}, 1")
    a("s_lshl_b32 s5, s5, 4")
    a("s_lshr_b32 s30, s30, s5")
    a("s_and_b32 s30, s30, 0xffff")
    build_FD(a, FD, T, 30)
    a(f"s_cmp_lg_u32 s{S_W}, 0")
    a("s_cbranch_scc1 L_A_halo_ok")
    for i in range(12):
        a(f"s_mov_b32 s{HS + i}, 0")
    a.label("L_A_halo_ok")

    def produce():
        a.vm_need("x")
        KP, AC = T + 4, T + 18
        for c in range(4):
            for j in range(3):
                a(f"v_mov_b32 v{T + j}, s{HS + 4 * j + c}")
            for r in range(4):
                a(f"v_lshlrev_b32 v{KP + 6 + 2 * r}, 16, v{KR + 4 * r + c}")
                a(f"v_and_b32 v{KP + 7 + 2 * r}, 0xffff0000, v{KR + 4 * r + c}")
            for j in range(3):
                a(f"v_mov_b32_dpp v{T + j}, v{KR + 4 * (j + 1) + c} wave_shr:1 row_mask:0xf bank_mask:0xf")
            W = lambda j: f"s[{32 + 8 * c + 2 * j}:{33 + 8 * c + 2 * j}]"
            for r in range(4):
                a(f"v_pk_mul_f32 {vr(AC + 2 * r, 2)}, {W(0)}, {vr(KP + 6 + 2 * r, 2)}")
            for j in range(3):
                a(f"v_lshlrev_b32 v{KP + 2 * j}, 16, v{T + j}")
                a(f"v_and_b32 v{KP + 1 + 2 * j}, 0xffff0000, v{T + j}")
            for jj in (1, 2, 3):
                for r in range(4):
                    a(f"v_pk_fma_f32 {vr(AC + 2 * r, 2)}, {W(jj)}, {vr(KP + 2 * (3 + r - jj), 2)}, {vr(AC + 2 * r, 2)}")
            for r in range(4):
                a(f"v_lshlrev_b32 v{KP + 2 * r}, 16, v{VR + 4 * r + c}")
                a(f"v_and_b32 v{KP + 1 + 2 * r}, 0xffff0000, v{VR + 4 * r + c}")
            for r in range(4):
                a(f"v_pk_mul_f32 {vr(AC + 2 * r, 2)}, {vr(AC + 2 * r, 2)}, {vr(KP + 2 * r, 2)}")
            for hh in range(2):
                o = KP + 8 + 2 * hh
                a(f"v_cvt_pk_bf16_f32 v{o}, v{AC + 6 + hh}, v{AC + 4 + hh}")
                a(f"v_cvt_pk_bf16_f32 v{o + 1}, v{AC + 2 + hh}, v{AC + hh}")
                a.lds(f"ds_write_b64 v4, {vr(o, 2)} offset:{XSTR * (2 * c + hh)}")
        one_lane(a, f"ds_write_b32 v7, v{V_ONE} offset:{FLAGS}")

    def qload(j):
        if j < 4:
            a.vm(f"buffer_load_dwordx4 {vr(16 + 4 * j, 4)}, v2, s[{SRD_Q}:{SRD_Q + 3}], 0 offen offset:{1280 * j}", "q0")
        else:
            a.vm(f"buffer_load_dwordx4 {vr(16 + 4 * j, 4)}, v{V_ROW}, s[{SRD_Q}:{SRD_Q + 3}], 0 offen offset:{1280 * (j - 4)}", "q1")

    def on_done(p):
        a(f"v_cvt_pk_bf16_f32 v78, v{ACC + 4 * p}, v{ACC + 4 * p + 1}")
        a(f"v_cvt_pk_bf16_f32 v79, v{ACC + 4 * p + 2}, v{ACC + 4 * p + 3}")
        a.lds(f"ds_write_b64 v5, v[78:79] offset:{512 * p}")
        one_lane(a, f"ds_add_u32 v{V_ZERO}, v{V_ONE} offset:{FLAGS + 32 + 4 * p}")

    def final(second):
        QR = 16 + 16 * second
        co = FLAGS + 32 - (0 if second else 16)
        so = 2048 if second else 0
        a.lds(f"ds_read_b32 v{V_FLG}, v7 offset:{co}", "cnt")
        flag_check(a, co, "cnt", 8, vaddr=7)
        Y = 48
        for d in range(8):
            a.lds(f"ds_read_b64 {vr(Y + 2 * d, 2)}, v6 offset:{4096 * d + so}", ("y", d))
        if second:
            a(f"v_lshlrev_b32 v2, 1, v{V_ROW}")
        else:
            a("v_lshlrev_b32 v2, 1, v2")
        a("v_subrev_u32 v2, s6, v2")
        a.vm_need("q1" if second else "q0")
        SP, QP = 80, 88
        for c in range(4):
            for r in range(4):
                a(f"v_lshlrev_b32 v{QP + 2 * r}, 16, v{QR + 4 * r + c}")
                a(f"v_and_b32 v{QP + 2 * r + 1}, 0xffff0000, v{QR + 4 * r + c}")
            a.lds_need(("y", 2 * c + 1))
            for hh in range(2):
                y = Y + 2 * (2 * c + hh)
                a(f"v_lshlrev_b32 v{SP + hh}, 16, v{y}")
                a(f"v_and_b32 v{SP + 2 + hh}, 0xffff0000, v{y}")
                a(f"v_lshlrev_b32 v{SP + 4 + hh}, 16, v{y + 1}")
                a(f"v_and_b32 v{SP + 6 + hh}, 0xffff0000, v{y + 1}")
            for r in range(4):
                a(f"v_pk_mul_f32 {vr(SP + 2 * r, 2)}, {vr(SP + 2 * r, 2)}, {vr(QP + 2 * r, 2)}")
            for r in range(4):
                a(f"v_cvt_pk_bf16_f32 v{QR + 4 * r + c}, v{SP + 2 * r}, v{SP + 2 * r + 1}")
        for r in range(4):
            if r == 2:
                a("v_add_u32 v2, 5120, v2")
            a.vm(f"buffer_store_dwordx4 {vr(QR + 4 * r, 4)}, v2, s[{SRD_O}:{SRD_O + 3}], 0 offen offset:{2560 * (r % 2)}", "st")

    def sched(hi):
        st = [
            dict(D=0, Es=[7, 6, 5, 4], reload=(7, 3), need=0),
            dict(D=1, Es=[6, 5, 4, 3], reload=(6, 2), need=1),
            dict(D=2, Es=[5, 4, 3, 2], reload=(5, 1), need=2),
            dict(D=3, Es=[4, 3, 2, 1], reload=(4, 0), need=3),
            dict(D=0, Es=[3, 2, 1, 0], done=[0]),
            dict(D=1, Es=[2, 1, 0], done=[1]),
            dict(D=2, Es=[1, 0], done=[2]),
            dict(D=3, Es=[0], done=[3]),
            dict(D=4, Es=[3, 2, 1, 0], done=[4], need=4),
            dict(D=5, Es=[2, 1, 0], done=[5], need=5),
            dict(D=6, Es=[1, 0], done=[6], need=6),
            dict(D=7, Es=[0], done=[7], need=7),
        ]
        nop = lambda: None
        if hi:
            st[PSTEP]["pool"] = G4 + [48 + 4 * i for i in range(6)]
            st[FSTEP]["pre"] = lambda: final(0)
            st[FSTEP]["pool"] = G4 + [48 + 4 * i for i in range(6)]
            st[PSTEP]["pre"] = produce
            st[PSTEP]["fill"] = deque([(lambda j=j: qload(j)) for j in range(8)])
        else:
            st[1]["pool_add"] = GX
        return st

    a(f"s_cmp_ge_u32 s{S_W}, 4")
    a("s_cbranch_scc1 L_A_hi")
    for hi in (0, 1):
        if hi:
            a.label("L_A_hi")
            a.vm_q = []
            a(f"v_subrev_u32 v2, {1024 * 1280}, v{V_ROW}")
            a("v_subrev_u32 v6, 2048, v6")
        else:
            a.vm_q = ["x"] * 8
        a.lds_q = list(q0)
        cv = Conv(a, FB, ACC, G4, {7: 0, 6: 1, 5: 2, 4: 3}, FD=FD, emod=32)
        a.stamp(3)
        if not hi:
            produce()
        else:
            for i in range(8):
                xload(i)
            if not os.environ.get("NOPRIO"):
                a("s_setprio 1")
        a.stamp(4)
        cv.run(sched(hi), on_done)
        a.stamp(8)
        if hi:
            a("s_setprio 0")
            final(1)
        a.stamp(11)
        a.stamp_out()
        a("s_endpgm")


def path_B(a):
    a.label("L_B")
    a.vm_q = []
    a.lds_q = []
    a("s_sub_u32 s6, s6, s68")
    a("s_lshr_b32 s71, s6, 3")
    a("s_add_u32 s71, s71, s67")
    a("s_and_b32 s72, s6, 7")
    a("s_lshl_b32 s71, s71, 5")
    a("s_lshl_b32 s72, s72, 2")
    a(f"s_add_u32 s{S_CH0}, s71, s72")
    a(f"s_lshr_b32 s64, s{S_W}, 1")
    a(f"s_and_b32 s65, s{S_W}, 1")
    a(f"s_add_u32 s5, s{S_CH0}, s64")
    a("s_lshl_b32 s5, s5, 8")
    a("s_lshl_b32 s71, s65, 7")
    a("s_add_u32 s5, s5, s71")
    a(f"v_lshlrev_b32 v2, 1, v{V_LANE}")
    a("v_add_u32 v2, s5, v2")
    PR = 16
    for i, nm in enumerate(["A_re", "A_im", "B_re", "B_im", "C_re", "C_im"]):
        a.vm(f"global_load_ushort v{PR + i}, v2, s[{P[nm]}:{P[nm] + 1}]", "par")
    a(f"s_lshl_b32 s5, s{S_CH0}, 1")
    a(f"s_load_dwordx2 s[88:89], s[{P['log_dt']}:{P['log_dt'] + 1}], s5")
    a(f"s_load_dwordx2 s[90:91], s[{P['Dskip']}:{P['Dskip'] + 1}], s5")
    a("s_barrier")
    prefetch_setup(a)
    a(f"s_cmp_lt_u32 s{S_W}, 4")
    a("s_cbranch_scc1 L_B_nopf0")
    prefetch_kv(a)
    a.label("L_B_nopf0")
    UPF = True
    a(f"s_lshl_b32 s6, s{S_CH0}, 1")
    mk_srd(a, SRD_K, P['u'], 2621440)
    mk_srd(a, SRD_O, P['out'], 5242880)
    if not os.environ.get("NOUPF"):
        a(f"s_cmp_lt_u32 s{S_W}, 4")
        a("s_cbranch_scc1 L_B_nopf1")
        a(f"s_lshr_b32 s5, s{S_CH0}, 2")
        a("s_and_b32 s5, s5, 7")
        a("s_lshl_b32 s5, s5, 2")
        a(f"s_add_u32 s5, s5, s{S_W}")
        a("s_sub_u32 s5, s5, 4")
        a("s_mul_i32 s5, s5, 81920")
        a("s_add_u32 s5, s5, s6")
        if os.environ.get("NOUPF2"):
            a("s_mov_b32 s5, 0x70000000")
        a(f"buffer_load_dword v229, s[{SRD_K}:{SRD_K + 3}], s5 offen lds")
        prefetch_kv(a, True)
        a.label("L_B_nopf1")
    a(f"s_mul_i32 s7, s{S_W}, {256 * 1280}")
    a("s_add_u32 s7, s7, s6")
    a(f"v_mul_u32_u24 v{V_ROW}, 5120, v{V_LANE}")
    a(f"v_add_u32 v{V_ROW}, s7, v{V_ROW}")
    UR = [202, 230, 252, 254]
    UR2 = [170, 172, 174, 176]

    def uloads(R, second):
        so = "s93" if second else "0"
        for j in range(4):
            a(f"buffer_load_dwordx2 {vr(R[j], 2)}, v{V_ROW}, s[{SRD_K}:{SRD_K + 3}], {so} offen offset:{1280 * j}")

    def uprod(R, t, second, cnt):
        a(f"s_waitcnt vmcnt({cnt})")
        for d in range(4):
            c, hh = d // 2, d % 2
            sel = "s78" if hh == 0 else "s79"
            a(f"v_perm_b32 v{t + 2 * d}, v{R[2] + c}, v{R[3] + c}, {sel}")
            a(f"v_perm_b32 v{t + 2 * d + 1}, v{R[0] + c}, v{R[1] + c}, {sel}")
            a(f"ds_write_b64 v4, {vr(t + 2 * d, 2)} offset:{XSTR * d + (0 if second else 2048)}")
        a(f"ds_write_b32 v5, v{V_ONE} offset:{FLAGS + 16 * second}")

    a(f"s_mov_b32 s93, {1024 * 1280}")
    a(f"s_mul_i32 s84, s64, {KSTR_B}")
    a(f"s_add_u32 s84, s84, {B_KC}")
    a(f"s_mul_i32 s85, s64, {XSTR}")
    a(f"s_add_u32 s85, s85, {B_XR}")
    a(f"s_mul_i32 s86, s{S_W}, {STW}")
    a(f"s_add_u32 s86, s86, {B_ST}")
    a(f"s_mul_i32 s87, s64, {2 * STW}")
    a(f"s_add_u32 s87, s87, {B_ST}")
    a("v_mov_b32 v6, 0")
    a("v_mov_b32 v7, 0")
    T = 24
    a(f"v_lshlrev_b32 v{T}, 3, v{V_LANE}")
    a(f"v_add_u32 v{T}, s85, v{T}")
    a(f"ds_write_b64 v{T}, v[6:7] offset:4096")
    conv_addrs(a, T, 84, 85, CSTR_B)
    GA = 232

    def fin_addr(g):
        a(f"v_lshrrev_b32 v{T + 3}, 3, v{g}")
        a(f"v_add_u32 v{g}, v{g}, v{T + 3}")
        a(f"v_lshl_add_u32 v{g}, v{g}, 2, s87")

    a("s_lshl_b32 s5, s65, 10")
    a(f"v_lshlrev_b32 v{T}, 3, v{V_LANE}")
    a("s_cmp_lg_u32 s65, 0")
    a("s_cbranch_scc1 L_B_ga1")
    a(f"v_cvt_f32_u32 v{T + 1}, v{T}")
    a("s_movk_i32 s71, 127")
    for x in range(0, 11, 2):
        g = GA + x
        a(f"v_add_f32 v{T + 2}, {f32bits(float(x)):#x}, v{T + 1}")
        a(f"v_add_f32 v{T + 3}, {f32bits(float(x + 1)):#x}, v{T + 1}")
        a(f"v_cvt_pk_bf16_f32 v{T + 2}, v{T + 2}, v{T + 3}")
        for y in range(2):
            if x + y > 10:
                continue
            if y == 0:
                a(f"v_and_b32 v{g}, 0xffff, v{T + 2}")
            else:
                a(f"v_lshrrev_b32 v{g + 1}, 16, v{T + 2}")
            a(f"v_subrev_u32 v{g + y}, 17024, v{g + y}")
            a(f"v_add_u32 v{T + 3}, {x + y}, v{T}")
            a(f"v_med3_i32 v{g + y}, v{g + y}, v{T + 3}, s71")
            fin_addr(g + y)
    a(f"v_lshlrev_b32 v{T + 1}, 1, v{V_LANE}")
    for i in range(3):
        a(f"v_add_u32 v{GA + 11 + i}, {384 + i}, v{T + 1}")
        fin_addr(GA + 11 + i)
    a("s_branch L_B_ga2")
    a.label("L_B_ga1")
    a(f"v_and_b32 v{T + 1}, 1, v{V_LANE}")
    a(f"v_add_u32 v{T + 1}, v{T + 1}, v{V_LANE}")
    for rd in range(2):
        a(f"v_add_u32 v{GA + 3 * rd}, {512 + 64 * rd}, v{V_LANE}")
        a(f"v_add_u32 v{GA + 3 * rd + 1}, {513 + 64 * rd}, v{V_LANE}")
        a(f"v_add_u32 v{GA + 3 * rd + 2}, {512 + 64 * rd}, v{T + 1}")
        for i in range(3):
            fin_addr(GA + 3 * rd + i)
    a.label("L_B_ga2")
    a(f"v_add_u32 v{T}, s5, v{T}")
    a(f"v_lshlrev_b32 v250, 1, v{T}")
    a("v_add_u32 v250, s84, v250")
    WA, RA = 216, 224
    a(f"v_lshlrev_b32 v{WA}, 2, v{V_LANE}")
    a(f"v_add_u32 v{WA}, s86, v{WA}")
    for i in range(1, 8):
        a(f"v_add_u32 v{WA + i}, {1088 * i}, v{WA}")
    a(f"v_and_b32 v{T}, 15, v{V_LANE}")
    a(f"v_lshrrev_b32 v{T + 1}, 4, v{V_LANE}")
    a(f"v_mul_u32_u24 v{RA}, 544, v{T}")
    a(f"v_lshl_add_u32 v{RA}, v{T + 1}, 4, v{RA}")
    a(f"v_add_u32 v{RA}, s86, v{RA}")
    SA = 225
    a("s_mov_b32 s5, s86")
    a(f"v_lshrrev_b32 v{SA}, 1, v{T + 1}")
    a(f"v_lshlrev_b32 v{SA}, 7, v{SA}")
    a(f"v_and_b32 v{T + 2}, 1, v{T + 1}")
    a(f"v_lshl_add_u32 v{SA}, v{T + 2}, 2, v{SA}")
    a(f"v_lshl_add_u32 v{SA}, v{T}, 3, v{SA}")
    a(f"v_lshrrev_b32 v{T + 4}, 3, v{SA}")
    a(f"v_add_u32 v{SA}, v{SA}, v{T + 4}")
    a(f"v_lshl_add_u32 v{SA}, v{SA}, 2, s5")
    a(f"v_lshlrev_b32 v{SA + 1}, 6, v{T + 1}")
    a(f"v_add_u32 v{SA + 1}, 256, v{SA + 1}")
    a(f"v_cmp_gt_u32 vcc, 2, v{T + 1}")
    a(f"v_lshlrev_b32 v{T + 2}, 2, v{T}")
    a(f"v_lshlrev_b32 v{T + 3}, 1, v{T}")
    a(f"v_cndmask_b32 v{T + 2}, v{T + 3}, v{T + 2}, vcc")
    a(f"v_add_u32 v{SA + 1}, v{SA + 1}, v{T + 2}")
    a(f"v_lshrrev_b32 v{T + 4}, 3, v{SA + 1}")
    a(f"v_add_u32 v{SA + 1}, v{SA + 1}, v{T + 4}")
    a(f"v_lshl_add_u32 v{SA + 1}, v{SA + 1}, 2, s5")
    a(f"v_mov_b32 v{T + 2}, 144")
    a(f"v_cndmask_b32_e64 v{T + 2}, v{T + 2}, 8, vcc")
    a(f"v_add_u32 v{SA + 2}, v{SA + 1}, v{T + 2}")
    a(f"v_lshl_add_u32 v{SA + 3}, v{T + 1}, 6, v{T}")
    a(f"v_add_u32 v{SA + 3}, 512, v{SA + 3}")
    a(f"v_lshrrev_b32 v{T + 4}, 3, v{SA + 3}")
    a(f"v_add_u32 v{SA + 3}, v{SA + 3}, v{T + 4}")
    a(f"v_lshl_add_u32 v{SA + 3}, v{SA + 3}, 2, s5")
    a(f"s_lshl_b32 s5, s{S_W}, 9")
    a(f"s_sub_u32 s5, {B_XR + 4088 - 2048}, s5")
    a(f"v_lshlrev_b32 v4, 3, v{V_LANE}")
    a("v_sub_u32 v4, s5, v4")
    a("s_lshl_b32 s5, s64, 2")
    a(f"v_add_u32 v2, s5, v{V_ZERO}")
    a(f"s_lshl_b32 s5, s{S_W}, 2")
    a(f"v_add_u32 v5, s5, v{V_ZERO}")
    a("s_waitcnt lgkmcnt(0)")
    a("s_lshr_b32 s5, s64, 1")
    a("s_cmp_eq_u32 s5, 0")
    a("s_cselect_b32 s66, s88, s89")
    a("s_cselect_b32 s92, s90, s91")
    a("s_and_b32 s5, s64, 1")
    a("s_lshl_b32 s5, s5, 4")
    a("s_lshr_b32 s66, s66, s5")
    a("s_lshl_b32 s66, s66, 16")
    a("s_lshr_b32 s92, s92, s5")
    a("s_and_b32 s92, s92, 0xffff")
    L2E = 1.4426950408889634
    I2P = 0.15915494309189535
    a(f"s_mov_b32 s68, {f32bits(f32(L2E)):#x}")
    a(f"s_mov_b32 s69, {f32bits(L2E - f32(L2E)):#x}")
    a(f"s_mov_b32 s70, {f32bits(0.6931471805599453):#x}")
    a(f"s_mov_b32 s71, {f32bits(f32(I2P)):#x}")
    a(f"s_mov_b32 s72, {f32bits(I2P - f32(I2P)):#x}")
    a(f"v_mov_b32 v{T}, s66")
    a(f"v_mul_f32 v{T + 1}, s68, v{T}")
    a(f"v_fma_f32 v{T + 2}, v{T}, s68, -v{T + 1}")
    a(f"v_fmac_f32 v{T + 2}, s69, v{T}")
    a(f"v_exp_f32 v{T + 3}, v{T + 1}")
    a(f"v_mul_f32 v{T + 2}, s70, v{T + 2}")
    a("s_nop 0")
    a(f"v_fma_f32 v{T + 3}, v{T + 3}, v{T + 2}, v{T + 3}")
    a(f"v_cvt_pk_bf16_f32 v{T + 3}, v{T + 3}, v{T + 3}")
    a(f"v_lshlrev_b32 v{T + 3}, 16, v{T + 3}")
    a.stamp(1)
    a(f"s_cmp_lt_u32 s{S_W}, 4")
    a("s_cbranch_scc1 L_B_w0")
    a("s_waitcnt vmcnt(5)")
    a("s_branch L_B_w1")
    a.label("L_B_w0")
    a("s_waitcnt vmcnt(0)")
    a.label("L_B_w1")
    a.stamp(2)
    if os.environ.get("BP1"):
        a("s_setprio 1")
    for i in range(6):
        a(f"v_lshlrev_b32 v{PR + i}, 16, v{PR + i}")
    for i in range(4):
        a(f"v_mul_f32 v{PR + i}, v{T + 3}, v{PR + i}")

    EE, ZZ, HH = 48, 80, 96
    Z128, Z256, Z512, Z1024 = 130, 132, 134, 136
    TP, PK, KD = 138, 170, 204

    def batch(fns):
        n = max(len(f) for f in fns)
        for i in range(n):
            for f in fns:
                if i < len(f):
                    a(f[i])

    def cmul_i(d, x, y, t):
        return [f"v_pk_mul_f32 {vr(t, 2)}, {vr(x, 2)}, {vr(y, 2)} op_sel:[0,0] op_sel_hi:[1,0]",
                f"v_pk_fma_f32 {vr(d, 2)}, {vr(x, 2)}, {vr(y, 2)}, {vr(t, 2)} op_sel:[1,1,0] op_sel_hi:[0,1,1] neg_lo:[1,0,0]"]

    def cmuls(lst):
        batch([cmul_i(d, x, y, TP + 2 * i) for i, (d, x, y) in enumerate(lst)])

    def anchor_i(d, sreg, t, conj):
        return [f"v_mul_f32 v{t}, s{sreg}, v{PR}",
                f"v_mul_f32 v{t + 1}, s{sreg}, v{PR + 1}",
                f"v_mul_f32 v{t}, s68, v{t}",
                f"v_mul_f32 v{t + 2}, s71, v{t + 1}",
                f"v_exp_f32 v{t}, v{t}",
                f"v_fma_f32 v{t + 3}, v{t + 1}, s71, -v{t + 2}",
                f"v_fmac_f32 v{t + 3}, s72, v{t + 1}",
                f"v_fract_f32 v{t + 2}, v{t + 2}",
                f"v_add_f32 v{t + 2}, v{t + 2}, v{t + 3}",
                f"v_cos_f32 v{t + 1}, v{t + 2}",
                f"v_sin_f32 v{t + 3}, v{t + 2}",
                f"v_mul_f32 v{d}, v{t}, v{t + 1}",
                (f"v_mul_f32_e64 v{d + 1}, -v{t}, v{t + 3}" if conj else f"v_mul_f32 v{d + 1}, v{t}, v{t + 3}")]

    a("s_mov_b32 s80, 0x0000bf80")
    a("s_mov_b32 s81, 0xbf800000")
    anchors = [(EE + 2, 8, True), (EE + 16, 64, True), (ZZ + 2, 1, False), (Z128, 128, False), (Z1024, 1024, False)]
    for i, (d, lam, cj) in enumerate(anchors):
        a(f"s_mov_b32 s{73 + i}, {f32bits(float(lam)):#x}")
    batch([anchor_i(d, 73 + i, TP + 4 * i, cj) for i, (d, lam, cj) in enumerate(anchors)]
          + [cmul_i(HH, PR + 4, PR + 2, TP + 20)])
    a(f"v_mov_b32 v{EE}, 1.0")
    a(f"v_mov_b32 v{EE + 1}, 0")
    e = lambda r: EE + 2 * r
    z = lambda r: ZZ + 2 * r
    H = lambda h: HH + 2 * h
    cmuls([(e(2), e(1), e(1)), (z(2), z(1), z(1)), (Z256, Z128, Z128), (H(1), H(0), Z128), (e(9), e(8), e(1)),
           (H(8), H(0), Z1024)])
    cmuls([(e(3), e(2), e(1)), (e(4), e(2), e(2)), (z(3), z(2), z(1)), (z(4), z(2), z(2)), (Z512, Z256, Z256),
           (H(2), H(0), Z256), (H(3), H(1), Z256), (e(10), e(8), e(2)), (H(9), H(1), Z1024), (H(16), H(8), Z1024)])
    cmuls([(e(5), e(4), e(1)), (e(6), e(4), e(2)), (e(7), e(4), e(3)), (e(11), e(8), e(3)), (e(12), e(8), e(4)),
           (z(5), z(4), z(1)), (z(6), z(4), z(2)), (z(7), z(4), z(3)),
           (H(4), H(0), Z512), (H(5), H(1), Z512), (H(6), H(2), Z512), (H(7), H(3), Z512),
           (H(10), H(2), Z1024), (H(11), H(3), Z1024)])
    cmuls([(e(13), e(8), e(5)), (e(14), e(8), e(6)), (e(15), e(8), e(7)),
           (H(12), H(4), Z1024), (H(13), H(5), Z1024), (H(14), H(6), Z1024), (H(15), H(7), Z1024)])

    def split_i(x, row, t):
        hi, lo = PK + 2 * row, PK + 2 * row + 1
        return [f"v_cvt_pk_bf16_f32 v{hi}, v{x}, v{x + 1}",
                f"v_dot2_f32_bf16 v{t}, v{hi}, s80, v{x}",
                f"v_dot2_f32_bf16 v{t + 1}, v{hi}, s81, v{x + 1}",
                f"v_cvt_pk_bf16_f32 v{lo}, v{t}, v{t + 1}"]

    def wr_row(row):
        o = 136 * (row % 2)
        a.lds(f"ds_write2_b32 v{WA + row // 2}, v{PK + 2 * row}, v{PK + 2 * row + 1} offset0:{o} offset1:{o + 64}")

    def put_rows(vals, write=True):
        gs = 8 if len(vals) % 8 == 0 else 5
        for i0 in range(0, len(vals), gs):
            grp = vals[i0:i0 + gs]
            assert len(grp) >= 4
            batch([split_i(x, row, TP + 2 * i) for i, (x, row) in enumerate(grp)])
            if write:
                for x, row in grp:
                    wr_row(row)

    def read_frags(base, tag):
        for ks in range(4):
            a.lds(f"ds_read_b128 {vr(base + 4 * ks, 4)}, v{RA} offset:{64 * ks}", None)
            a.lds(f"ds_read_b128 {vr(base + 16 + 4 * ks, 4)}, v{RA} offset:{256 + 64 * ks}", tag)

    put_rows([(e(r), r) for r in range(16)])
    E2F = EE
    read_frags(E2F, "E2")
    RT = TP + 16

    def mfma_tile(m, E1F, tag):
        a.lds_need(tag)
        c = vr(KD + 4 * m, 4)
        first = True
        for ks in range(4):
            for (x, y) in ((16, 0), (0, 16), (0, 0)):
                src = "0" if first else c
                first = False
                a(f"v_mfma_f32_16x16x32_bf16 {c}, {vr(E1F + x + 4 * ks, 4)}, {vr(E2F + y + 4 * ks, 4)}, {src}")

    free_pairs = [16 + 2 * i for i in range(16)]
    t0, lst, k = [], [], 0
    for h in range(2):
        t0.append((H(h), 8 * h))
        for eps in range(1, 8):
            lst.append((free_pairs[k], H(h), z(eps)))
            t0.append((free_pairs[k], 8 * h + eps))
            k += 1
    cmuls(lst)
    put_rows(sorted(t0, key=lambda v: v[1]))
    t1, lst, k = [], [], 0
    for hp in range(2):
        t1.append((H(2 + hp), 4 * hp))
        for ep in range(1, 4):
            lst.append((free_pairs[k], H(2 + hp), z(2 * ep)))
            t1.append((free_pairs[k], 4 * hp + ep))
            k += 1
    for hp in range(4):
        t1.append((H(4 + hp), 8 + 2 * hp))
        lst.append((free_pairs[k], H(4 + hp), z(4)))
        t1.append((free_pairs[k], 8 + 2 * hp + 1))
        k += 1
    cmuls(lst)
    put_rows(sorted(t1, key=lambda v: v[1]), write=False)
    E1F, E1G = 80, 16
    read_frags(E1F, "T0")
    for row in range(16):
        wr_row(row)
    read_frags(E1G, "T1")
    put_rows([(H(8 + hp), hp) for hp in range(9)])
    a(f"s_cmp_ge_u32 s{S_W}, 4")
    a("s_cbranch_scc1 L_B_nou5")
    uloads(UR, 0)
    uloads([188, 190, 192, 194], 1)
    prefetch_q(a)
    a.label("L_B_nou5")
    mfma_tile(0, E1F, "T0")
    mfma_tile(1, E1G, "T1")
    read_frags(E1F, "T2")
    mfma_tile(2, E1F, "T2")
    a.stamp(3)
    a("s_nop 7")
    for j in range(4):
        a.lds(f"ds_write_b32 v{SA}, v{KD + j} offset:{4 * j}")
    a.lds(f"ds_write_b32 v{SA + 1}, v{KD + 4}")
    a.lds(f"ds_write_b32 v{SA + 1}, v{KD + 5} offset:4")
    a.lds(f"ds_write_b32 v{SA + 2}, v{KD + 6}")
    a.lds(f"ds_write_b32 v{SA + 2}, v{KD + 7} offset:4")
    for j in range(4):
        a.lds(f"ds_write_b32 v{SA + 3}, v{KD + 8 + j} offset:{72 * j}")
    one_lane(a, f"ds_add_u32 v2, v{V_ONE} offset:{FLAGS + 64}")
    a.lds(f"ds_read_b32 v{V_FLG}, v2 offset:{FLAGS + 64}", "tc")
    flag_check(a, FLAGS + 64, "tc", 2, vaddr=2)
    a.stamp(6)
    GV = 48
    FD = 44
    a("s_cmp_lg_u32 s65, 0")
    a("s_cbranch_scc1 L_B_g1")
    for h in range(2):
        if h:
            a.label("L_B_g1")
        a.lds_q = []
        if h == 0:
            maps = [list(range(11)), [11 + i for i in (0, 0, 0, 1, 1, 1, 2, 2, 2, 2, 2)]]
            nrd = [11, 3]
        else:
            maps = [[3 * rd + i for i in (0, 0, 0, 0, 2, 1, 1, 1, 1, 1, 1)] for rd in range(2)]
            nrd = [3, 3]
        k = 0
        for rd in range(2):
            for _ in range(nrd[rd]):
                a.lds(f"ds_read2st64_b32 {vr(GV + 2 * k, 2)}, v{GA + k} offset0:0 offset1:{STW // 256}", ("g", rd))
                k += 1
        build_FD(a, FD, 92, 92)
        k = 0
        for rd in range(2):
            a.lds_need(("g", rd))
            for _ in range(nrd[rd]):
                a(f"v_add_f32 v{GV + 2 * k}, v{GV + 2 * k}, v{GV + 2 * k + 1}")
                k += 1
            o = 96 + 16 * rd
            mp = maps[rd]
            for c in range(4):
                for x in range(4):
                    a(f"v_cvt_pk_bf16_f32 v{o + 4 * c + x}, v{GV + 2 * mp[2 * x + c]}, v{GV + 2 * mp[2 * x + c + 1]}")
            write4(a, 250, [o, o + 4, o + 8, o + 12], 32 + 1024 * rd, CSTR_B)
        if h == 0:
            a(f"v_lshlrev_b32 v32, 2, v{V_LANE}")
            a("v_add_u32 v32, s84, v32")
            write_pads(a, 32, 34, 96, 100, CSTR_B)
            a("s_branch L_B_nopad")
    a.label("L_B_nopad")
    one_lane(a, f"ds_add_u32 v2, v{V_ONE} offset:{FLAGS + 80}")
    a(f"s_cmp_ge_u32 s{S_W}, 4")
    a("s_cbranch_scc1 L_B_nou6")
    a("s_mov_b32 s78, 0x05040100")
    a("s_mov_b32 s79, 0x07060302")
    uprod(UR, TP, 0, 6)
    uprod([188, 190, 192, 194], TP + 8, 1, 2)
    a.label("L_B_nou6")
    a("v_mov_b32 v7, v5")
    a(f"v_lshlrev_b32 v5, 4, v{V_LANE}")
    a("v_add_u32 v5, s86, v5")
    a(f"v_and_b32 v6, 3, v{V_LANE}")
    a(f"v_lshrrev_b32 v32, 2, v{V_LANE}")
    a("v_lshl_add_u32 v6, v6, 4, v32")
    a("v_lshlrev_b32 v6, 4, v6")
    a(f"s_lshl_b32 s5, s{S_W}, 10")
    a(f"s_add_u32 s5, s5, {B_ST}")
    a("v_add_u32 v6, s5, v6")
    a.lds_drain()
    a.lds(f"ds_read_b32 v{V_FLG}, v2 offset:{FLAGS + 80}", "kc")
    flag_check(a, FLAGS + 80, "kc", 2, vaddr=2)
    a.stamp(8)
    if os.environ.get("BP1"):
        a("s_setprio 0")
    if os.environ.get("BP2"):
        a(f"s_cmp_lt_u32 s{S_W}, 4")
        a("s_cbranch_scc1 L_B_np")
        a("s_setprio 1")
        a.label("L_B_np")
    ACC, GB, FB = 64, 48, 96

    def on_done(p):
        if os.environ.get("X_NODONE"):
            return
        a.lds(f"ds_write_b128 v5, {vr(ACC + 4 * p, 4)} offset:{1024 * p}")
        if os.environ.get("X_NOSIG"):
            return
        one_lane(a, f"ds_add_u32 v{V_ZERO}, v{V_ONE} offset:{FLAGS + 32 + 4 * p}")

    def final(second):
        co = FLAGS + 32 + 16 * second
        so = 4096 * second
        if second:
            a("s_mov_b32 s7, 8")
        else:
            a(f"s_cmp_lt_u32 s{S_W}, 2")
            a("s_cselect_b32 s7, 4, 8")
        a.lds(f"ds_read_b32 v{V_FLG}, v7 offset:{co}", "cnt")
        flag_check(a, co, "cnt", "s7", vaddr=7)
        Y0, Y1 = 16, 32
        O = 48 + 8 * second
        for d in range(4):
            a(f"ds_read_b128 {vr(Y0 + 4 * d, 4)}, v6 offset:{2 * STW * d + so}")
        sk = a.newlabel("L_sk")
        a(f"v_lshlrev_b32 v2, 1, v{V_ROW}")
        a("v_subrev_u32 v2, s6, v2")
        a(f"v_add_u32 v2, {1280 + second * 1024 * 2560}, v2")
        if not second:
            a(f"s_cmp_lt_u32 s{S_W}, 2")
            a(f"s_cbranch_scc1 {sk}")
        for d in range(4):
            a(f"ds_read_b128 {vr(Y1 + 4 * d, 4)}, v6 offset:{2 * STW * d + STW + so}")
        a("s_waitcnt lgkmcnt(0)")
        for i in range(16):
            a(f"v_add_f32 v{Y0 + i}, v{Y0 + i}, v{Y1 + i}")
        a.label(sk)
        a.lds_drain()
        for r in range(4):
            for c in range(2):
                a(f"v_cvt_pk_bf16_f32 v{O + 2 * r + c}, v{Y0 + 8 * c + r}, v{Y0 + 8 * c + 4 + r}")
            if r == 2:
                a("v_add_u32 v2, 5120, v2")
            a(f"buffer_store_dwordx2 {vr(O + 2 * r, 2)}, v2, s[{SRD_O}:{SRD_O + 3}], 0 offen offset:{2560 * (r % 2)}")

    a("s_cmp_lg_u32 s65, 0")
    a("s_cbranch_scc1 L_B_h1")
    for h in (0, 1):
        if h:
            a.label("L_B_h1")
        a.lds_q = []
        Es = [0, 1, 5] if h == 0 else [2, 3, 4, 6, 7]
        pool = [48, 52, 56, 60] + [16 + 4 * i for i in range(7)]
        cv = Conv(a, FB, ACC, pool, {E: i for i, E in enumerate(Es)}, FD=FD)
        if h == 0:
            plan = [(0, [0], [1]), (1, [0, 1], [5]), (2, [0, 1, 5], []), (0, [1, 5], []), (1, [5], []),
                    (3, [0, 1], []), (4, [0, 1], []), (5, [0, 1], []), (6, [0, 1], []), (7, [0], [])]
        else:
            plan = [(0, [2], [3]), (1, [2, 3], [4]), (2, [2, 3, 4], [6]), (3, [2, 3, 4], [7]), (0, [3, 4, 6, 7], []),
                    (1, [4, 6], []), (4, [2, 3], []), (5, [2], [])]
        last = {}
        for k, (D, E_, ld) in enumerate(plan):
            for E in E_:
                last[E + D] = k
        assert sorted((E, D) for D, E_, _ in plan for E in E_) == sorted((E, D) for E in Es for D in range(8 - E))
        st = [dict(D=D, Es=E_, load=ld, need=D, done=[p for p in last if last[p] == k]) for k, (D, E_, ld) in enumerate(plan)]
        cv.run(st, on_done, jit_first=True)
        a.stamp(9)
        if h == 0:
            a("s_branch L_B_fin")
    a.label("L_B_fin")
    a.lds_drain()
    a(f"s_cmp_ge_u32 s{S_W}, 4")
    a("s_cbranch_scc1 L_B_done")
    if not os.environ.get("X_NOFIN"):
        final(0)
        final(1)
    a.label("L_B_done")
    a("s_waitcnt vmcnt(0)")
    a.stamp(11)
    a.stamp_out()
    a("s_endpgm")


def gen():
    a = Asm()
    prologue(a)
    path_A(a)
    path_B(a)
    a.lines += a.tail
    a.label("L_end")
    a("s_endpgm")
    return a


def main():
    a = gen()
    ref = open(f"cdna_kernels/{NAME}.s.ref").read()
    head = ref[:ref.index("; @launch")]
    out = head
    out += f"; @launch grid=(256,1,1) block=(512,1,1) lds={LDS_BYTES}\n"
    out += '.amdgcn_target "amdgcn-amd-amdhsa--gfx950"\n.text\n'
    out += f".globl {NAME}_kernel\n.p2align 8\n.type {NAME}_kernel,@function\n{NAME}_kernel:\n"
    out += "\n".join(a.lines) + "\n"
    out += f""".section .rodata,"a"
.p2align 6
.amdhsa_kernel {NAME}_kernel
  .amdhsa_next_free_vgpr 256
  .amdhsa_next_free_sgpr 102
  .amdhsa_accum_offset 256
  .amdhsa_group_segment_fixed_size 0
  .amdhsa_kernarg_size 144
  .amdhsa_user_sgpr_count 2
  .amdhsa_user_sgpr_kernarg_segment_ptr 1
  .amdhsa_system_sgpr_workgroup_id_x 1
.end_amdhsa_kernel
"""
    path = sys.argv[1] if len(sys.argv) > 1 else f"cdna_kernels/{NAME}.s"
    open(path, "w").write(out)
    print("LDS", LDS_BYTES, "lines", len(a.lines))


if __name__ == "__main__":
    main()
```

```python
import sys, struct, os
from collections import deque

NAME = "concat_heads__ssm_conv_h3__ssm_conv_s4__prompt"
PREFETCH = not os.environ.get("NOPF")
DIAG = bool(os.environ.get("DIAG"))


def f32bits(x):
    return struct.unpack("<I", struct.pack("<f", x))[0]


def f32(x):
    return struct.unpack("<f", struct.pack("<f", x))[0]


S_CH0 = 3
S_W = 4


class Asm:
    def __init__(self):
        self.lines = []
        self.lds_q = []
        self.vm_q = []
        self.nlab = 0
        self.tail = []

    def __call__(self, s):
        self.lines.append("    " + s)

    def label(self, s):
        self.lines.append(s + ":")

    def newlabel(self, p="L"):
        self.nlab += 1
        return f"{p}_{self.nlab}"

    def lds(self, s, tag=None):
        self(s)
        self.lds_q.append(tag)

    def lds_need(self, tag):
        idx = None
        for i, t in enumerate(self.lds_q):
            if t == tag:
                idx = i
        if idx is None:
            return
        n = min(len(self.lds_q) - 1 - idx, 15)
        self(f"s_waitcnt lgkmcnt({n})")
        self.lds_q = self.lds_q[len(self.lds_q) - n:] if n else []

    def lds_drain(self):
        self("s_waitcnt lgkmcnt(0)")
        self.lds_q = []

    def vm(self, s, tag=None):
        self(s)
        self.vm_q.append(tag)

    def vm_need(self, tag):
        idx = None
        for i, t in enumerate(self.vm_q):
            if t == tag:
                idx = i
        if idx is None:
            return
        n = min(len(self.vm_q) - 1 - idx, 63)
        self(f"s_waitcnt vmcnt({n})")
        self.vm_q = self.vm_q[len(self.vm_q) - n:] if n else []

    def stamp(self, i):
        if not DIAG:
            return
        self("s_memtime s[98:99]")
        self("s_waitcnt lgkmcnt(0)")
        self(f"v_writelane_b32 v0, s98, {i}")
        self.lds_q = []

    def rstamp(self, i):
        if not DIAG:
            return
        self("s_memrealtime s[98:99]")
        self("s_waitcnt lgkmcnt(0)")
        self(f"v_writelane_b32 v0, s98, {i}")

    def stamp_out(self):
        if not DIAG:
            return
        self("s_waitcnt vmcnt(0)")
        self.stamp(15)
        self.rstamp(14)
        self("s_lshl_b32 s98, s2, 3")
        self(f"s_add_u32 s98, s98, s{S_W}")
        self("s_lshl_b32 s98, s98, 8")
        self("v_lshlrev_b32 v1, 2, v1")
        self("v_add_u32 v1, s98, v1")
        self("global_store_dword v1, v0, s[100:101]")


def vr(a, n=1):
    return f"v{a}" if n == 1 else f"v[{a}:{a + n - 1}]"


XSTR = 4608
FLAGS = 0
CSTR_A = 2112
KSTR_A = 4 * CSTR_A
CSTR_B = 4160
KSTR_B = 4 * CSTR_B
A_KC = 640
A_XR = A_KC + 8 * KSTR_A
A_S = A_XR + 8 * XSTR
A_END = A_S + 8 * 4096
B_KC = 640
B_XR = B_KC + 4 * KSTR_B
B_ST = B_XR + 4 * XSTR
STW = 8704
B_END = B_ST + 8 * STW
LDS_BYTES = max(A_END, B_END)
assert LDS_BYTES <= 163840

SRD_K, SRD_V, SRD_Q, SRD_SK, SRD_O, SRD_PF = 8, 12, 16, 20, 24, 28
P = dict(q=32, k=34, v=36, shift_k=38, ssm_k=40, ssm_D=42, u=44, A_re=46, A_im=48,
         B_re=50, B_im=52, C_re=54, C_im=56, log_dt=58, Dskip=60, out=62)

V_LANE = 1
V_ROW = 3
V_FA = 8
V_GA = 12
V_ZERO = 13
V_ONE = 14
V_FLG = 15
S_MASK = 97
DUMMY = 128


def mk_srd(a, d, p, nbytes):
    a(f"s_mov_b32 s{d}, s{p}")
    a(f"s_mov_b32 s{d + 1}, s{p + 1}")
    a(f"s_mov_b32 s{d + 2}, {nbytes}")
    a(f"s_mov_b32 s{d + 3}, 0x00020000")


def conv_addrs(a, vt, sKC, sXR, cstr):
    a(f"v_and_b32 v{vt}, 15, v{V_LANE}")
    a(f"v_lshrrev_b32 v{vt + 1}, 4, v{V_LANE}")
    a(f"v_add_u32 v{vt + 2}, 1, v{vt}")
    a(f"v_lshrrev_b32 v{vt + 2}, 2, v{vt + 2}")
    a(f"v_lshl_add_u32 v{vt + 2}, v{vt + 1}, 1, v{vt + 2}")
    a(f"v_lshlrev_b32 v{vt + 2}, 3, v{vt + 2}")
    a(f"v_add_u32 v{vt + 3}, 1, v{vt}")
    a(f"v_and_b32 v{vt + 3}, 3, v{vt + 3}")
    a(f"v_mul_u32_u24 v{vt + 3}, {cstr}, v{vt + 3}")
    a(f"v_add3_u32 v{V_FA}, v{vt + 2}, v{vt + 3}, s{sKC}")
    a(f"v_lshlrev_b32 v{vt + 2}, 5, v{vt}")
    a(f"v_lshlrev_b32 v{vt + 3}, 4, v{vt + 1}")
    a(f"v_sub_u32 v{vt + 3}, v{vt + 3}, v{vt + 2}")
    a(f"v_add_u32 v{vt + 3}, 480, v{vt + 3}")
    a(f"v_add_u32 v{V_GA}, s{sXR}, v{vt + 3}")


def write4(a, va, Rs, off, cstr):
    for c, R in enumerate(Rs):
        a.lds(f"ds_write_b128 v{va}, {vr(R, 4)} offset:{off + c * cstr}")


def shift_quad(a, D, R, nx):
    a(f"v_pk_mov_b32 {vr(D, 2)}, {vr(R, 2)}, {vr(R + 2, 2)} op_sel:[1,0]")
    a(f"v_pk_mov_b32 {vr(D + 2, 2)}, {vr(R + 2, 2)}, {vr(nx, 2)} op_sel:[1,0]")


def write_pads(a, va, vp, N0, O0, cstr):
    a(f"v_readlane_b32 s30, v{N0}, 0")
    a(f"v_readlane_b32 s31, v{O0}, 0")
    for i in range(4):
        a(f"v_mov_b32 v{vp + i}, 0")
    a("s_lshl_b32 s5, s30, 16")
    a(f"v_writelane_b32 v{vp + 1}, s5, 7")
    a(f"v_writelane_b32 v{vp + 2}, s30, 7")
    a(f"v_writelane_b32 v{vp + 3}, s5, 6")
    a(f"v_writelane_b32 v{vp + 3}, s31, 7")
    a("s_mov_b64 exec, 0xff")
    for c in range(4):
        a.lds(f"ds_write_b32 v{va}, v{vp + c} offset:{c * cstr}")
    a("s_mov_b64 exec, -1")


def flag_issue(a, off, tag):
    a.lds(f"ds_read_b32 v{V_FLG}, v{V_ZERO} offset:{off}", tag)


def flag_check(a, off, tag, want, vaddr=V_ZERO):
    a.lds_need(tag)
    ok, spin = a.newlabel("L_ok"), a.newlabel("L_spin")
    a(f"v_readfirstlane_b32 s5, v{V_FLG}")
    a(f"s_cmp_lt_u32 s5, {want}")
    a(f"s_cbranch_scc1 {spin}")
    a.label(ok)
    t = a.tail
    t.append(f"{spin}:")
    t.append("    s_mov_b32 s96, 0")
    t.append(f"{spin}_l:")
    t.append("    s_sleep 1")
    t.append(f"    ds_read_b32 v{V_FLG}, v{vaddr} offset:{off}")
    t.append("    s_add_u32 s96, s96, 1")
    t.append("    s_cmp_gt_u32 s96, 0x40000")
    t.append(f"    s_cbranch_scc1 {ok}")
    t.append("    s_waitcnt lgkmcnt(0)")
    t.append(f"    v_readfirstlane_b32 s5, v{V_FLG}")
    t.append(f"    s_cmp_lt_u32 s5, {want}")
    t.append(f"    s_cbranch_scc1 {spin}_l")
    t.append(f"    s_branch {ok}")


def one_lane(a, s, tag=None):
    a.lds(s, tag)


def lane0_addr(a, vd, sbase):
    a(f"v_lshlrev_b32 v{vd}, 2, v{V_LANE}")
    a(f"v_add_u32 v{vd}, {DUMMY}, v{vd}")
    a(f"v_writelane_b32 v{vd}, 0, 0")
    if sbase is not None:
        a(f"v_add_u32 v{vd}, s{sbase}, v{vd}")


def need_tile(a, t):
    ok, spin = a.newlabel("L_ok"), a.newlabel("L_spin")
    a(f"s_bitcmp1_b32 s{S_MASK}, {t}")
    a(f"s_cbranch_scc0 {spin}")
    a.label(ok)
    tl = a.tail
    tl.append(f"{spin}:")
    tl.append("    s_mov_b32 s96, 0")
    tl.append(f"{spin}_l:")
    tl.append(f"    v_lshlrev_b32 v{V_FLG}, 2, v{V_LANE}")
    tl.append(f"    v_and_b32 v{V_FLG}, 31, v{V_FLG}")
    tl.append(f"    ds_read_b32 v{V_FLG}, v{V_FLG} offset:{FLAGS}")
    tl.append("    s_add_u32 s96, s96, 1")
    tl.append("    s_cmp_gt_u32 s96, 0x40000")
    tl.append(f"    s_cbranch_scc1 {ok}")
    tl.append("    s_waitcnt lgkmcnt(0)")
    tl.append(f"    v_cmp_ne_u32 vcc, 0, v{V_FLG}")
    tl.append("    s_nop 1")
    tl.append(f"    s_mov_b32 s{S_MASK}, vcc_lo")
    tl.append(f"    s_bitcmp1_b32 s{S_MASK}, {t}")
    tl.append(f"    s_cbranch_scc1 {ok}")
    tl.append("    s_sleep 1")
    tl.append(f"    s_branch {spin}_l")


JLA = 4


class Conv:
    def __init__(self, a, Fbase, acc, pool, slots, FD=None, maxla=10, emod=64):
        self.a, self.Fbase, self.acc = a, Fbase, acc
        self.emod = emod
        self.FD = FD
        self.free = deque(pool)
        self.slot_of = dict(slots)
        self.touched = set()
        self.maxla = maxla

    def issue_F(self, slot, E, eps):
        a = self.a
        e = 8 * E + eps
        r = self.Fbase + 32 * slot + 4 * eps
        eo = e % self.emod
        a.lds(f"ds_read_b64 {vr(r, 2)}, v{V_FA} offset:{64 * eo}", None)
        a.lds(f"ds_read_b64 {vr(r + 2, 2)}, v{V_FA} offset:{64 * eo + 8}", ("F", E, eps))

    def run(self, steps, on_done, jit_first=False):
        a = self.a
        seq = [(k, eps) for k in range(len(steps)) for eps in range(8)]
        issued = 0
        checked, started, flag_issued = set(), set(), set()
        pending_done = []
        gbuf = {}

        def can_issue(i):
            k, eps = seq[i]
            st = steps[k]
            if not self.free:
                return False
            if st.get("pre") is not None and k not in started:
                return False
            return st.get("need") is None or k in checked

        def issue_G(i):
            k, eps = seq[i]
            f = 8 * steps[k]["D"] - eps
            g = self.free.popleft()
            gbuf[i] = g
            a.lds(f"ds_read_b128 {vr(g, 4)}, v{V_GA} offset:{64 * (56 - f)}", ("G", i))

        for i, (k, eps) in enumerate(seq):
            st = steps[k]
            if eps == 0:
                if os.environ.get("FINE"):
                    a.stamp(16 + k)
                if st.get("pre") is not None:
                    if pending_done:
                        a("s_nop 7")
                        for t, _ in pending_done:
                            on_done(t)
                        pending_done = []
                    st["pre"]()
                    if "pool" in st:
                        self.free = deque(st["pool"])
                elif "pool_add" in st:
                    self.free.extend(st["pool_add"])
                started.add(k)
                if st.get("need") is not None and k not in checked:
                    need_tile(a, st["need"])
                    checked.add(k)
                if jit_first and k == 0:
                    for e2 in range(JLA):
                        for E in st["Es"]:
                            self.issue_F(self.slot_of[E], E, e2)
                        issue_G(issued)
                        issued += 1
            if k + 1 < len(steps):
                nx = steps[k + 1]
                if nx.get("need") is not None and nx.get("pre") is None:
                    if (k + 1) not in checked and issued >= 8 * (k + 1) and self.free and eps >= nx.get("chk", 0):
                        need_tile(a, nx["need"])
                        checked.add(k + 1)
            la = JLA if (jit_first and k == 0) else self.maxla
            while issued < len(seq) and issued <= i + la and can_issue(issued):
                issue_G(issued)
                issued += 1
            if jit_first and k == 0 and eps + JLA < 8:
                for E in st["Es"]:
                    self.issue_F(self.slot_of[E], E, eps + JLA)
            g = gbuf[i]
            a.lds_need(("G", i))
            for E in st["Es"]:
                a.lds_need(("F", E, eps))
                p = E + st["D"]
                r = self.Fbase + 32 * self.slot_of[E] + 4 * eps
                c = vr(self.acc + 4 * p, 4)
                src = c if p in self.touched else "0"
                self.touched.add(p)
                a(f"v_mfma_f32_16x16x32_bf16 {c}, {vr(r, 4)}, {vr(g, 4)}, {src}")
                if E == 0 and eps == 0 and self.FD is not None:
                    a(f"v_mfma_f32_16x16x32_bf16 {c}, {vr(self.FD, 4)}, {vr(g, 4)}, {c}")
                rl = st.get("reload")
                if rl and rl[0] == E:
                    self.issue_F(self.slot_of[E], rl[1], eps)
                if E == st["Es"][0]:
                    for En in st.get("load", []):
                        if jit_first and k == 0:
                            if eps >= 4:
                                self.issue_F(self.slot_of[En], En, 2 * (eps - 4))
                                self.issue_F(self.slot_of[En], En, 2 * (eps - 4) + 1)
                        else:
                            self.issue_F(self.slot_of[En], En, eps)
                npd = []
                for t, cnt in pending_done:
                    if cnt <= 0:
                        on_done(t)
                    else:
                        npd.append((t, cnt - 1))
                pending_done = npd
                fl = st.get("fill")
                if fl:
                    fl.popleft()()
            self.free.append(g)
            if eps == 7:
                rl = st.get("reload")
                if rl:
                    self.slot_of[rl[1]] = self.slot_of.pop(rl[0])
                for t in st.get("done", []):
                    pending_done.append((t, 7))
                fl = st.get("fill")
                while fl:
                    fl.popleft()()
        if pending_done:
            a("s_nop 7")
            for t, _ in pending_done:
                on_done(t)


def prologue(a):
    if DIAG:
        a("s_load_dwordx2 s[100:101], s[0:1], 136")
    a("s_load_dwordx16 s[32:47], s[0:1], 0")
    a("s_load_dwordx16 s[48:63], s[0:1], 64")
    a("s_and_b32 s5, s2, 7")
    a("s_lshr_b32 s6, s2, 3")
    a("v_lshrrev_b32 v2, 6, v0")
    a(f"v_and_b32 v{V_LANE}, 63, v0")
    a("s_cmp_lt_u32 s5, 4")
    a("s_cselect_b32 s7, 3, 2")
    a(f"v_readfirstlane_b32 s{S_W}, v2")
    a("s_mul_i32 s64, s5, 3")
    a("s_lshl_b32 s65, s5, 1")
    a("s_add_u32 s66, s65, 4")
    a("s_cmp_lt_u32 s5, 4")
    a("s_cselect_b32 s66, s64, s66")
    a("s_sub_u32 s67, s64, 4")
    a("s_cmp_lt_u32 s5, 4")
    a("s_cselect_b32 s67, s65, s67")
    a("s_lshl_b32 s68, s7, 2")
    a("s_sub_u32 s69, 5, s7")
    a("s_lshl_b32 s70, s69, 3")
    a("s_add_u32 s70, s70, s68")
    a("s_cmp_ge_u32 s6, s70")
    a("s_cbranch_scc1 L_end")
    a(f"v_mov_b32 v{V_ZERO}, 0")
    a(f"v_mov_b32 v{V_ONE}, 1")
    a(f"s_mov_b32 s{S_MASK}, 0")
    zero_flags(a, 2)
    lane0_addr(a, V_ZERO, None)
    a("s_waitcnt lgkmcnt(0)")
    a.stamp(0)
    a.rstamp(13)
    a("s_cmp_ge_u32 s6, s68")
    a("s_cbranch_scc1 L_B")


def zero_flags(a, vt):
    a(f"v_lshlrev_b32 v{vt}, 2, v{V_LANE}")
    a(f"v_and_b32 v{vt}, 127, v{vt}")
    a(f"ds_write_b32 v{vt}, v{V_ZERO} offset:{FLAGS}")


def build_FD(a, FD, vt, sD):
    a(f"v_and_b32 v{vt}, 15, v{V_LANE}")
    a(f"v_lshrrev_b32 v{vt + 1}, 4, v{V_LANE}")
    a(f"v_lshlrev_b32 v{vt + 1}, 3, v{vt + 1}")
    a(f"v_add_u32 v{vt}, v{vt}, v{vt + 1}")
    a(f"v_sub_u32 v{vt}, 15, v{vt}")
    a(f"v_and_b32 v{vt + 1}, 1, v{vt}")
    a(f"v_lshlrev_b32 v{vt + 1}, 4, v{vt + 1}")
    a(f"v_lshlrev_b32 v{vt + 1}, v{vt + 1}, s{sD}" if False else f"v_lshlrev_b32_e64 v{vt + 1}, v{vt + 1}, s{sD}")
    a(f"v_ashrrev_i32 v{vt}, 1, v{vt}")
    for j in range(4):
        a(f"v_cmp_eq_u32 vcc, {j}, v{vt}")
        a("s_nop 1")
        a(f"v_cndmask_b32 v{FD + j}, 0, v{vt + 1}, vcc")


def prefetch_setup(a):
    a("s_lshl_b32 s71, s7, 1")
    a("s_cmp_eq_u32 s71, 4")
    a("s_movk_i32 s73, 10923")
    a("s_cselect_b32 s73, 16384, s73")
    a("s_lshl_b32 s74, s6, 2")
    a(f"s_and_b32 s75, s{S_W}, 3")
    a("s_add_u32 s74, s74, s75")
    a("s_lshl_b32 s75, s69, 5")
    a("s_lshl_b32 s76, s71, 4")
    a("s_mov_b32 s81, 0")
    a(f"v_mul_u32_u24 v229, 1280, v{V_LANE}")
    for it in range(2):
        d = 12 + 4 * it
        if it:
            a("s_add_u32 s77, s74, s75")
        else:
            a("s_mov_b32 s77, s74")
        a("s_mul_i32 s78, s77, s73")
        a("s_lshr_b32 s78, s78, 16")
        a("s_mul_i32 s79, s78, s71")
        a("s_sub_u32 s79, s77, s79")
        a("s_add_u32 s78, s78, s81")
        a("s_and_b32 s80, s79, 1")
        a("s_lshr_b32 s79, s79, 1")
        a("s_add_u32 s79, s79, s66")
        a("s_cmp_eq_u32 s80, 0")
        a(f"s_cselect_b32 s{d}, s{P['k']}, s{P['v']}")
        a(f"s_cselect_b32 s{d + 1}, s{P['k'] + 1}, s{P['v'] + 1}")
        a(f"s_mov_b32 s{d + 2}, 2621440")
        a(f"s_mov_b32 s{d + 3}, 0x00020000")
        a("s_lshl_b32 s79, s79, 6")
        a("s_mul_i32 s78, s78, 81920")
        a("s_add_u32 s78, s78, s79")
        a("s_cmp_ge_u32 s77, s76")
        a(f"s_cselect_b32 s{94 + it}, 0x70000000, s78")
        a("s_lshl_b32 s78, s77, 1")
        a("s_mul_i32 s78, s78, s73")
        a("s_lshr_b32 s78, s78, 16")
        a("s_mul_i32 s79, s78, s7")
        a("s_sub_u32 s79, s77, s79")
        a("s_add_u32 s79, s79, s66")
        a("s_lshl_b32 s79, s79, 6")
        a("s_mul_i32 s78, s78, 81920")
        a("s_add_u32 s78, s78, s79")
        a("s_cmp_ge_u32 s77, s76")
        a(f"s_cselect_b32 s{28 + it}, 0x70000000, s78")
    mk_srd(a, 20, P['q'], 2621440)
    a(f"s_mov_b32 m0, {DUMMY}")


def prefetch_kv(a, second=False):
    for i in range(2):
        if second:
            a(f"s_add_u32 s{94 + i}, s{94 + i}, {16 * 81920}")
        if (second and os.environ.get("NOKV2")) or os.environ.get("NOKV"):
            a(f"s_mov_b32 s{94 + i}, 0x70000000")
        a(f"buffer_load_dword v229, s[{12 + 4 * i}:{15 + 4 * i}], s{94 + i} offen lds")


def prefetch_q(a):
    if os.environ.get("NOQPF"):
        a("s_mov_b32 s28, 0x70000000")
        a("s_mov_b32 s29, 0x70000000")
    for i in range(2):
        a(f"buffer_load_dword v229, s[20:23], s{28 + i} offen lds")


def path_A(a):
    a.vm_q = []
    a.lds_q = []
    a("s_lshr_b32 s71, s6, 2")
    a("s_add_u32 s71, s71, s66")
    a("s_and_b32 s72, s6, 3")
    a("s_lshl_b32 s71, s71, 5")
    a("s_lshl_b32 s72, s72, 3")
    a(f"s_add_u32 s{S_CH0}, s71, s72")
    mk_srd(a, SRD_SK, P['ssm_k'], 2621440)
    a(f"s_add_u32 s7, s{S_CH0}, s{S_W}")
    a("s_lshl_b32 s7, s7, 12")
    a(f"v_lshlrev_b32 v2, 4, v{V_LANE}")
    Q0, Q1 = 96, 112
    for j in range(4):
        a.vm(f"buffer_load_dwordx4 {vr(Q0 + 4 * j, 4)}, v2, s[{SRD_SK}:{SRD_SK + 3}], s7 offen offset:{1024 * j}", "K")
    a(f"s_lshl_b32 s5, s{S_CH0}, 3")
    a(f"s_lshl_b32 s6, s{S_CH0}, 1")
    a(f"s_mul_i32 s7, s{S_W}, {256 * 1280}")
    a("s_add_u32 s7, s7, s6")
    a(f"s_load_dwordx16 s[64:79], s[{P['shift_k']}:{P['shift_k'] + 1}], s5")
    a(f"s_load_dwordx4 s[80:83], s[{P['ssm_D']}:{P['ssm_D'] + 1}], s6")
    a("s_sub_u32 s5, s7, 3840")
    a(f"s_cmp_eq_u32 s{S_W}, 0")
    a("s_cselect_b32 s5, s6, s5")
    a("s_add_u32 s28, s5, 1280")
    a("s_add_u32 s29, s5, 2560")
    HS = 84
    a(f"s_load_dwordx4 s[{HS}:{HS + 3}], s[{P['k']}:{P['k'] + 1}], s5")
    a(f"s_load_dwordx4 s[{HS + 4}:{HS + 7}], s[{P['k']}:{P['k'] + 1}], s28")
    a(f"s_load_dwordx4 s[{HS + 8}:{HS + 11}], s[{P['k']}:{P['k'] + 1}], s29")
    mk_srd(a, SRD_K, P['k'], 2621440)
    mk_srd(a, SRD_V, P['v'], 2621440)
    mk_srd(a, SRD_Q, P['q'], 2621440)
    mk_srd(a, SRD_O, P['out'], 5242880)
    a(f"v_mul_u32_u24 v{V_ROW}, 5120, v{V_LANE}")
    a(f"v_add_u32 v{V_ROW}, s7, v{V_ROW}")
    a("s_barrier")
    KR, VR = 16, 32
    T = 48
    FD = 74
    SKC, SXR = 28, 29

    def xload(i):
        if i < 4:
            a.vm(f"buffer_load_dwordx4 {vr(KR + 4 * i, 4)}, v{V_ROW}, s[{SRD_K}:{SRD_K + 3}], 0 offen offset:{1280 * i}", "x")
        else:
            j = i - 4
            a.vm(f"buffer_load_dwordx4 {vr(VR + 4 * j, 4)}, v{V_ROW}, s[{SRD_V}:{SRD_V + 3}], 0 offen offset:{1280 * j}", "x")

    a(f"s_cmp_ge_u32 s{S_W}, 2")
    a("s_cbranch_scc1 L_A_skipx")
    for i in range(8):
        xload(i)
    a.label("L_A_skipx")
    a(f"s_mul_i32 s{SKC}, s{S_W}, {KSTR_A}")
    a(f"s_add_u32 s{SKC}, s{SKC}, {A_KC}")
    a(f"s_mul_i32 s{SXR}, s{S_W}, {XSTR}")
    a(f"s_add_u32 s{SXR}, s{SXR}, {A_XR}")
    a("v_mov_b32 v6, 0")
    a("v_mov_b32 v7, 0")
    a(f"v_lshlrev_b32 v{T}, 3, v{V_LANE}")
    a(f"v_add_u32 v{T}, s{SXR}, v{T}")
    a(f"ds_write_b64 v{T}, v[6:7] offset:4096")
    conv_addrs(a, T, SKC, SXR, CSTR_A)
    a.stamp(1)
    a(f"s_cmp_ge_u32 s{S_W}, 2")
    a("s_cbranch_scc1 L_A_kw1")
    a("s_waitcnt vmcnt(8)")
    a("s_branch L_A_kw2")
    a.label("L_A_kw1")
    a("s_waitcnt vmcnt(0)")
    a(f"s_cmp_ge_u32 s{S_W}, 4")
    a("s_cbranch_scc1 L_A_kw2")
    for i in range(8):
        xload(i)
    a.label("L_A_kw2")
    a.stamp(2)
    a(f"v_add_u32 v5, s{SKC}, v2")
    Q2, Q3, NX = 80, 48, 64
    for j in range(4):
        a(f"v_readlane_b32 s{44 + 2 * j}, v{Q0 + 4 * j}, 0")
        a(f"v_readlane_b32 s{45 + 2 * j}, v{Q0 + 4 * j + 1}, 0")
    for j in range(4):
        for x in range(3):
            a(f"v_alignbit_b32 v{Q1 + 4 * j + x}, v{Q0 + 4 * j + x + 1}, v{Q0 + 4 * j + x}, 16")
    for j in range(4):
        a(f"v_mov_b32 v{NX + 2 * j}, s{44 + 2 * min(j + 1, 3)}")
        a(f"v_mov_b32 v{NX + 2 * j + 1}, s{45 + 2 * min(j + 1, 3)}")
    a("s_nop 0")
    for j in range(4):
        a(f"v_mov_b32_dpp v{NX + 2 * j}, v{Q0 + 4 * j} wave_shl:1 row_mask:0xf bank_mask:0xf")
        a(f"v_mov_b32_dpp v{NX + 2 * j + 1}, v{Q0 + 4 * j + 1} wave_shl:1 row_mask:0xf bank_mask:0xf")
    for j in range(4):
        a(f"v_alignbit_b32 v{Q1 + 4 * j + 3}, v{NX + 2 * j}, v{Q0 + 4 * j + 3}, 16")
        shift_quad(a, Q2 + 4 * j, Q0 + 4 * j, NX + 2 * j)
    for j in range(4):
        a(f"v_alignbit_b32 v{NX + 2 * j}, v{NX + 2 * j + 1}, v{NX + 2 * j}, 16")
    for j in range(4):
        shift_quad(a, Q3 + 4 * j, Q1 + 4 * j, NX + 2 * j)
    a("s_waitcnt lgkmcnt(0)")
    a.lds_q = []
    Rs = lambda j: [Q0 + 4 * j, Q1 + 4 * j, Q2 + 4 * j, Q3 + 4 * j]
    for j in (2, 3):
        write4(a, 5, Rs(j), 32 + 1024 * (j - 2), CSTR_A)
    a("v_subrev_u32 v72, 992, v5")
    a("s_mov_b32 exec_lo, 0")
    a("s_mov_b32 exec_hi, 0xc0000000")
    write4(a, 72, Rs(1), 0, CSTR_A)
    a("s_mov_b64 exec, -1")
    cv0 = Conv(a, 128, 96, [], {7: 0, 6: 1, 5: 2, 4: 3}, emod=32)
    for eps in range(8):
        for E in (7, 6, 5, 4):
            cv0.issue_F(cv0.slot_of[E], E, eps)
    for j in (0, 1):
        write4(a, 5, Rs(j), 32 + 1024 * j, CSTR_A)
    a(f"v_lshlrev_b32 v5, 2, v{V_LANE}")
    a(f"v_add_u32 v5, s{SKC}, v5")
    write_pads(a, 5, 64, Q0, Q1, CSTR_A)
    q0 = list(a.lds_q)
    a(f"s_lshl_b32 s5, s{S_W}, 9")
    a(f"s_sub_u32 s5, {A_XR + 4088}, s5")
    a(f"v_lshlrev_b32 v4, 3, v{V_LANE}")
    a(f"s_lshl_b32 s30, s{S_W}, 12")
    a(f"s_add_u32 s30, s30, {A_S}")
    a("v_add_u32 v5, s30, v4")
    a("v_sub_u32 v4, s5, v4")
    a(f"v_and_b32 v6, 3, v{V_LANE}")
    a(f"v_lshrrev_b32 v7, 2, v{V_LANE}")
    a("v_lshl_add_u32 v6, v6, 4, v7")
    a("v_lshlrev_b32 v6, 3, v6")
    a(f"s_lshl_b32 s5, s{S_W}, 9")
    a(f"s_add_u32 s5, s5, {A_S}")
    a("v_add_u32 v6, s5, v6")
    a(f"s_lshl_b32 s30, s{S_W}, 2")
    a(f"v_add_u32 v7, s30, v{V_ZERO}")
    ACC, GB, FB = 96, 80, 128
    PSTEP = int(os.environ.get("PSTEP", "7"))
    FSTEP = int(os.environ.get("FSTEP", "10"))
    G4 = [80, 84, 88, 92]
    GX = [32 + 4 * i for i in range(8)]
    for c in range(4):
        for j in range(4):
            for hh in range(2):
                src = 64 + 2 * (2 * c + hh) + (j >> 1)
                dst = 32 + 8 * c + 2 * j + hh
                if j & 1:
                    a(f"s_and_b32 s{dst}, s{src}, 0xffff0000")
                else:
                    a(f"s_lshl_b32 s{dst}, s{src}, 16")
    a(f"s_lshr_b32 s5, s{S_W}, 1")
    a("s_cmp_eq_u32 s5, 1")
    a("s_cselect_b32 s30, s81, s80")
    a("s_cmp_eq_u32 s5, 2")
    a("s_cselect_b32 s30, s82, s30")
    a("s_cmp_eq_u32 s5, 3")
    a("s_cselect_b32 s30, s83, s30")
    a(f"s_and_b32 s5, s{S_W}, 1")
    a("s_lshl_b32 s5, s5, 4")
    a("s_lshr_b32 s30, s30, s5")
    a("s_and_b32 s30, s30, 0xffff")
    build_FD(a, FD, T, 30)
    a(f"s_cmp_lg_u32 s{S_W}, 0")
    a("s_cbranch_scc1 L_A_halo_ok")
    for i in range(12):
        a(f"s_mov_b32 s{HS + i}, 0")
    a.label("L_A_halo_ok")

    def produce():
        a.vm_need("x")
        KP, AC = T + 4, T + 18
        for c in range(4):
            for j in range(3):
                a(f"v_mov_b32 v{T + j}, s{HS + 4 * j + c}")
            for r in range(4):
                a(f"v_lshlrev_b32 v{KP + 6 + 2 * r}, 16, v{KR + 4 * r + c}")
                a(f"v_and_b32 v{KP + 7 + 2 * r}, 0xffff0000, v{KR + 4 * r + c}")
            for j in range(3):
                a(f"v_mov_b32_dpp v{T + j}, v{KR + 4 * (j + 1) + c} wave_shr:1 row_mask:0xf bank_mask:0xf")
            W = lambda j: f"s[{32 + 8 * c + 2 * j}:{33 + 8 * c + 2 * j}]"
            for r in range(4):
                a(f"v_pk_mul_f32 {vr(AC + 2 * r, 2)}, {W(0)}, {vr(KP + 6 + 2 * r, 2)}")
            for j in range(3):
                a(f"v_lshlrev_b32 v{KP + 2 * j}, 16, v{T + j}")
                a(f"v_and_b32 v{KP + 1 + 2 * j}, 0xffff0000, v{T + j}")
            for jj in (1, 2, 3):
                for r in range(4):
                    a(f"v_pk_fma_f32 {vr(AC + 2 * r, 2)}, {W(jj)}, {vr(KP + 2 * (3 + r - jj), 2)}, {vr(AC + 2 * r, 2)}")
            for r in range(4):
                a(f"v_lshlrev_b32 v{KP + 2 * r}, 16, v{VR + 4 * r + c}")
                a(f"v_and_b32 v{KP + 1 + 2 * r}, 0xffff0000, v{VR + 4 * r + c}")
            for r in range(4):
                a(f"v_pk_mul_f32 {vr(AC + 2 * r, 2)}, {vr(AC + 2 * r, 2)}, {vr(KP + 2 * r, 2)}")
            for hh in range(2):
                o = KP + 8 + 2 * hh
                a(f"v_cvt_pk_bf16_f32 v{o}, v{AC + 6 + hh}, v{AC + 4 + hh}")
                a(f"v_cvt_pk_bf16_f32 v{o + 1}, v{AC + 2 + hh}, v{AC + hh}")
                a.lds(f"ds_write_b64 v4, {vr(o, 2)} offset:{XSTR * (2 * c + hh)}")
        one_lane(a, f"ds_write_b32 v7, v{V_ONE} offset:{FLAGS}")

    def qload(j):
        if j < 4:
            a.vm(f"buffer_load_dwordx4 {vr(16 + 4 * j, 4)}, v2, s[{SRD_Q}:{SRD_Q + 3}], 0 offen offset:{1280 * j}", "q0")
        else:
            a.vm(f"buffer_load_dwordx4 {vr(16 + 4 * j, 4)}, v{V_ROW}, s[{SRD_Q}:{SRD_Q + 3}], 0 offen offset:{1280 * (j - 4)}", "q1")

    def on_done(p):
        a(f"v_cvt_pk_bf16_f32 v78, v{ACC + 4 * p}, v{ACC + 4 * p + 1}")
        a(f"v_cvt_pk_bf16_f32 v79, v{ACC + 4 * p + 2}, v{ACC + 4 * p + 3}")
        a.lds(f"ds_write_b64 v5, v[78:79] offset:{512 * p}")
        one_lane(a, f"ds_add_u32 v{V_ZERO}, v{V_ONE} offset:{FLAGS + 32 + 4 * p}")

    def final(second):
        QR = 16 + 16 * second
        co = FLAGS + 32 - (0 if second else 16)
        so = 2048 if second else 0
        a.lds(f"ds_read_b32 v{V_FLG}, v7 offset:{co}", "cnt")
        flag_check(a, co, "cnt", 8, vaddr=7)
        Y = 48
        for d in range(8):
            a.lds(f"ds_read_b64 {vr(Y + 2 * d, 2)}, v6 offset:{4096 * d + so}", ("y", d))
        if second:
            a(f"v_lshlrev_b32 v2, 1, v{V_ROW}")
        else:
            a("v_lshlrev_b32 v2, 1, v2")
        a("v_subrev_u32 v2, s6, v2")
        a.vm_need("q1" if second else "q0")
        SP, QP = 80, 88
        for c in range(4):
            for r in range(4):
                a(f"v_lshlrev_b32 v{QP + 2 * r}, 16, v{QR + 4 * r + c}")
                a(f"v_and_b32 v{QP + 2 * r + 1}, 0xffff0000, v{QR + 4 * r + c}")
            a.lds_need(("y", 2 * c + 1))
            for hh in range(2):
                y = Y + 2 * (2 * c + hh)
                a(f"v_lshlrev_b32 v{SP + hh}, 16, v{y}")
                a(f"v_and_b32 v{SP + 2 + hh}, 0xffff0000, v{y}")
                a(f"v_lshlrev_b32 v{SP + 4 + hh}, 16, v{y + 1}")
                a(f"v_and_b32 v{SP + 6 + hh}, 0xffff0000, v{y + 1}")
            for r in range(4):
                a(f"v_pk_mul_f32 {vr(SP + 2 * r, 2)}, {vr(SP + 2 * r, 2)}, {vr(QP + 2 * r, 2)}")
            for r in range(4):
                a(f"v_cvt_pk_bf16_f32 v{QR + 4 * r + c}, v{SP + 2 * r}, v{SP + 2 * r + 1}")
        for r in range(4):
            if r == 2:
                a("v_add_u32 v2, 5120, v2")
            a.vm(f"buffer_store_dwordx4 {vr(QR + 4 * r, 4)}, v2, s[{SRD_O}:{SRD_O + 3}], 0 offen offset:{2560 * (r % 2)}", "st")

    def sched(hi):
        st = [
            dict(D=0, Es=[7, 6, 5, 4], reload=(7, 3), need=0),
            dict(D=1, Es=[6, 5, 4, 3], reload=(6, 2), need=1),
            dict(D=2, Es=[5, 4, 3, 2], reload=(5, 1), need=2),
            dict(D=3, Es=[4, 3, 2, 1], reload=(4, 0), need=3),
            dict(D=0, Es=[3, 2, 1, 0], done=[0]),
            dict(D=1, Es=[2, 1, 0], done=[1]),
            dict(D=2, Es=[1, 0], done=[2]),
            dict(D=3, Es=[0], done=[3]),
            dict(D=4, Es=[3, 2, 1, 0], done=[4], need=4),
            dict(D=5, Es=[2, 1, 0], done=[5], need=5),
            dict(D=6, Es=[1, 0], done=[6], need=6),
            dict(D=7, Es=[0], done=[7], need=7),
        ]
        nop = lambda: None
        if hi:
            st[PSTEP]["pool"] = G4 + [48 + 4 * i for i in range(6)]
            st[FSTEP]["pre"] = lambda: final(0)
            st[FSTEP]["pool"] = G4 + [48 + 4 * i for i in range(6)]
            st[PSTEP]["pre"] = produce
            st[PSTEP]["fill"] = deque([(lambda j=j: qload(j)) for j in range(8)])
        else:
            st[1]["pool_add"] = GX
        return st

    a(f"s_cmp_ge_u32 s{S_W}, 4")
    a("s_cbranch_scc1 L_A_hi")
    for hi in (0, 1):
        if hi:
            a.label("L_A_hi")
            a.vm_q = []
            a(f"v_subrev_u32 v2, {1024 * 1280}, v{V_ROW}")
            a("v_subrev_u32 v6, 2048, v6")
        else:
            a.vm_q = ["x"] * 8
        a.lds_q = list(q0)
        cv = Conv(a, FB, ACC, G4, {7: 0, 6: 1, 5: 2, 4: 3}, FD=FD, emod=32)
        a.stamp(3)
        if not hi:
            produce()
        else:
            for i in range(8):
                xload(i)
            if not os.environ.get("NOPRIO"):
                a("s_setprio 1")
        a.stamp(4)
        cv.run(sched(hi), on_done)
        a.stamp(8)
        if hi:
            a("s_setprio 0")
            final(1)
        a.stamp(11)
        a.stamp_out()
        a("s_endpgm")


def path_B(a):
    a.label("L_B")
    a.vm_q = []
    a.lds_q = []
    a("s_sub_u32 s6, s6, s68")
    a("s_lshr_b32 s71, s6, 3")
    a("s_add_u32 s71, s71, s67")
    a("s_and_b32 s72, s6, 7")
    a("s_lshl_b32 s71, s71, 5")
    a("s_lshl_b32 s72, s72, 2")
    a(f"s_add_u32 s{S_CH0}, s71, s72")
    a(f"s_lshr_b32 s64, s{S_W}, 1")
    a(f"s_and_b32 s65, s{S_W}, 1")
    a(f"s_add_u32 s5, s{S_CH0}, s64")
    a("s_lshl_b32 s5, s5, 8")
    a("s_lshl_b32 s71, s65, 7")
    a("s_add_u32 s5, s5, s71")
    a(f"v_lshlrev_b32 v2, 1, v{V_LANE}")
    a("v_add_u32 v2, s5, v2")
    PR = 16
    for i, nm in enumerate(["A_re", "A_im", "B_re", "B_im", "C_re", "C_im"]):
        a.vm(f"global_load_ushort v{PR + i}, v2, s[{P[nm]}:{P[nm] + 1}]", "par")
    a(f"s_lshl_b32 s5, s{S_CH0}, 1")
    a(f"s_load_dwordx2 s[88:89], s[{P['log_dt']}:{P['log_dt'] + 1}], s5")
    a(f"s_load_dwordx2 s[90:91], s[{P['Dskip']}:{P['Dskip'] + 1}], s5")
    a("s_barrier")
    prefetch_setup(a)
    a(f"s_cmp_lt_u32 s{S_W}, 4")
    a("s_cbranch_scc1 L_B_nopf0")
    prefetch_kv(a)
    a.label("L_B_nopf0")
    UPF = True
    a(f"s_lshl_b32 s6, s{S_CH0}, 1")
    mk_srd(a, SRD_K, P['u'], 2621440)
    mk_srd(a, SRD_O, P['out'], 5242880)
    if not os.environ.get("NOUPF"):
        a(f"s_cmp_lt_u32 s{S_W}, 4")
        a("s_cbranch_scc1 L_B_nopf1")
        a(f"s_lshr_b32 s5, s{S_CH0}, 2")
        a("s_and_b32 s5, s5, 7")
        a("s_lshl_b32 s5, s5, 2")
        a(f"s_add_u32 s5, s5, s{S_W}")
        a("s_sub_u32 s5, s5, 4")
        a("s_mul_i32 s5, s5, 81920")
        a("s_add_u32 s5, s5, s6")
        if os.environ.get("NOUPF2"):
            a("s_mov_b32 s5, 0x70000000")
        a(f"buffer_load_dword v229, s[{SRD_K}:{SRD_K + 3}], s5 offen lds")
        prefetch_kv(a, True)
        a.label("L_B_nopf1")
    a(f"s_mul_i32 s7, s{S_W}, {256 * 1280}")
    a("s_add_u32 s7, s7, s6")
    a(f"v_mul_u32_u24 v{V_ROW}, 5120, v{V_LANE}")
    a(f"v_add_u32 v{V_ROW}, s7, v{V_ROW}")
    UR = [202, 230, 252, 254]
    UR2 = [170, 172, 174, 176]

    def uloads(R, second):
        so = "s93" if second else "0"
        for j in range(4):
            a(f"buffer_load_dwordx2 {vr(R[j], 2)}, v{V_ROW}, s[{SRD_K}:{SRD_K + 3}], {so} offen offset:{1280 * j}")

    def uprod(R, t, second, cnt):
        a(f"s_waitcnt vmcnt({cnt})")
        for d in range(4):
            c, hh = d // 2, d % 2
            sel = "s78" if hh == 0 else "s79"
            a(f"v_perm_b32 v{t + 2 * d}, v{R[2] + c}, v{R[3] + c}, {sel}")
            a(f"v_perm_b32 v{t + 2 * d + 1}, v{R[0] + c}, v{R[1] + c}, {sel}")
            a(f"ds_write_b64 v4, {vr(t + 2 * d, 2)} offset:{XSTR * d + (0 if second else 2048)}")
        a(f"ds_write_b32 v5, v{V_ONE} offset:{FLAGS + 16 * second}")

    a(f"s_mov_b32 s93, {1024 * 1280}")
    a(f"s_mul_i32 s84, s64, {KSTR_B}")
    a(f"s_add_u32 s84, s84, {B_KC}")
    a(f"s_mul_i32 s85, s64, {XSTR}")
    a(f"s_add_u32 s85, s85, {B_XR}")
    a(f"s_mul_i32 s86, s{S_W}, {STW}")
    a(f"s_add_u32 s86, s86, {B_ST}")
    a(f"s_mul_i32 s87, s64, {2 * STW}")
    a(f"s_add_u32 s87, s87, {B_ST}")
    a("v_mov_b32 v6, 0")
    a("v_mov_b32 v7, 0")
    T = 24
    a(f"v_lshlrev_b32 v{T}, 3, v{V_LANE}")
    a(f"v_add_u32 v{T}, s85, v{T}")
    a(f"ds_write_b64 v{T}, v[6:7] offset:4096")
    conv_addrs(a, T, 84, 85, CSTR_B)
    GA = 232

    def fin_addr(g):
        a(f"v_lshrrev_b32 v{T + 3}, 3, v{g}")
        a(f"v_add_u32 v{g}, v{g}, v{T + 3}")
        a(f"v_lshl_add_u32 v{g}, v{g}, 2, s87")

    a("s_lshl_b32 s5, s65, 10")
    a(f"v_lshlrev_b32 v{T}, 3, v{V_LANE}")
    a("s_cmp_lg_u32 s65, 0")
    a("s_cbranch_scc1 L_B_ga1")
    a(f"v_cvt_f32_u32 v{T + 1}, v{T}")
    a("s_movk_i32 s71, 127")
    for x in range(0, 11, 2):
        g = GA + x
        a(f"v_add_f32 v{T + 2}, {f32bits(float(x)):#x}, v{T + 1}")
        a(f"v_add_f32 v{T + 3}, {f32bits(float(x + 1)):#x}, v{T + 1}")
        a(f"v_cvt_pk_bf16_f32 v{T + 2}, v{T + 2}, v{T + 3}")
        for y in range(2):
            if x + y > 10:
                continue
            if y == 0:
                a(f"v_and_b32 v{g}, 0xffff, v{T + 2}")
            else:
                a(f"v_lshrrev_b32 v{g + 1}, 16, v{T + 2}")
            a(f"v_subrev_u32 v{g + y}, 17024, v{g + y}")
            a(f"v_add_u32 v{T + 3}, {x + y}, v{T}")
            a(f"v_med3_i32 v{g + y}, v{g + y}, v{T + 3}, s71")
            fin_addr(g + y)
    a(f"v_lshlrev_b32 v{T + 1}, 1, v{V_LANE}")
    for i in range(3):
        a(f"v_add_u32 v{GA + 11 + i}, {384 + i}, v{T + 1}")
        fin_addr(GA + 11 + i)
    a("s_branch L_B_ga2")
    a.label("L_B_ga1")
    a(f"v_and_b32 v{T + 1}, 1, v{V_LANE}")
    a(f"v_add_u32 v{T + 1}, v{T + 1}, v{V_LANE}")
    for rd in range(2):
        a(f"v_add_u32 v{GA + 3 * rd}, {512 + 64 * rd}, v{V_LANE}")
        a(f"v_add_u32 v{GA + 3 * rd + 1}, {513 + 64 * rd}, v{V_LANE}")
        a(f"v_add_u32 v{GA + 3 * rd + 2}, {512 + 64 * rd}, v{T + 1}")
        for i in range(3):
            fin_addr(GA + 3 * rd + i)
    a.label("L_B_ga2")
    a(f"v_add_u32 v{T}, s5, v{T}")
    a(f"v_lshlrev_b32 v250, 1, v{T}")
    a("v_add_u32 v250, s84, v250")
    WA, RA = 216, 224
    a(f"v_lshlrev_b32 v{WA}, 2, v{V_LANE}")
    a(f"v_add_u32 v{WA}, s86, v{WA}")
    for i in range(1, 8):
        a(f"v_add_u32 v{WA + i}, {1088 * i}, v{WA}")
    a(f"v_and_b32 v{T}, 15, v{V_LANE}")
    a(f"v_lshrrev_b32 v{T + 1}, 4, v{V_LANE}")
    a(f"v_mul_u32_u24 v{RA}, 544, v{T}")
    a(f"v_lshl_add_u32 v{RA}, v{T + 1}, 4, v{RA}")
    a(f"v_add_u32 v{RA}, s86, v{RA}")
    SA = 225
    a("s_mov_b32 s5, s86")
    a(f"v_lshrrev_b32 v{SA}, 1, v{T + 1}")
    a(f"v_lshlrev_b32 v{SA}, 7, v{SA}")
    a(f"v_and_b32 v{T + 2}, 1, v{T + 1}")
    a(f"v_lshl_add_u32 v{SA}, v{T + 2}, 2, v{SA}")
    a(f"v_lshl_add_u32 v{SA}, v{T}, 3, v{SA}")
    a(f"v_lshrrev_b32 v{T + 4}, 3, v{SA}")
    a(f"v_add_u32 v{SA}, v{SA}, v{T + 4}")
    a(f"v_lshl_add_u32 v{SA}, v{SA}, 2, s5")
    a(f"v_lshlrev_b32 v{SA + 1}, 6, v{T + 1}")
    a(f"v_add_u32 v{SA + 1}, 256, v{SA + 1}")
    a(f"v_cmp_gt_u32 vcc, 2, v{T + 1}")
    a(f"v_lshlrev_b32 v{T + 2}, 2, v{T}")
    a(f"v_lshlrev_b32 v{T + 3}, 1, v{T}")
    a(f"v_cndmask_b32 v{T + 2}, v{T + 3}, v{T + 2}, vcc")
    a(f"v_add_u32 v{SA + 1}, v{SA + 1}, v{T + 2}")
    a(f"v_lshrrev_b32 v{T + 4}, 3, v{SA + 1}")
    a(f"v_add_u32 v{SA + 1}, v{SA + 1}, v{T + 4}")
    a(f"v_lshl_add_u32 v{SA + 1}, v{SA + 1}, 2, s5")
    a(f"v_mov_b32 v{T + 2}, 144")
    a(f"v_cndmask_b32_e64 v{T + 2}, v{T + 2}, 8, vcc")
    a(f"v_add_u32 v{SA + 2}, v{SA + 1}, v{T + 2}")
    a(f"v_lshl_add_u32 v{SA + 3}, v{T + 1}, 6, v{T}")
    a(f"v_add_u32 v{SA + 3}, 512, v{SA + 3}")
    a(f"v_lshrrev_b32 v{T + 4}, 3, v{SA + 3}")
    a(f"v_add_u32 v{SA + 3}, v{SA + 3}, v{T + 4}")
    a(f"v_lshl_add_u32 v{SA + 3}, v{SA + 3}, 2, s5")
    a(f"s_lshl_b32 s5, s{S_W}, 9")
    a(f"s_sub_u32 s5, {B_XR + 4088 - 2048}, s5")
    a(f"v_lshlrev_b32 v4, 3, v{V_LANE}")
    a("v_sub_u32 v4, s5, v4")
    a("s_lshl_b32 s5, s64, 2")
    a(f"v_add_u32 v2, s5, v{V_ZERO}")
    a(f"s_lshl_b32 s5, s{S_W}, 2")
    a(f"v_add_u32 v5, s5, v{V_ZERO}")
    a("s_waitcnt lgkmcnt(0)")
    a("s_lshr_b32 s5, s64, 1")
    a("s_cmp_eq_u32 s5, 0")
    a("s_cselect_b32 s66, s88, s89")
    a("s_cselect_b32 s92, s90, s91")
    a("s_and_b32 s5, s64, 1")
    a("s_lshl_b32 s5, s5, 4")
    a("s_lshr_b32 s66, s66, s5")
    a("s_lshl_b32 s66, s66, 16")
    a("s_lshr_b32 s92, s92, s5")
    a("s_and_b32 s92, s92, 0xffff")
    L2E = 1.4426950408889634
    I2P = 0.15915494309189535
    a(f"s_mov_b32 s68, {f32bits(f32(L2E)):#x}")
    a(f"s_mov_b32 s69, {f32bits(L2E - f32(L2E)):#x}")
    a(f"s_mov_b32 s70, {f32bits(0.6931471805599453):#x}")
    a(f"s_mov_b32 s71, {f32bits(f32(I2P)):#x}")
    a(f"s_mov_b32 s72, {f32bits(I2P - f32(I2P)):#x}")
    a(f"v_mov_b32 v{T}, s66")
    a(f"v_mul_f32 v{T + 1}, s68, v{T}")
    a(f"v_fma_f32 v{T + 2}, v{T}, s68, -v{T + 1}")
    a(f"v_fmac_f32 v{T + 2}, s69, v{T}")
    a(f"v_exp_f32 v{T + 3}, v{T + 1}")
    a(f"v_mul_f32 v{T + 2}, s70, v{T + 2}")
    a("s_nop 0")
    a(f"v_fma_f32 v{T + 3}, v{T + 3}, v{T + 2}, v{T + 3}")
    a(f"v_cvt_pk_bf16_f32 v{T + 3}, v{T + 3}, v{T + 3}")
    a(f"v_lshlrev_b32 v{T + 3}, 16, v{T + 3}")
    a.stamp(1)
    a(f"s_cmp_lt_u32 s{S_W}, 4")
    a("s_cbranch_scc1 L_B_w0")
    a("s_waitcnt vmcnt(5)")
    a("s_branch L_B_w1")
    a.label("L_B_w0")
    a("s_waitcnt vmcnt(0)")
    a.label("L_B_w1")
    a.stamp(2)
    if os.environ.get("BP1"):
        a("s_setprio 1")
    for i in range(6):
        a(f"v_lshlrev_b32 v{PR + i}, 16, v{PR + i}")
    for i in range(4):
        a(f"v_mul_f32 v{PR + i}, v{T + 3}, v{PR + i}")

    EE, ZZ, HH = 48, 80, 96
    Z128, Z256, Z512, Z1024 = 130, 132, 134, 136
    TP, PK, KD = 138, 170, 204

    def batch(fns):
        n = max(len(f) for f in fns)
        for i in range(n):
            for f in fns:
                if i < len(f):
                    a(f[i])

    def cmul_i(d, x, y, t):
        return [f"v_pk_mul_f32 {vr(t, 2)}, {vr(x, 2)}, {vr(y, 2)} op_sel:[0,0] op_sel_hi:[1,0]",
                f"v_pk_fma_f32 {vr(d, 2)}, {vr(x, 2)}, {vr(y, 2)}, {vr(t, 2)} op_sel:[1,1,0] op_sel_hi:[0,1,1] neg_lo:[1,0,0]"]

    def cmuls(lst):
        batch([cmul_i(d, x, y, TP + 2 * i) for i, (d, x, y) in enumerate(lst)])

    def anchor_i(d, sreg, t, conj):
        return [f"v_mul_f32 v{t}, s{sreg}, v{PR}",
                f"v_mul_f32 v{t + 1}, s{sreg}, v{PR + 1}",
                f"v_mul_f32 v{t}, s68, v{t}",
                f"v_mul_f32 v{t + 2}, s71, v{t + 1}",
                f"v_exp_f32 v{t}, v{t}",
                f"v_fma_f32 v{t + 3}, v{t + 1}, s71, -v{t + 2}",
                f"v_fmac_f32 v{t + 3}, s72, v{t + 1}",
                f"v_fract_f32 v{t + 2}, v{t + 2}",
                f"v_add_f32 v{t + 2}, v{t + 2}, v{t + 3}",
                f"v_cos_f32 v{t + 1}, v{t + 2}",
                f"v_sin_f32 v{t + 3}, v{t + 2}",
                f"v_mul_f32 v{d}, v{t}, v{t + 1}",
                (f"v_mul_f32_e64 v{d + 1}, -v{t}, v{t + 3}" if conj else f"v_mul_f32 v{d + 1}, v{t}, v{t + 3}")]

    a("s_mov_b32 s80, 0x0000bf80")
    a("s_mov_b32 s81, 0xbf800000")
    anchors = [(EE + 2, 8, True), (EE + 16, 64, True), (ZZ + 2, 1, False), (Z128, 128, False), (Z1024, 1024, False)]
    for i, (d, lam, cj) in enumerate(anchors):
        a(f"s_mov_b32 s{73 + i}, {f32bits(float(lam)):#x}")
    batch([anchor_i(d, 73 + i, TP + 4 * i, cj) for i, (d, lam, cj) in enumerate(anchors)]
          + [cmul_i(HH, PR + 4, PR + 2, TP + 20)])
    a(f"v_max_f32_e64 v{TP}, abs(v{HH}), abs(v{HH + 1})")
    a(f"v_cmp_lt_f32 vcc, 0, v{PR}")
    a("s_nop 0")
    for ctl in ("row_shr:1 row_mask:0xf", "row_shr:2 row_mask:0xf", "row_shr:4 row_mask:0xf", "row_shr:8 row_mask:0xf",
                "row_bcast:15 row_mask:0xa", "row_bcast:31 row_mask:0xc"):
        a(f"v_max_f32_dpp v{TP}, v{TP}, v{TP} {ctl} bank_mask:0xf")
        a("s_nop 1")
    a(f"v_readlane_b32 s5, v{TP}, 63")
    a("s_or_b32 s83, vcc_lo, vcc_hi")
    a(f"v_mov_b32 v{EE}, 1.0")
    a(f"v_mov_b32 v{EE + 1}, 0")
    a("s_lshr_b32 s5, s5, 23")
    a("s_max_u32 s5, s5, 1")
    a("s_min_u32 s5, s5, 252")
    a("s_sub_u32 s82, 253, s5")
    a("s_lshl_b32 s82, s82, 23")
    a("s_add_u32 s5, s5, 1")
    a("s_lshl_b32 s77, s5, 23")
    a(f"v_mul_f32 v{HH}, s82, v{HH}")
    a(f"v_mul_f32 v{HH + 1}, s82, v{HH + 1}")
    e = lambda r: EE + 2 * r
    z = lambda r: ZZ + 2 * r
    H = lambda h: HH + 2 * h
    cmuls([(e(2), e(1), e(1)), (z(2), z(1), z(1)), (Z256, Z128, Z128), (H(1), H(0), Z128), (e(9), e(8), e(1)),
           (H(8), H(0), Z1024)])
    cmuls([(e(3), e(2), e(1)), (e(4), e(2), e(2)), (z(3), z(2), z(1)), (z(4), z(2), z(2)), (Z512, Z256, Z256),
           (H(2), H(0), Z256), (H(3), H(1), Z256), (e(10), e(8), e(2)), (H(9), H(1), Z1024), (H(16), H(8), Z1024)])
    cmuls([(e(5), e(4), e(1)), (e(6), e(4), e(2)), (e(7), e(4), e(3)), (e(11), e(8), e(3)), (e(12), e(8), e(4)),
           (z(5), z(4), z(1)), (z(6), z(4), z(2)), (z(7), z(4), z(3)),
           (H(4), H(0), Z512), (H(5), H(1), Z512), (H(6), H(2), Z512), (H(7), H(3), Z512),
           (H(10), H(2), Z1024), (H(11), H(3), Z1024)])
    cmuls([(e(13), e(8), e(5)), (e(14), e(8), e(6)), (e(15), e(8), e(7)),
           (H(12), H(4), Z1024), (H(13), H(5), Z1024), (H(14), H(6), Z1024), (H(15), H(7), Z1024)])

    def split_i(x, row, t):
        hi, lo = PK + 2 * row, PK + 2 * row + 1
        return [f"v_cvt_pk_bf16_f32 v{hi}, v{x}, v{x + 1}",
                f"v_dot2_f32_bf16 v{t}, v{hi}, s80, v{x}",
                f"v_dot2_f32_bf16 v{t + 1}, v{hi}, s81, v{x + 1}",
                f"v_cvt_pk_bf16_f32 v{lo}, v{t}, v{t + 1}"]

    def wr_row(row):
        o = 136 * (row % 2)
        a.lds(f"ds_write2_b32 v{WA + row // 2}, v{PK + 2 * row}, v{PK + 2 * row + 1} offset0:{o} offset1:{o + 64}")

    def put_rows(vals, write=True):
        gs = 8 if len(vals) % 8 == 0 else 5
        for i0 in range(0, len(vals), gs):
            grp = vals[i0:i0 + gs]
            assert len(grp) >= 4
            batch([split_i(x, row, TP + 2 * i) for i, (x, row) in enumerate(grp)])
            if write:
                for x, row in grp:
                    wr_row(row)

    def read_frags(base, tag):
        for ks in range(4):
            a.lds(f"ds_read_b128 {vr(base + 4 * ks, 4)}, v{RA} offset:{64 * ks}", None)
            a.lds(f"ds_read_b128 {vr(base + 16 + 4 * ks, 4)}, v{RA} offset:{256 + 64 * ks}", tag)

    free_pairs = [16 + 2 * i for i in range(16)]

    def prod_lists():
        t0, l0, k = [], [], 0
        for h in range(2):
            t0.append((H(h), 8 * h))
            for eps in range(1, 8):
                l0.append((free_pairs[k], H(h), z(eps)))
                t0.append((free_pairs[k], 8 * h + eps))
                k += 1
        t1, l1, k = [], [], 0
        for hp in range(2):
            t1.append((H(2 + hp), 4 * hp))
            for ep in range(1, 4):
                l1.append((free_pairs[k], H(2 + hp), z(2 * ep)))
                t1.append((free_pairs[k], 4 * hp + ep))
                k += 1
        for hp in range(4):
            t1.append((H(4 + hp), 8 + 2 * hp))
            l1.append((free_pairs[k], H(4 + hp), z(4)))
            t1.append((free_pairs[k], 8 + 2 * hp + 1))
            k += 1
        return sorted(t0, key=lambda v: v[1]), l0, sorted(t1, key=lambda v: v[1]), l1

    def late_loads(tag):
        a(f"s_cmp_ge_u32 s{S_W}, 4")
        a(f"s_cbranch_scc1 L_B_nou5{tag}")
        uloads(UR, 0)
        uloads([188, 190, 192, 194], 1)
        prefetch_q(a)
        a.label(f"L_B_nou5{tag}")

    a("s_cmp_lg_u32 s83, 0")
    a("s_cbranch_scc1 L_B_kslow")
    t0_, l0_, t1_, l1_ = prod_lists()
    cmuls(l0_)
    for r in range(16):
        a(f"v_cvt_pk_f16_f32 v{PK + 2 * r}, v{e(r)}, v{e(r) + 1}")
        a(f"v_cvt_pk_f16_f32 v{PK + 2 * r + 1}, v{t0_[r][0]}, v{t0_[r][0] + 1}")
        if r:
            wr_row(r - 1)
    wr_row(15)
    read_frags(48, "P1")
    cmuls(l1_)
    for r in range(16):
        a(f"v_cvt_pk_f16_f32 v{PK + 2 * r}, v{t1_[r][0]}, v{t1_[r][0] + 1}")
        if r < 9:
            a(f"v_cvt_pk_f16_f32 v{PK + 2 * r + 1}, v{H(8 + r)}, v{H(8 + r) + 1}")
        if r:
            wr_row(r - 1)
    wr_row(15)
    read_frags(80, "P2")
    late_loads("f")
    a.lds_need("P1")
    for m, base, tag in ((0, 64, None), (1, 80, "P2"), (2, 96, None)):
        if tag:
            a.lds_need(tag)
        c = vr(KD + 4 * m, 4)
        for ks in range(4):
            a(f"v_mfma_f32_16x16x32_f16 {c}, {vr(base + 4 * ks, 4)}, {vr(48 + 4 * ks, 4)}, {'0' if ks == 0 else c}")
    a("s_branch L_B_kdone")
    a.label("L_B_kslow")
    a.lds_q = []
    put_rows([(e(r), r) for r in range(16)])
    E2F = EE
    read_frags(E2F, "E2")
    RT = TP + 16

    def mfma_tile(m, E1F, tag):
        a.lds_need(tag)
        c = vr(KD + 4 * m, 4)
        first = True
        for ks in range(4):
            for (x, y) in ((16, 0), (0, 16), (0, 0)):
                src = "0" if first else c
                first = False
                a(f"v_mfma_f32_16x16x32_bf16 {c}, {vr(E1F + x + 4 * ks, 4)}, {vr(E2F + y + 4 * ks, 4)}, {src}")

    free_pairs = [16 + 2 * i for i in range(16)]
    t0, lst, k = [], [], 0
    for h in range(2):
        t0.append((H(h), 8 * h))
        for eps in range(1, 8):
            lst.append((free_pairs[k], H(h), z(eps)))
            t0.append((free_pairs[k], 8 * h + eps))
            k += 1
    cmuls(lst)
    put_rows(sorted(t0, key=lambda v: v[1]))
    t1, lst, k = [], [], 0
    for hp in range(2):
        t1.append((H(2 + hp), 4 * hp))
        for ep in range(1, 4):
            lst.append((free_pairs[k], H(2 + hp), z(2 * ep)))
            t1.append((free_pairs[k], 4 * hp + ep))
            k += 1
    for hp in range(4):
        t1.append((H(4 + hp), 8 + 2 * hp))
        lst.append((free_pairs[k], H(4 + hp), z(4)))
        t1.append((free_pairs[k], 8 + 2 * hp + 1))
        k += 1
    cmuls(lst)
    put_rows(sorted(t1, key=lambda v: v[1]), write=False)
    E1F, E1G = 80, 16
    read_frags(E1F, "T0")
    for row in range(16):
        wr_row(row)
    read_frags(E1G, "T1")
    put_rows([(H(8 + hp), hp) for hp in range(9)])
    late_loads("s")
    mfma_tile(0, E1F, "T0")
    mfma_tile(1, E1G, "T1")
    read_frags(E1F, "T2")
    mfma_tile(2, E1F, "T2")
    a.label("L_B_kdone")
    a.lds_q = []
    a.stamp(3)
    a("s_nop 7")
    for j in range(12):
        a(f"v_mul_f32 v{KD + j}, s77, v{KD + j}")
    for j in range(4):
        a.lds(f"ds_write_b32 v{SA}, v{KD + j} offset:{4 * j}")
    a.lds(f"ds_write_b32 v{SA + 1}, v{KD + 4}")
    a.lds(f"ds_write_b32 v{SA + 1}, v{KD + 5} offset:4")
    a.lds(f"ds_write_b32 v{SA + 2}, v{KD + 6}")
    a.lds(f"ds_write_b32 v{SA + 2}, v{KD + 7} offset:4")
    for j in range(4):
        a.lds(f"ds_write_b32 v{SA + 3}, v{KD + 8 + j} offset:{72 * j}")
    one_lane(a, f"ds_add_u32 v2, v{V_ONE} offset:{FLAGS + 64}")
    a.lds(f"ds_read_b32 v{V_FLG}, v2 offset:{FLAGS + 64}", "tc")
    flag_check(a, FLAGS + 64, "tc", 2, vaddr=2)
    a.stamp(6)
    GV = 48
    FD = 44
    a("s_cmp_lg_u32 s65, 0")
    a("s_cbranch_scc1 L_B_g1")
    for h in range(2):
        if h:
            a.label("L_B_g1")
        a.lds_q = []
        if h == 0:
            maps = [list(range(11)), [11 + i for i in (0, 0, 0, 1, 1, 1, 2, 2, 2, 2, 2)]]
            nrd = [11, 3]
        else:
            maps = [[3 * rd + i for i in (0, 0, 0, 0, 2, 1, 1, 1, 1, 1, 1)] for rd in range(2)]
            nrd = [3, 3]
        k = 0
        for rd in range(2):
            for _ in range(nrd[rd]):
                a.lds(f"ds_read2st64_b32 {vr(GV + 2 * k, 2)}, v{GA + k} offset0:0 offset1:{STW // 256}", ("g", rd))
                k += 1
        build_FD(a, FD, 92, 92)
        k = 0
        for rd in range(2):
            a.lds_need(("g", rd))
            for _ in range(nrd[rd]):
                a(f"v_add_f32 v{GV + 2 * k}, v{GV + 2 * k}, v{GV + 2 * k + 1}")
                k += 1
            o = 96 + 16 * rd
            mp = maps[rd]
            for c in range(4):
                for x in range(4):
                    a(f"v_cvt_pk_bf16_f32 v{o + 4 * c + x}, v{GV + 2 * mp[2 * x + c]}, v{GV + 2 * mp[2 * x + c + 1]}")
            write4(a, 250, [o, o + 4, o + 8, o + 12], 32 + 1024 * rd, CSTR_B)
        if h == 0:
            a(f"v_lshlrev_b32 v32, 2, v{V_LANE}")
            a("v_add_u32 v32, s84, v32")
            write_pads(a, 32, 34, 96, 100, CSTR_B)
            a("s_branch L_B_nopad")
    a.label("L_B_nopad")
    one_lane(a, f"ds_add_u32 v2, v{V_ONE} offset:{FLAGS + 80}")
    a(f"s_cmp_ge_u32 s{S_W}, 4")
    a("s_cbranch_scc1 L_B_nou6")
    a("s_mov_b32 s78, 0x05040100")
    a("s_mov_b32 s79, 0x07060302")
    uprod(UR, TP, 0, 6)
    uprod([188, 190, 192, 194], TP + 8, 1, 2)
    a.label("L_B_nou6")
    a("v_mov_b32 v7, v5")
    a(f"v_lshlrev_b32 v5, 4, v{V_LANE}")
    a("v_add_u32 v5, s86, v5")
    a(f"v_and_b32 v6, 3, v{V_LANE}")
    a(f"v_lshrrev_b32 v32, 2, v{V_LANE}")
    a("v_lshl_add_u32 v6, v6, 4, v32")
    a("v_lshlrev_b32 v6, 4, v6")
    a(f"s_lshl_b32 s5, s{S_W}, 10")
    a(f"s_add_u32 s5, s5, {B_ST}")
    a("v_add_u32 v6, s5, v6")
    a.lds_drain()
    a.lds(f"ds_read_b32 v{V_FLG}, v2 offset:{FLAGS + 80}", "kc")
    flag_check(a, FLAGS + 80, "kc", 2, vaddr=2)
    a.stamp(8)
    if os.environ.get("BP1"):
        a("s_setprio 0")
    if os.environ.get("BP2"):
        a(f"s_cmp_lt_u32 s{S_W}, 4")
        a("s_cbranch_scc1 L_B_np")
        a("s_setprio 1")
        a.label("L_B_np")
    ACC, GB, FB = 64, 48, 96

    def on_done(p):
        if os.environ.get("X_NODONE"):
            return
        a.lds(f"ds_write_b128 v5, {vr(ACC + 4 * p, 4)} offset:{1024 * p}")
        if os.environ.get("X_NOSIG"):
            return
        one_lane(a, f"ds_add_u32 v{V_ZERO}, v{V_ONE} offset:{FLAGS + 32 + 4 * p}")

    def final(second):
        co = FLAGS + 32 + 16 * second
        so = 4096 * second
        if second:
            a("s_mov_b32 s7, 8")
        else:
            a(f"s_cmp_lt_u32 s{S_W}, 2")
            a("s_cselect_b32 s7, 4, 8")
        a.lds(f"ds_read_b32 v{V_FLG}, v7 offset:{co}", "cnt")
        flag_check(a, co, "cnt", "s7", vaddr=7)
        Y0, Y1 = 16, 32
        O = 48 + 8 * second
        for d in range(4):
            a(f"ds_read_b128 {vr(Y0 + 4 * d, 4)}, v6 offset:{2 * STW * d + so}")
        sk = a.newlabel("L_sk")
        a(f"v_lshlrev_b32 v2, 1, v{V_ROW}")
        a("v_subrev_u32 v2, s6, v2")
        a(f"v_add_u32 v2, {1280 + second * 1024 * 2560}, v2")
        if not second:
            a(f"s_cmp_lt_u32 s{S_W}, 2")
            a(f"s_cbranch_scc1 {sk}")
        for d in range(4):
            a(f"ds_read_b128 {vr(Y1 + 4 * d, 4)}, v6 offset:{2 * STW * d + STW + so}")
        a("s_waitcnt lgkmcnt(0)")
        for i in range(16):
            a(f"v_add_f32 v{Y0 + i}, v{Y0 + i}, v{Y1 + i}")
        a.label(sk)
        a.lds_drain()
        for r in range(4):
            for c in range(2):
                a(f"v_cvt_pk_bf16_f32 v{O + 2 * r + c}, v{Y0 + 8 * c + r}, v{Y0 + 8 * c + 4 + r}")
            if r == 2:
                a("v_add_u32 v2, 5120, v2")
            a(f"buffer_store_dwordx2 {vr(O + 2 * r, 2)}, v2, s[{SRD_O}:{SRD_O + 3}], 0 offen offset:{2560 * (r % 2)}")

    a("s_cmp_lg_u32 s65, 0")
    a("s_cbranch_scc1 L_B_h1")
    for h in (0, 1):
        if h:
            a.label("L_B_h1")
        a.lds_q = []
        Es = [0, 1, 5] if h == 0 else [2, 3, 4, 6, 7]
        pool = [48, 52, 56, 60] + [16 + 4 * i for i in range(7)]
        cv = Conv(a, FB, ACC, pool, {E: i for i, E in enumerate(Es)}, FD=FD)
        if h == 0:
            plan = [(0, [0], [1]), (1, [0, 1], [5]), (2, [0, 1, 5], []), (0, [1, 5], []), (1, [5], []),
                    (3, [0, 1], []), (4, [0, 1], []), (5, [0, 1], []), (6, [0, 1], []), (7, [0], [])]
        else:
            plan = [(0, [2], [3]), (1, [2, 3], [4]), (2, [2, 3, 4], [6]), (3, [2, 3, 4], [7]), (0, [3, 4, 6, 7], []),
                    (1, [4, 6], []), (4, [2, 3], []), (5, [2], [])]
        last = {}
        for k, (D, E_, ld) in enumerate(plan):
            for E in E_:
                last[E + D] = k
        assert sorted((E, D) for D, E_, _ in plan for E in E_) == sorted((E, D) for E in Es for D in range(8 - E))
        st = [dict(D=D, Es=E_, load=ld, need=D, done=[p for p in last if last[p] == k]) for k, (D, E_, ld) in enumerate(plan)]
        cv.run(st, on_done, jit_first=True)
        a.stamp(9)
        if h == 0:
            a("s_branch L_B_fin")
    a.label("L_B_fin")
    a.lds_drain()
    a(f"s_cmp_ge_u32 s{S_W}, 4")
    a("s_cbranch_scc1 L_B_done")
    if not os.environ.get("X_NOFIN"):
        final(0)
        final(1)
    a.label("L_B_done")
    a("s_waitcnt vmcnt(0)")
    a.stamp(11)
    a.stamp_out()
    a("s_endpgm")


def gen():
    a = Asm()
    prologue(a)
    path_A(a)
    path_B(a)
    a.lines += a.tail
    a.label("L_end")
    a("s_endpgm")
    return a


def main():
    a = gen()
    ref = open(f"cdna_kernels/{NAME}.s.ref").read()
    head = ref[:ref.index("; @launch")]
    out = head
    out += f"; @launch grid=(256,1,1) block=(512,1,1) lds={LDS_BYTES}\n"
    out += """; Generated by a hand-written Python generator (no compiler output).  One fused launch:
"""
    out += '.amdgcn_target "amdgcn-amd-amdhsa--gfx950"\n.text\n'
    out += f".globl {NAME}_kernel\n.p2align 8\n.type {NAME}_kernel,@function\n{NAME}_kernel:\n"
    out += "\n".join(a.lines) + "\n"
    out += f""".section .rodata,"a"
.p2align 6
.amdhsa_kernel {NAME}_kernel
  .amdhsa_next_free_vgpr 256
  .amdhsa_next_free_sgpr 102
  .amdhsa_accum_offset 256
  .amdhsa_group_segment_fixed_size 0
  .amdhsa_kernarg_size 144
  .amdhsa_user_sgpr_count 2
  .amdhsa_user_sgpr_kernarg_segment_ptr 1
  .amdhsa_system_sgpr_workgroup_id_x 1
.end_amdhsa_kernel
"""
    path = sys.argv[1] if len(sys.argv) > 1 else f"cdna_kernels/{NAME}.s"
    open(path, "w").write(out)
    print("LDS", LDS_BYTES, "lines", len(a.lines))


if __name__ == "__main__":
    main()
```

```python
import sys, struct, os
from collections import deque

NAME = "concat_heads__ssm_conv_h3__ssm_conv_s4__prompt"
PREFETCH = not os.environ.get("NOPF")
DIAG = bool(os.environ.get("DIAG"))


def f32bits(x):
    return struct.unpack("<I", struct.pack("<f", x))[0]


def f32(x):
    return struct.unpack("<f", struct.pack("<f", x))[0]


S_CH0 = 3
S_W = 4


class Asm:
    def __init__(self):
        self.lines = []
        self.lds_q = []
        self.vm_q = []
        self.nlab = 0
        self.tail = []

    def __call__(self, s):
        self.lines.append("    " + s)

    def label(self, s):
        self.lines.append(s + ":")

    def newlabel(self, p="L"):
        self.nlab += 1
        return f"{p}_{self.nlab}"

    def lds(self, s, tag=None):
        self(s)
        self.lds_q.append(tag)

    def lds_need(self, tag):
        idx = None
        for i, t in enumerate(self.lds_q):
            if t == tag:
                idx = i
        if idx is None:
            return
        n = min(len(self.lds_q) - 1 - idx, 15)
        self(f"s_waitcnt lgkmcnt({n})")
        self.lds_q = self.lds_q[len(self.lds_q) - n:] if n else []

    def lds_drain(self):
        self("s_waitcnt lgkmcnt(0)")
        self.lds_q = []

    def vm(self, s, tag=None):
        self(s)
        self.vm_q.append(tag)

    def vm_need(self, tag):
        idx = None
        for i, t in enumerate(self.vm_q):
            if t == tag:
                idx = i
        if idx is None:
            return
        n = min(len(self.vm_q) - 1 - idx, 63)
        self(f"s_waitcnt vmcnt({n})")
        self.vm_q = self.vm_q[len(self.vm_q) - n:] if n else []

    def stamp(self, i):
        if not DIAG:
            return
        self("s_memtime s[98:99]")
        self("s_waitcnt lgkmcnt(0)")
        self(f"v_writelane_b32 v0, s98, {i}")
        self.lds_q = []

    def rstamp(self, i):
        if not DIAG:
            return
        self("s_memrealtime s[98:99]")
        self("s_waitcnt lgkmcnt(0)")
        self(f"v_writelane_b32 v0, s98, {i}")

    def stamp_out(self):
        if not DIAG:
            return
        self("s_waitcnt vmcnt(0)")
        self.stamp(15)
        self.rstamp(14)
        self("s_lshl_b32 s98, s2, 3")
        self(f"s_add_u32 s98, s98, s{S_W}")
        self("s_lshl_b32 s98, s98, 8")
        self("v_lshlrev_b32 v1, 2, v1")
        self("v_add_u32 v1, s98, v1")
        self("global_store_dword v1, v0, s[100:101]")


def vr(a, n=1):
    return f"v{a}" if n == 1 else f"v[{a}:{a + n - 1}]"


XSTR = 4608
FLAGS = 0
CSTR_A = 2112
KSTR_A = 4 * CSTR_A
CSTR_B = 4160
KSTR_B = 4 * CSTR_B
A_KC = 640
A_XR = A_KC + 8 * KSTR_A
A_S = A_XR + 8 * XSTR
A_END = A_S + 8 * 4096
B_KC = 640
B_XR = B_KC + 4 * KSTR_B
B_ST = B_XR + 4 * XSTR
STW = 8704
B_END = B_ST + 8 * STW
LDS_BYTES = max(A_END, B_END)
assert LDS_BYTES <= 163840

SRD_K, SRD_V, SRD_Q, SRD_SK, SRD_O, SRD_PF = 8, 12, 16, 20, 24, 28
P = dict(q=32, k=34, v=36, shift_k=38, ssm_k=40, ssm_D=42, u=44, A_re=46, A_im=48,
         B_re=50, B_im=52, C_re=54, C_im=56, log_dt=58, Dskip=60, out=62)

V_LANE = 1
V_ROW = 3
V_FA = 8
V_GA = 12
V_ZERO = 13
V_ONE = 14
V_FLG = 15
S_MASK = 97
DUMMY = 128


def mk_srd(a, d, p, nbytes):
    a(f"s_mov_b32 s{d}, s{p}")
    a(f"s_mov_b32 s{d + 1}, s{p + 1}")
    a(f"s_mov_b32 s{d + 2}, {nbytes}")
    a(f"s_mov_b32 s{d + 3}, 0x00020000")


def conv_addrs(a, vt, sKC, sXR, cstr):
    a(f"v_and_b32 v{vt}, 15, v{V_LANE}")
    a(f"v_lshrrev_b32 v{vt + 1}, 4, v{V_LANE}")
    a(f"v_add_u32 v{vt + 2}, 1, v{vt}")
    a(f"v_lshrrev_b32 v{vt + 2}, 2, v{vt + 2}")
    a(f"v_lshl_add_u32 v{vt + 2}, v{vt + 1}, 1, v{vt + 2}")
    a(f"v_lshlrev_b32 v{vt + 2}, 3, v{vt + 2}")
    a(f"v_add_u32 v{vt + 3}, 1, v{vt}")
    a(f"v_and_b32 v{vt + 3}, 3, v{vt + 3}")
    a(f"v_mul_u32_u24 v{vt + 3}, {cstr}, v{vt + 3}")
    a(f"v_add3_u32 v{V_FA}, v{vt + 2}, v{vt + 3}, s{sKC}")
    a(f"v_lshlrev_b32 v{vt + 2}, 5, v{vt}")
    a(f"v_lshlrev_b32 v{vt + 3}, 4, v{vt + 1}")
    a(f"v_sub_u32 v{vt + 3}, v{vt + 3}, v{vt + 2}")
    a(f"v_add_u32 v{vt + 3}, 480, v{vt + 3}")
    a(f"v_add_u32 v{V_GA}, s{sXR}, v{vt + 3}")


def write4(a, va, Rs, off, cstr):
    for c, R in enumerate(Rs):
        a.lds(f"ds_write_b128 v{va}, {vr(R, 4)} offset:{off + c * cstr}")


def shift_quad(a, D, R, nx):
    a(f"v_pk_mov_b32 {vr(D, 2)}, {vr(R, 2)}, {vr(R + 2, 2)} op_sel:[1,0]")
    a(f"v_pk_mov_b32 {vr(D + 2, 2)}, {vr(R + 2, 2)}, {vr(nx, 2)} op_sel:[1,0]")


def write_pads(a, va, vp, N0, O0, cstr):
    a(f"v_readlane_b32 s30, v{N0}, 0")
    a(f"v_readlane_b32 s31, v{O0}, 0")
    for i in range(4):
        a(f"v_mov_b32 v{vp + i}, 0")
    a("s_lshl_b32 s5, s30, 16")
    a(f"v_writelane_b32 v{vp + 1}, s5, 7")
    a(f"v_writelane_b32 v{vp + 2}, s30, 7")
    a(f"v_writelane_b32 v{vp + 3}, s5, 6")
    a(f"v_writelane_b32 v{vp + 3}, s31, 7")
    a("s_mov_b64 exec, 0xff")
    for c in range(4):
        a.lds(f"ds_write_b32 v{va}, v{vp + c} offset:{c * cstr}")
    a("s_mov_b64 exec, -1")


def flag_issue(a, off, tag):
    a.lds(f"ds_read_b32 v{V_FLG}, v{V_ZERO} offset:{off}", tag)


def flag_check(a, off, tag, want, vaddr=V_ZERO):
    a.lds_need(tag)
    ok, spin = a.newlabel("L_ok"), a.newlabel("L_spin")
    a(f"v_readfirstlane_b32 s5, v{V_FLG}")
    a(f"s_cmp_lt_u32 s5, {want}")
    a(f"s_cbranch_scc1 {spin}")
    a.label(ok)
    t = a.tail
    t.append(f"{spin}:")
    t.append("    s_mov_b32 s96, 0")
    t.append(f"{spin}_l:")
    t.append("    s_sleep 1")
    t.append(f"    ds_read_b32 v{V_FLG}, v{vaddr} offset:{off}")
    t.append("    s_add_u32 s96, s96, 1")
    t.append("    s_cmp_gt_u32 s96, 0x40000")
    t.append(f"    s_cbranch_scc1 {ok}")
    t.append("    s_waitcnt lgkmcnt(0)")
    t.append(f"    v_readfirstlane_b32 s5, v{V_FLG}")
    t.append(f"    s_cmp_lt_u32 s5, {want}")
    t.append(f"    s_cbranch_scc1 {spin}_l")
    t.append(f"    s_branch {ok}")


def one_lane(a, s, tag=None):
    a.lds(s, tag)


def lane0_addr(a, vd, sbase):
    a(f"v_lshlrev_b32 v{vd}, 2, v{V_LANE}")
    a(f"v_add_u32 v{vd}, {DUMMY}, v{vd}")
    a(f"v_writelane_b32 v{vd}, 0, 0")
    if sbase is not None:
        a(f"v_add_u32 v{vd}, s{sbase}, v{vd}")


def need_tile(a, t):
    ok, spin = a.newlabel("L_ok"), a.newlabel("L_spin")
    a(f"s_bitcmp1_b32 s{S_MASK}, {t}")
    a(f"s_cbranch_scc0 {spin}")
    a.label(ok)
    tl = a.tail
    tl.append(f"{spin}:")
    tl.append("    s_mov_b32 s96, 0")
    tl.append(f"{spin}_l:")
    tl.append(f"    v_lshlrev_b32 v{V_FLG}, 2, v{V_LANE}")
    tl.append(f"    v_and_b32 v{V_FLG}, 31, v{V_FLG}")
    tl.append(f"    ds_read_b32 v{V_FLG}, v{V_FLG} offset:{FLAGS}")
    tl.append("    s_add_u32 s96, s96, 1")
    tl.append("    s_cmp_gt_u32 s96, 0x40000")
    tl.append(f"    s_cbranch_scc1 {ok}")
    tl.append("    s_waitcnt lgkmcnt(0)")
    tl.append(f"    v_cmp_ne_u32 vcc, 0, v{V_FLG}")
    tl.append("    s_nop 1")
    tl.append(f"    s_mov_b32 s{S_MASK}, vcc_lo")
    tl.append(f"    s_bitcmp1_b32 s{S_MASK}, {t}")
    tl.append(f"    s_cbranch_scc1 {ok}")
    tl.append("    s_sleep 1")
    tl.append(f"    s_branch {spin}_l")


JLA = 4


class Conv:
    def __init__(self, a, Fbase, acc, pool, slots, FD=None, maxla=10, emod=64):
        self.a, self.Fbase, self.acc = a, Fbase, acc
        self.emod = emod
        self.FD = FD
        self.free = deque(pool)
        self.slot_of = dict(slots)
        self.touched = set()
        self.maxla = maxla

    def issue_F(self, slot, E, eps):
        a = self.a
        e = 8 * E + eps
        r = self.Fbase + 32 * slot + 4 * eps
        eo = e % self.emod
        a.lds(f"ds_read_b64 {vr(r, 2)}, v{V_FA} offset:{64 * eo}", None)
        a.lds(f"ds_read_b64 {vr(r + 2, 2)}, v{V_FA} offset:{64 * eo + 8}", ("F", E, eps))

    def run(self, steps, on_done, jit_first=False):
        a = self.a
        seq = [(k, eps) for k in range(len(steps)) for eps in range(8)]
        issued = 0
        checked, started, flag_issued = set(), set(), set()
        pending_done = []
        gbuf = {}

        def can_issue(i):
            k, eps = seq[i]
            st = steps[k]
            if not self.free:
                return False
            if st.get("pre") is not None and k not in started:
                return False
            return st.get("need") is None or k in checked

        def issue_G(i):
            k, eps = seq[i]
            f = 8 * steps[k]["D"] - eps
            g = self.free.popleft()
            gbuf[i] = g
            a.lds(f"ds_read_b128 {vr(g, 4)}, v{V_GA} offset:{64 * (56 - f)}", ("G", i))

        for i, (k, eps) in enumerate(seq):
            st = steps[k]
            if eps == 0:
                if os.environ.get("FINE"):
                    a.stamp(16 + k)
                if st.get("pre") is not None:
                    if pending_done:
                        a("s_nop 7")
                        for t, _ in pending_done:
                            on_done(t)
                        pending_done = []
                    st["pre"]()
                    if "pool" in st:
                        self.free = deque(st["pool"])
                elif "pool_add" in st:
                    self.free.extend(st["pool_add"])
                started.add(k)
                if st.get("need") is not None and k not in checked:
                    need_tile(a, st["need"])
                    checked.add(k)
                if jit_first and k == 0:
                    for e2 in range(JLA):
                        for E in st["Es"]:
                            self.issue_F(self.slot_of[E], E, e2)
                        issue_G(issued)
                        issued += 1
            if k + 1 < len(steps):
                nx = steps[k + 1]
                if nx.get("need") is not None and nx.get("pre") is None:
                    if (k + 1) not in checked and issued >= 8 * (k + 1) and self.free and eps >= nx.get("chk", 0):
                        need_tile(a, nx["need"])
                        checked.add(k + 1)
            la = JLA if (jit_first and k == 0) else self.maxla
            while issued < len(seq) and issued <= i + la and can_issue(issued):
                issue_G(issued)
                issued += 1
            if jit_first and k == 0 and eps + JLA < 8:
                for E in st["Es"]:
                    self.issue_F(self.slot_of[E], E, eps + JLA)
            g = gbuf[i]
            a.lds_need(("G", i))
            for E in st["Es"]:
                a.lds_need(("F", E, eps))
                p = E + st["D"]
                r = self.Fbase + 32 * self.slot_of[E] + 4 * eps
                c = vr(self.acc + 4 * p, 4)
                src = c if p in self.touched else "0"
                self.touched.add(p)
                a(f"v_mfma_f32_16x16x32_bf16 {c}, {vr(r, 4)}, {vr(g, 4)}, {src}")
                if E == 0 and eps == 0 and self.FD is not None:
                    a(f"v_mfma_f32_16x16x32_bf16 {c}, {vr(self.FD, 4)}, {vr(g, 4)}, {c}")
                rl = st.get("reload")
                if rl and rl[0] == E:
                    self.issue_F(self.slot_of[E], rl[1], eps)
                if E == st["Es"][0]:
                    for En in st.get("load", []):
                        if jit_first and k == 0:
                            if eps >= 4:
                                self.issue_F(self.slot_of[En], En, 2 * (eps - 4))
                                self.issue_F(self.slot_of[En], En, 2 * (eps - 4) + 1)
                        else:
                            self.issue_F(self.slot_of[En], En, eps)
                npd = []
                for t, cnt in pending_done:
                    if cnt <= 0:
                        on_done(t)
                    else:
                        npd.append((t, cnt - 1))
                pending_done = npd
                fl = st.get("fill")
                if fl:
                    fl.popleft()()
            self.free.append(g)
            if eps == 7:
                rl = st.get("reload")
                if rl:
                    self.slot_of[rl[1]] = self.slot_of.pop(rl[0])
                for t in st.get("done", []):
                    pending_done.append((t, 7))
                fl = st.get("fill")
                while fl:
                    fl.popleft()()
        if pending_done:
            a("s_nop 7")
            for t, _ in pending_done:
                on_done(t)


def prologue(a):
    if DIAG:
        a("s_load_dwordx2 s[100:101], s[0:1], 136")
    a("s_load_dwordx16 s[32:47], s[0:1], 0")
    a("s_load_dwordx16 s[48:63], s[0:1], 64")
    a("s_and_b32 s5, s2, 7")
    a("s_lshr_b32 s6, s2, 3")
    a("v_lshrrev_b32 v2, 6, v0")
    a(f"v_and_b32 v{V_LANE}, 63, v0")
    a("s_cmp_lt_u32 s5, 4")
    a("s_cselect_b32 s7, 3, 2")
    a(f"v_readfirstlane_b32 s{S_W}, v2")
    a("s_mul_i32 s64, s5, 3")
    a("s_lshl_b32 s65, s5, 1")
    a("s_add_u32 s66, s65, 4")
    a("s_cmp_lt_u32 s5, 4")
    a("s_cselect_b32 s66, s64, s66")
    a("s_sub_u32 s67, s64, 4")
    a("s_cmp_lt_u32 s5, 4")
    a("s_cselect_b32 s67, s65, s67")
    a("s_lshl_b32 s68, s7, 2")
    a("s_sub_u32 s69, 5, s7")
    a("s_lshl_b32 s70, s69, 3")
    a("s_add_u32 s70, s70, s68")
    a("s_cmp_ge_u32 s6, s70")
    a("s_cbranch_scc1 L_end")
    a(f"v_mov_b32 v{V_ZERO}, 0")
    a(f"v_mov_b32 v{V_ONE}, 1")
    a(f"s_mov_b32 s{S_MASK}, 0")
    zero_flags(a, 2)
    lane0_addr(a, V_ZERO, None)
    a("s_waitcnt lgkmcnt(0)")
    a.stamp(0)
    a.rstamp(13)
    a("s_cmp_ge_u32 s6, s68")
    a("s_cbranch_scc1 L_B")


def zero_flags(a, vt):
    a(f"v_lshlrev_b32 v{vt}, 2, v{V_LANE}")
    a(f"v_and_b32 v{vt}, 127, v{vt}")
    a(f"ds_write_b32 v{vt}, v{V_ZERO} offset:{FLAGS}")


def build_FD(a, FD, vt, sD):
    a(f"v_and_b32 v{vt}, 15, v{V_LANE}")
    a(f"v_lshrrev_b32 v{vt + 1}, 4, v{V_LANE}")
    a(f"v_lshlrev_b32 v{vt + 1}, 3, v{vt + 1}")
    a(f"v_add_u32 v{vt}, v{vt}, v{vt + 1}")
    a(f"v_sub_u32 v{vt}, 15, v{vt}")
    a(f"v_and_b32 v{vt + 1}, 1, v{vt}")
    a(f"v_lshlrev_b32 v{vt + 1}, 4, v{vt + 1}")
    a(f"v_lshlrev_b32 v{vt + 1}, v{vt + 1}, s{sD}" if False else f"v_lshlrev_b32_e64 v{vt + 1}, v{vt + 1}, s{sD}")
    a(f"v_ashrrev_i32 v{vt}, 1, v{vt}")
    for j in range(4):
        a(f"v_cmp_eq_u32 vcc, {j}, v{vt}")
        a("s_nop 1")
        a(f"v_cndmask_b32 v{FD + j}, 0, v{vt + 1}, vcc")


def prefetch_setup(a):
    a("s_lshl_b32 s71, s7, 1")
    a("s_cmp_eq_u32 s71, 4")
    a("s_movk_i32 s73, 10923")
    a("s_cselect_b32 s73, 16384, s73")
    a("s_lshl_b32 s74, s6, 2")
    a(f"s_and_b32 s75, s{S_W}, 3")
    a("s_add_u32 s74, s74, s75")
    a("s_lshl_b32 s75, s69, 5")
    a("s_lshl_b32 s76, s71, 4")
    a("s_mov_b32 s81, 0")
    a(f"v_mul_u32_u24 v229, 1280, v{V_LANE}")
    for it in range(2):
        d = 12 + 4 * it
        if it:
            a("s_add_u32 s77, s74, s75")
        else:
            a("s_mov_b32 s77, s74")
        a("s_mul_i32 s78, s77, s73")
        a("s_lshr_b32 s78, s78, 16")
        a("s_mul_i32 s79, s78, s71")
        a("s_sub_u32 s79, s77, s79")
        a("s_add_u32 s78, s78, s81")
        a("s_and_b32 s80, s79, 1")
        a("s_lshr_b32 s79, s79, 1")
        a("s_add_u32 s79, s79, s66")
        a("s_cmp_eq_u32 s80, 0")
        a(f"s_cselect_b32 s{d}, s{P['k']}, s{P['v']}")
        a(f"s_cselect_b32 s{d + 1}, s{P['k'] + 1}, s{P['v'] + 1}")
        a(f"s_mov_b32 s{d + 2}, 2621440")
        a(f"s_mov_b32 s{d + 3}, 0x00020000")
        a("s_lshl_b32 s79, s79, 6")
        a("s_mul_i32 s78, s78, 81920")
        a("s_add_u32 s78, s78, s79")
        a("s_cmp_ge_u32 s77, s76")
        a(f"s_cselect_b32 s{94 + it}, 0x70000000, s78")
        a("s_lshl_b32 s78, s77, 1")
        a("s_mul_i32 s78, s78, s73")
        a("s_lshr_b32 s78, s78, 16")
        a("s_mul_i32 s79, s78, s7")
        a("s_sub_u32 s79, s77, s79")
        a("s_add_u32 s79, s79, s66")
        a("s_lshl_b32 s79, s79, 6")
        a("s_mul_i32 s78, s78, 81920")
        a("s_add_u32 s78, s78, s79")
        a("s_cmp_ge_u32 s77, s76")
        a(f"s_cselect_b32 s{28 + it}, 0x70000000, s78")
    mk_srd(a, 20, P['q'], 2621440)
    a(f"s_mov_b32 m0, {DUMMY}")


def prefetch_kv(a, second=False):
    for i in range(2):
        if second:
            a(f"s_add_u32 s{94 + i}, s{94 + i}, {16 * 81920}")
        if (second and os.environ.get("NOKV2")) or os.environ.get("NOKV"):
            a(f"s_mov_b32 s{94 + i}, 0x70000000")
        a(f"buffer_load_dword v229, s[{12 + 4 * i}:{15 + 4 * i}], s{94 + i} offen lds")


def prefetch_q(a):
    if os.environ.get("NOQPF"):
        a("s_mov_b32 s28, 0x70000000")
        a("s_mov_b32 s29, 0x70000000")
    for i in range(2):
        a(f"buffer_load_dword v229, s[20:23], s{28 + i} offen lds")


def path_A(a):
    a.vm_q = []
    a.lds_q = []
    a("s_lshr_b32 s71, s6, 2")
    a("s_add_u32 s71, s71, s66")
    a("s_and_b32 s72, s6, 3")
    a("s_lshl_b32 s71, s71, 5")
    a("s_lshl_b32 s72, s72, 3")
    a(f"s_add_u32 s{S_CH0}, s71, s72")
    mk_srd(a, SRD_SK, P['ssm_k'], 2621440)
    a(f"s_add_u32 s7, s{S_CH0}, s{S_W}")
    a("s_lshl_b32 s7, s7, 12")
    a(f"v_lshlrev_b32 v2, 4, v{V_LANE}")
    Q0, Q1 = 96, 112
    for j in range(4):
        a.vm(f"buffer_load_dwordx4 {vr(Q0 + 4 * j, 4)}, v2, s[{SRD_SK}:{SRD_SK + 3}], s7 offen offset:{1024 * j}", "K")
    a(f"s_lshl_b32 s5, s{S_CH0}, 3")
    a(f"s_lshl_b32 s6, s{S_CH0}, 1")
    a(f"s_mul_i32 s7, s{S_W}, {256 * 1280}")
    a("s_add_u32 s7, s7, s6")
    a(f"s_load_dwordx16 s[64:79], s[{P['shift_k']}:{P['shift_k'] + 1}], s5")
    a(f"s_load_dwordx4 s[80:83], s[{P['ssm_D']}:{P['ssm_D'] + 1}], s6")
    a("s_sub_u32 s5, s7, 3840")
    a(f"s_cmp_eq_u32 s{S_W}, 0")
    a("s_cselect_b32 s5, s6, s5")
    a("s_add_u32 s28, s5, 1280")
    a("s_add_u32 s29, s5, 2560")
    HS = 84
    a(f"s_load_dwordx4 s[{HS}:{HS + 3}], s[{P['k']}:{P['k'] + 1}], s5")
    a(f"s_load_dwordx4 s[{HS + 4}:{HS + 7}], s[{P['k']}:{P['k'] + 1}], s28")
    a(f"s_load_dwordx4 s[{HS + 8}:{HS + 11}], s[{P['k']}:{P['k'] + 1}], s29")
    mk_srd(a, SRD_K, P['k'], 2621440)
    mk_srd(a, SRD_V, P['v'], 2621440)
    mk_srd(a, SRD_Q, P['q'], 2621440)
    mk_srd(a, SRD_O, P['out'], 5242880)
    a(f"v_mul_u32_u24 v{V_ROW}, 5120, v{V_LANE}")
    a(f"v_add_u32 v{V_ROW}, s7, v{V_ROW}")
    a("s_barrier")
    KR, VR = 16, 32
    T = 48
    FD = 74
    SKC, SXR = 28, 29

    def xload(i):
        if i < 4:
            a.vm(f"buffer_load_dwordx4 {vr(KR + 4 * i, 4)}, v{V_ROW}, s[{SRD_K}:{SRD_K + 3}], 0 offen offset:{1280 * i}", "x")
        else:
            j = i - 4
            a.vm(f"buffer_load_dwordx4 {vr(VR + 4 * j, 4)}, v{V_ROW}, s[{SRD_V}:{SRD_V + 3}], 0 offen offset:{1280 * j}", "x")

    a(f"s_cmp_ge_u32 s{S_W}, 2")
    a("s_cbranch_scc1 L_A_skipx")
    for i in range(8):
        xload(i)
    a.label("L_A_skipx")
    a(f"s_mul_i32 s{SKC}, s{S_W}, {KSTR_A}")
    a(f"s_add_u32 s{SKC}, s{SKC}, {A_KC}")
    a(f"s_mul_i32 s{SXR}, s{S_W}, {XSTR}")
    a(f"s_add_u32 s{SXR}, s{SXR}, {A_XR}")
    a("v_mov_b32 v6, 0")
    a("v_mov_b32 v7, 0")
    a(f"v_lshlrev_b32 v{T}, 3, v{V_LANE}")
    a(f"v_add_u32 v{T}, s{SXR}, v{T}")
    a(f"ds_write_b64 v{T}, v[6:7] offset:4096")
    conv_addrs(a, T, SKC, SXR, CSTR_A)
    a.stamp(1)
    a.stamp(2)
    def stage(first):
        a(f"v_add_u32 v9, s{SKC}, v10")
        Q2, Q3, NX = 80, 48, 64
        for j in range(4):
            a(f"v_readlane_b32 s{64 + 2 * j}, v{Q0 + 4 * j}, 0")
            a(f"v_readlane_b32 s{65 + 2 * j}, v{Q0 + 4 * j + 1}, 0")
        for j in range(4):
            for x in range(3):
                a(f"v_alignbit_b32 v{Q1 + 4 * j + x}, v{Q0 + 4 * j + x + 1}, v{Q0 + 4 * j + x}, 16")
        for j in range(4):
            a(f"v_mov_b32 v{NX + 2 * j}, s{64 + 2 * min(j + 1, 3)}")
            a(f"v_mov_b32 v{NX + 2 * j + 1}, s{65 + 2 * min(j + 1, 3)}")
        a("s_nop 0")
        for j in range(4):
            a(f"v_mov_b32_dpp v{NX + 2 * j}, v{Q0 + 4 * j} wave_shl:1 row_mask:0xf bank_mask:0xf")
            a(f"v_mov_b32_dpp v{NX + 2 * j + 1}, v{Q0 + 4 * j + 1} wave_shl:1 row_mask:0xf bank_mask:0xf")
        for j in range(4):
            a(f"v_alignbit_b32 v{Q1 + 4 * j + 3}, v{NX + 2 * j}, v{Q0 + 4 * j + 3}, 16")
            shift_quad(a, Q2 + 4 * j, Q0 + 4 * j, NX + 2 * j)
        for j in range(4):
            a(f"v_alignbit_b32 v{NX + 2 * j}, v{NX + 2 * j + 1}, v{NX + 2 * j}, 16")
        for j in range(4):
            shift_quad(a, Q3 + 4 * j, Q1 + 4 * j, NX + 2 * j)
        Rs = lambda j: [Q0 + 4 * j, Q1 + 4 * j, Q2 + 4 * j, Q3 + 4 * j]
        for j in (2, 3):
            write4(a, 9, Rs(j), 32 + 1024 * (j - 2), CSTR_A)
        a("v_subrev_u32 v72, 992, v9")
        a("s_mov_b32 exec_lo, 0")
        a("s_mov_b32 exec_hi, 0xc0000000")
        write4(a, 72, Rs(1), 0, CSTR_A)
        a("s_mov_b64 exec, -1")
        cv0 = Conv(a, 128, 96, [], {7: 0, 6: 1, 5: 2, 4: 3}, emod=32)
        for eps in range(8):
            for E in (7, 6, 5, 4):
                cv0.issue_F(cv0.slot_of[E], E, eps)
        for j in (0, 1):
            write4(a, 9, Rs(j), 32 + 1024 * j, CSTR_A)
        a(f"v_lshlrev_b32 v9, 2, v{V_LANE}")
        a(f"v_add_u32 v9, s{SKC}, v9")
        write_pads(a, 9, 64, Q0, Q1, CSTR_A)

    a("v_mov_b32 v10, v2")
    a("s_waitcnt lgkmcnt(0)")
    a.lds_q = []
    a(f"s_lshl_b32 s5, s{S_W}, 9")
    a(f"s_sub_u32 s5, {A_XR + 4088}, s5")
    a(f"v_lshlrev_b32 v4, 3, v{V_LANE}")
    a(f"s_lshl_b32 s30, s{S_W}, 12")
    a(f"s_add_u32 s30, s30, {A_S}")
    a("v_add_u32 v5, s30, v4")
    a("v_sub_u32 v4, s5, v4")
    a(f"v_and_b32 v6, 3, v{V_LANE}")
    a(f"v_lshrrev_b32 v7, 2, v{V_LANE}")
    a("v_lshl_add_u32 v6, v6, 4, v7")
    a("v_lshlrev_b32 v6, 3, v6")
    a(f"s_lshl_b32 s5, s{S_W}, 9")
    a(f"s_add_u32 s5, s5, {A_S}")
    a("v_add_u32 v6, s5, v6")
    a(f"s_lshl_b32 s30, s{S_W}, 2")
    a(f"v_add_u32 v7, s30, v{V_ZERO}")
    ACC, GB, FB = 96, 80, 128
    PSTEP = int(os.environ.get("PSTEP", "7"))
    FSTEP = int(os.environ.get("FSTEP", "10"))
    G4 = [80, 84, 88, 92]
    GX = [32 + 4 * i for i in range(8)]
    for c in range(4):
        for j in range(4):
            for hh in range(2):
                src = 64 + 2 * (2 * c + hh) + (j >> 1)
                dst = 32 + 8 * c + 2 * j + hh
                if j & 1:
                    a(f"s_and_b32 s{dst}, s{src}, 0xffff0000")
                else:
                    a(f"s_lshl_b32 s{dst}, s{src}, 16")
    a(f"s_lshr_b32 s5, s{S_W}, 1")
    a("s_cmp_eq_u32 s5, 1")
    a("s_cselect_b32 s30, s81, s80")
    a("s_cmp_eq_u32 s5, 2")
    a("s_cselect_b32 s30, s82, s30")
    a("s_cmp_eq_u32 s5, 3")
    a("s_cselect_b32 s30, s83, s30")
    a(f"s_and_b32 s5, s{S_W}, 1")
    a("s_lshl_b32 s5, s5, 4")
    a("s_lshr_b32 s30, s30, s5")
    a("s_and_b32 s30, s30, 0xffff")
    build_FD(a, FD, T, 30)
    a(f"s_cmp_lg_u32 s{S_W}, 0")
    a("s_cbranch_scc1 L_A_halo_ok")
    for i in range(12):
        a(f"s_mov_b32 s{HS + i}, 0")
    a.label("L_A_halo_ok")
    a(f"s_cmp_lt_u32 s{S_W}, 2")
    a("s_cbranch_scc1 L_A_nostage")
    a("s_waitcnt vmcnt(0)")
    a(f"s_cmp_ge_u32 s{S_W}, 4")
    a("s_cbranch_scc1 L_A_kw2")
    for i in range(8):
        xload(i)
    a.label("L_A_kw2")
    stage(True)
    a.label("L_A_nostage")
    q0 = list(a.lds_q)

    def produce():
        a.vm_need("x")
        KP, AC = T + 4, T + 18
        for c in range(4):
            for j in range(3):
                a(f"v_mov_b32 v{T + j}, s{HS + 4 * j + c}")
            for r in range(4):
                a(f"v_lshlrev_b32 v{KP + 6 + 2 * r}, 16, v{KR + 4 * r + c}")
                a(f"v_and_b32 v{KP + 7 + 2 * r}, 0xffff0000, v{KR + 4 * r + c}")
            for j in range(3):
                a(f"v_mov_b32_dpp v{T + j}, v{KR + 4 * (j + 1) + c} wave_shr:1 row_mask:0xf bank_mask:0xf")
            W = lambda j: f"s[{32 + 8 * c + 2 * j}:{33 + 8 * c + 2 * j}]"
            for r in range(4):
                a(f"v_pk_mul_f32 {vr(AC + 2 * r, 2)}, {W(0)}, {vr(KP + 6 + 2 * r, 2)}")
            for j in range(3):
                a(f"v_lshlrev_b32 v{KP + 2 * j}, 16, v{T + j}")
                a(f"v_and_b32 v{KP + 1 + 2 * j}, 0xffff0000, v{T + j}")
            for jj in (1, 2, 3):
                for r in range(4):
                    a(f"v_pk_fma_f32 {vr(AC + 2 * r, 2)}, {W(jj)}, {vr(KP + 2 * (3 + r - jj), 2)}, {vr(AC + 2 * r, 2)}")
            for r in range(4):
                a(f"v_lshlrev_b32 v{KP + 2 * r}, 16, v{VR + 4 * r + c}")
                a(f"v_and_b32 v{KP + 1 + 2 * r}, 0xffff0000, v{VR + 4 * r + c}")
            for r in range(4):
                a(f"v_pk_mul_f32 {vr(AC + 2 * r, 2)}, {vr(AC + 2 * r, 2)}, {vr(KP + 2 * r, 2)}")
            for hh in range(2):
                o = KP + 8 + 2 * hh
                a(f"v_cvt_pk_bf16_f32 v{o}, v{AC + 6 + hh}, v{AC + 4 + hh}")
                a(f"v_cvt_pk_bf16_f32 v{o + 1}, v{AC + 2 + hh}, v{AC + hh}")
                a.lds(f"ds_write_b64 v4, {vr(o, 2)} offset:{XSTR * (2 * c + hh)}")
        one_lane(a, f"ds_write_b32 v7, v{V_ONE} offset:{FLAGS}")

    def qload(j):
        if j < 4:
            a.vm(f"buffer_load_dwordx4 {vr(16 + 4 * j, 4)}, v2, s[{SRD_Q}:{SRD_Q + 3}], 0 offen offset:{1280 * j}", "q0")
        else:
            a.vm(f"buffer_load_dwordx4 {vr(16 + 4 * j, 4)}, v{V_ROW}, s[{SRD_Q}:{SRD_Q + 3}], 0 offen offset:{1280 * (j - 4)}", "q1")

    def on_done(p):
        a(f"v_cvt_pk_bf16_f32 v78, v{ACC + 4 * p}, v{ACC + 4 * p + 1}")
        a(f"v_cvt_pk_bf16_f32 v79, v{ACC + 4 * p + 2}, v{ACC + 4 * p + 3}")
        a.lds(f"ds_write_b64 v5, v[78:79] offset:{512 * p}")
        one_lane(a, f"ds_add_u32 v{V_ZERO}, v{V_ONE} offset:{FLAGS + 32 + 4 * p}")

    def final(second):
        QR = 16 + 16 * second
        co = FLAGS + 32 - (0 if second else 16)
        so = 2048 if second else 0
        a.lds(f"ds_read_b32 v{V_FLG}, v7 offset:{co}", "cnt")
        flag_check(a, co, "cnt", 8, vaddr=7)
        Y = 48
        for d in range(8):
            a.lds(f"ds_read_b64 {vr(Y + 2 * d, 2)}, v6 offset:{4096 * d + so}", ("y", d))
        if second:
            a(f"v_lshlrev_b32 v2, 1, v{V_ROW}")
        else:
            a("v_lshlrev_b32 v2, 1, v2")
        a("v_subrev_u32 v2, s6, v2")
        a.vm_need("q1" if second else "q0")
        SP, QP = 80, 88
        for c in range(4):
            for r in range(4):
                a(f"v_lshlrev_b32 v{QP + 2 * r}, 16, v{QR + 4 * r + c}")
                a(f"v_and_b32 v{QP + 2 * r + 1}, 0xffff0000, v{QR + 4 * r + c}")
            a.lds_need(("y", 2 * c + 1))
            for hh in range(2):
                y = Y + 2 * (2 * c + hh)
                a(f"v_lshlrev_b32 v{SP + hh}, 16, v{y}")
                a(f"v_and_b32 v{SP + 2 + hh}, 0xffff0000, v{y}")
                a(f"v_lshlrev_b32 v{SP + 4 + hh}, 16, v{y + 1}")
                a(f"v_and_b32 v{SP + 6 + hh}, 0xffff0000, v{y + 1}")
            for r in range(4):
                a(f"v_pk_mul_f32 {vr(SP + 2 * r, 2)}, {vr(SP + 2 * r, 2)}, {vr(QP + 2 * r, 2)}")
            for r in range(4):
                a(f"v_cvt_pk_bf16_f32 v{QR + 4 * r + c}, v{SP + 2 * r}, v{SP + 2 * r + 1}")
        for r in range(4):
            if r == 2:
                a("v_add_u32 v2, 5120, v2")
            a.vm(f"buffer_store_dwordx4 {vr(QR + 4 * r, 4)}, v2, s[{SRD_O}:{SRD_O + 3}], 0 offen offset:{2560 * (r % 2)}", "st")

    def sched(hi):
        st = [
            dict(D=0, Es=[7, 6, 5, 4], reload=(7, 3), need=0),
            dict(D=1, Es=[6, 5, 4, 3], reload=(6, 2), need=1),
            dict(D=2, Es=[5, 4, 3, 2], reload=(5, 1), need=2),
            dict(D=3, Es=[4, 3, 2, 1], reload=(4, 0), need=3),
            dict(D=0, Es=[3, 2, 1, 0], done=[0]),
            dict(D=1, Es=[2, 1, 0], done=[1]),
            dict(D=2, Es=[1, 0], done=[2]),
            dict(D=3, Es=[0], done=[3]),
            dict(D=4, Es=[3, 2, 1, 0], done=[4], need=4),
            dict(D=5, Es=[2, 1, 0], done=[5], need=5),
            dict(D=6, Es=[1, 0], done=[6], need=6),
            dict(D=7, Es=[0], done=[7], need=7),
        ]
        nop = lambda: None
        if hi:
            st[PSTEP]["pool"] = G4 + [48 + 4 * i for i in range(6)]
            st[FSTEP]["pre"] = lambda: final(0)
            st[FSTEP]["pool"] = G4 + [48 + 4 * i for i in range(6)]
            st[PSTEP]["pre"] = produce
            st[PSTEP]["fill"] = deque([(lambda j=j: qload(j)) for j in range(8)])
        else:
            st[1]["pool_add"] = GX
        return st

    a(f"s_cmp_ge_u32 s{S_W}, 4")
    a("s_cbranch_scc1 L_A_hi")
    for hi in (0, 1):
        if hi:
            a.label("L_A_hi")
            a.vm_q = []
            a(f"v_subrev_u32 v2, {1024 * 1280}, v{V_ROW}")
            a("v_subrev_u32 v6, 2048, v6")
        else:
            a.vm_q = ["x"] * 8
        a.lds_q = list(q0)
        cv = Conv(a, FB, ACC, G4, {7: 0, 6: 1, 5: 2, 4: 3}, FD=FD, emod=32)
        a.stamp(3)
        if not hi:
            produce()
            a(f"s_cmp_ge_u32 s{S_W}, 2")
            a("s_cbranch_scc1 L_A_nostage2")
            stage(False)
            a.label("L_A_nostage2")
            a.lds_drain()
        else:
            for i in range(8):
                xload(i)
            if not os.environ.get("NOPRIO"):
                a("s_setprio 1")
        a.stamp(4)
        cv.run(sched(hi), on_done)
        a.stamp(8)
        if hi:
            a("s_setprio 0")
            final(1)
        a.stamp(11)
        a.stamp_out()
        a("s_endpgm")


def path_B(a):
    a.label("L_B")
    a.vm_q = []
    a.lds_q = []
    a("s_sub_u32 s6, s6, s68")
    a("s_lshr_b32 s71, s6, 3")
    a("s_add_u32 s71, s71, s67")
    a("s_and_b32 s72, s6, 7")
    a("s_lshl_b32 s71, s71, 5")
    a("s_lshl_b32 s72, s72, 2")
    a(f"s_add_u32 s{S_CH0}, s71, s72")
    a(f"s_lshr_b32 s64, s{S_W}, 1")
    a(f"s_and_b32 s65, s{S_W}, 1")
    a(f"s_add_u32 s5, s{S_CH0}, s64")
    a("s_lshl_b32 s5, s5, 8")
    a("s_lshl_b32 s71, s65, 7")
    a("s_add_u32 s5, s5, s71")
    a(f"v_lshlrev_b32 v2, 1, v{V_LANE}")
    a("v_add_u32 v2, s5, v2")
    PR = 16
    for i, nm in enumerate(["A_re", "A_im", "B_re", "B_im", "C_re", "C_im"]):
        a.vm(f"global_load_ushort v{PR + i}, v2, s[{P[nm]}:{P[nm] + 1}]", "par")
    a(f"s_lshl_b32 s5, s{S_CH0}, 1")
    a(f"s_load_dwordx2 s[88:89], s[{P['log_dt']}:{P['log_dt'] + 1}], s5")
    a(f"s_load_dwordx2 s[90:91], s[{P['Dskip']}:{P['Dskip'] + 1}], s5")
    a("s_barrier")
    prefetch_setup(a)
    a(f"s_cmp_lt_u32 s{S_W}, 4")
    a("s_cbranch_scc1 L_B_nopf0")
    prefetch_kv(a)
    a.label("L_B_nopf0")
    UPF = True
    a(f"s_lshl_b32 s6, s{S_CH0}, 1")
    mk_srd(a, SRD_K, P['u'], 2621440)
    mk_srd(a, SRD_O, P['out'], 5242880)
    if not os.environ.get("NOUPF"):
        a(f"s_cmp_lt_u32 s{S_W}, 4")
        a("s_cbranch_scc1 L_B_nopf1")
        a(f"s_lshr_b32 s5, s{S_CH0}, 2")
        a("s_and_b32 s5, s5, 7")
        a("s_lshl_b32 s5, s5, 2")
        a(f"s_add_u32 s5, s5, s{S_W}")
        a("s_sub_u32 s5, s5, 4")
        a("s_mul_i32 s5, s5, 81920")
        a("s_add_u32 s5, s5, s6")
        if os.environ.get("NOUPF2"):
            a("s_mov_b32 s5, 0x70000000")
        a(f"buffer_load_dword v229, s[{SRD_K}:{SRD_K + 3}], s5 offen lds")
        prefetch_kv(a, True)
        a.label("L_B_nopf1")
    a(f"s_mul_i32 s7, s{S_W}, {256 * 1280}")
    a("s_add_u32 s7, s7, s6")
    a(f"v_mul_u32_u24 v{V_ROW}, 5120, v{V_LANE}")
    a(f"v_add_u32 v{V_ROW}, s7, v{V_ROW}")
    UR = [202, 230, 252, 254]
    UR2 = [170, 172, 174, 176]

    def uloads(R, second):
        so = "s93" if second else "0"
        for j in range(4):
            a(f"buffer_load_dwordx2 {vr(R[j], 2)}, v{V_ROW}, s[{SRD_K}:{SRD_K + 3}], {so} offen offset:{1280 * j}")

    def uprod(R, t, second, cnt):
        a(f"s_waitcnt vmcnt({cnt})")
        for d in range(4):
            c, hh = d // 2, d % 2
            sel = "s78" if hh == 0 else "s79"
            a(f"v_perm_b32 v{t + 2 * d}, v{R[2] + c}, v{R[3] + c}, {sel}")
            a(f"v_perm_b32 v{t + 2 * d + 1}, v{R[0] + c}, v{R[1] + c}, {sel}")
            a(f"ds_write_b64 v4, {vr(t + 2 * d, 2)} offset:{XSTR * d + (0 if second else 2048)}")
        a(f"ds_write_b32 v5, v{V_ONE} offset:{FLAGS + 16 * second}")

    a(f"s_mov_b32 s93, {1024 * 1280}")
    a(f"s_mul_i32 s84, s64, {KSTR_B}")
    a(f"s_add_u32 s84, s84, {B_KC}")
    a(f"s_mul_i32 s85, s64, {XSTR}")
    a(f"s_add_u32 s85, s85, {B_XR}")
    a(f"s_mul_i32 s86, s{S_W}, {STW}")
    a(f"s_add_u32 s86, s86, {B_ST}")
    a(f"s_mul_i32 s87, s64, {2 * STW}")
    a(f"s_add_u32 s87, s87, {B_ST}")
    a("v_mov_b32 v6, 0")
    a("v_mov_b32 v7, 0")
    T = 24
    a(f"v_lshlrev_b32 v{T}, 3, v{V_LANE}")
    a(f"v_add_u32 v{T}, s85, v{T}")
    a(f"ds_write_b64 v{T}, v[6:7] offset:4096")
    conv_addrs(a, T, 84, 85, CSTR_B)
    GA = 232

    def fin_addr(g):
        a(f"v_lshrrev_b32 v{T + 3}, 3, v{g}")
        a(f"v_add_u32 v{g}, v{g}, v{T + 3}")
        a(f"v_lshl_add_u32 v{g}, v{g}, 2, s87")

    a("s_lshl_b32 s5, s65, 10")
    a(f"v_lshlrev_b32 v{T}, 3, v{V_LANE}")
    a("s_cmp_lg_u32 s65, 0")
    a("s_cbranch_scc1 L_B_ga1")
    a(f"v_cvt_f32_u32 v{T + 1}, v{T}")
    a("s_movk_i32 s71, 127")
    for x in range(0, 11, 2):
        g = GA + x
        a(f"v_add_f32 v{T + 2}, {f32bits(float(x)):#x}, v{T + 1}")
        a(f"v_add_f32 v{T + 3}, {f32bits(float(x + 1)):#x}, v{T + 1}")
        a(f"v_cvt_pk_bf16_f32 v{T + 2}, v{T + 2}, v{T + 3}")
        for y in range(2):
            if x + y > 10:
                continue
            if y == 0:
                a(f"v_and_b32 v{g}, 0xffff, v{T + 2}")
            else:
                a(f"v_lshrrev_b32 v{g + 1}, 16, v{T + 2}")
            a(f"v_subrev_u32 v{g + y}, 17024, v{g + y}")
            a(f"v_add_u32 v{T + 3}, {x + y}, v{T}")
            a(f"v_med3_i32 v{g + y}, v{g + y}, v{T + 3}, s71")
            fin_addr(g + y)
    a(f"v_lshlrev_b32 v{T + 1}, 1, v{V_LANE}")
    for i in range(3):
        a(f"v_add_u32 v{GA + 11 + i}, {384 + i}, v{T + 1}")
        fin_addr(GA + 11 + i)
    a("s_branch L_B_ga2")
    a.label("L_B_ga1")
    a(f"v_and_b32 v{T + 1}, 1, v{V_LANE}")
    a(f"v_add_u32 v{T + 1}, v{T + 1}, v{V_LANE}")
    for rd in range(2):
        a(f"v_add_u32 v{GA + 3 * rd}, {512 + 64 * rd}, v{V_LANE}")
        a(f"v_add_u32 v{GA + 3 * rd + 1}, {513 + 64 * rd}, v{V_LANE}")
        a(f"v_add_u32 v{GA + 3 * rd + 2}, {512 + 64 * rd}, v{T + 1}")
        for i in range(3):
            fin_addr(GA + 3 * rd + i)
    a.label("L_B_ga2")
    a(f"v_add_u32 v{T}, s5, v{T}")
    a(f"v_lshlrev_b32 v250, 1, v{T}")
    a("v_add_u32 v250, s84, v250")
    WA, RA = 216, 224
    a(f"v_lshlrev_b32 v{WA}, 2, v{V_LANE}")
    a(f"v_add_u32 v{WA}, s86, v{WA}")
    for i in range(1, 8):
        a(f"v_add_u32 v{WA + i}, {1088 * i}, v{WA}")
    a(f"v_and_b32 v{T}, 15, v{V_LANE}")
    a(f"v_lshrrev_b32 v{T + 1}, 4, v{V_LANE}")
    a(f"v_mul_u32_u24 v{RA}, 544, v{T}")
    a(f"v_lshl_add_u32 v{RA}, v{T + 1}, 4, v{RA}")
    a(f"v_add_u32 v{RA}, s86, v{RA}")
    SA = 225
    a("s_mov_b32 s5, s86")
    a(f"v_lshrrev_b32 v{SA}, 1, v{T + 1}")
    a(f"v_lshlrev_b32 v{SA}, 7, v{SA}")
    a(f"v_and_b32 v{T + 2}, 1, v{T + 1}")
    a(f"v_lshl_add_u32 v{SA}, v{T + 2}, 2, v{SA}")
    a(f"v_lshl_add_u32 v{SA}, v{T}, 3, v{SA}")
    a(f"v_lshrrev_b32 v{T + 4}, 3, v{SA}")
    a(f"v_add_u32 v{SA}, v{SA}, v{T + 4}")
    a(f"v_lshl_add_u32 v{SA}, v{SA}, 2, s5")
    a(f"v_lshlrev_b32 v{SA + 1}, 6, v{T + 1}")
    a(f"v_add_u32 v{SA + 1}, 256, v{SA + 1}")
    a(f"v_cmp_gt_u32 vcc, 2, v{T + 1}")
    a(f"v_lshlrev_b32 v{T + 2}, 2, v{T}")
    a(f"v_lshlrev_b32 v{T + 3}, 1, v{T}")
    a(f"v_cndmask_b32 v{T + 2}, v{T + 3}, v{T + 2}, vcc")
    a(f"v_add_u32 v{SA + 1}, v{SA + 1}, v{T + 2}")
    a(f"v_lshrrev_b32 v{T + 4}, 3, v{SA + 1}")
    a(f"v_add_u32 v{SA + 1}, v{SA + 1}, v{T + 4}")
    a(f"v_lshl_add_u32 v{SA + 1}, v{SA + 1}, 2, s5")
    a(f"v_mov_b32 v{T + 2}, 144")
    a(f"v_cndmask_b32_e64 v{T + 2}, v{T + 2}, 8, vcc")
    a(f"v_add_u32 v{SA + 2}, v{SA + 1}, v{T + 2}")
    a(f"v_lshl_add_u32 v{SA + 3}, v{T + 1}, 6, v{T}")
    a(f"v_add_u32 v{SA + 3}, 512, v{SA + 3}")
    a(f"v_lshrrev_b32 v{T + 4}, 3, v{SA + 3}")
    a(f"v_add_u32 v{SA + 3}, v{SA + 3}, v{T + 4}")
    a(f"v_lshl_add_u32 v{SA + 3}, v{SA + 3}, 2, s5")
    a(f"s_lshl_b32 s5, s{S_W}, 9")
    a(f"s_sub_u32 s5, {B_XR + 4088 - 2048}, s5")
    a(f"v_lshlrev_b32 v4, 3, v{V_LANE}")
    a("v_sub_u32 v4, s5, v4")
    a("s_lshl_b32 s5, s64, 2")
    a(f"v_add_u32 v2, s5, v{V_ZERO}")
    a(f"s_lshl_b32 s5, s{S_W}, 2")
    a(f"v_add_u32 v5, s5, v{V_ZERO}")
    a("s_waitcnt lgkmcnt(0)")
    a("s_lshr_b32 s5, s64, 1")
    a("s_cmp_eq_u32 s5, 0")
    a("s_cselect_b32 s66, s88, s89")
    a("s_cselect_b32 s92, s90, s91")
    a("s_and_b32 s5, s64, 1")
    a("s_lshl_b32 s5, s5, 4")
    a("s_lshr_b32 s66, s66, s5")
    a("s_lshl_b32 s66, s66, 16")
    a("s_lshr_b32 s92, s92, s5")
    a("s_and_b32 s92, s92, 0xffff")
    L2E = 1.4426950408889634
    I2P = 0.15915494309189535
    a(f"s_mov_b32 s68, {f32bits(f32(L2E)):#x}")
    a(f"s_mov_b32 s69, {f32bits(L2E - f32(L2E)):#x}")
    a(f"s_mov_b32 s70, {f32bits(0.6931471805599453):#x}")
    a(f"s_mov_b32 s71, {f32bits(f32(I2P)):#x}")
    a(f"s_mov_b32 s72, {f32bits(I2P - f32(I2P)):#x}")
    a(f"v_mov_b32 v{T}, s66")
    a(f"v_mul_f32 v{T + 1}, s68, v{T}")
    a(f"v_fma_f32 v{T + 2}, v{T}, s68, -v{T + 1}")
    a(f"v_fmac_f32 v{T + 2}, s69, v{T}")
    a(f"v_exp_f32 v{T + 3}, v{T + 1}")
    a(f"v_mul_f32 v{T + 2}, s70, v{T + 2}")
    a("s_nop 0")
    a(f"v_fma_f32 v{T + 3}, v{T + 3}, v{T + 2}, v{T + 3}")
    a(f"v_cvt_pk_bf16_f32 v{T + 3}, v{T + 3}, v{T + 3}")
    a(f"v_lshlrev_b32 v{T + 3}, 16, v{T + 3}")
    a.stamp(1)
    a(f"s_cmp_lt_u32 s{S_W}, 4")
    a("s_cbranch_scc1 L_B_w0")
    a("s_waitcnt vmcnt(5)")
    a("s_branch L_B_w1")
    a.label("L_B_w0")
    a("s_waitcnt vmcnt(0)")
    a.label("L_B_w1")
    a.stamp(2)
    if os.environ.get("BP1"):
        a("s_setprio 1")
    for i in range(6):
        a(f"v_lshlrev_b32 v{PR + i}, 16, v{PR + i}")
    for i in range(4):
        a(f"v_mul_f32 v{PR + i}, v{T + 3}, v{PR + i}")

    EE, ZZ, HH = 48, 80, 96
    Z128, Z256, Z512, Z1024 = 130, 132, 134, 136
    TP, PK, KD = 138, 170, 204

    def batch(fns):
        n = max(len(f) for f in fns)
        for i in range(n):
            for f in fns:
                if i < len(f):
                    a(f[i])

    def cmul_i(d, x, y, t):
        return [f"v_pk_mul_f32 {vr(t, 2)}, {vr(x, 2)}, {vr(y, 2)} op_sel:[0,0] op_sel_hi:[1,0]",
                f"v_pk_fma_f32 {vr(d, 2)}, {vr(x, 2)}, {vr(y, 2)}, {vr(t, 2)} op_sel:[1,1,0] op_sel_hi:[0,1,1] neg_lo:[1,0,0]"]

    def cmuls(lst):
        batch([cmul_i(d, x, y, TP + 2 * i) for i, (d, x, y) in enumerate(lst)])

    def anchor_i(d, sreg, t, conj):
        return [f"v_mul_f32 v{t}, s{sreg}, v{PR}",
                f"v_mul_f32 v{t + 1}, s{sreg}, v{PR + 1}",
                f"v_mul_f32 v{t}, s68, v{t}",
                f"v_mul_f32 v{t + 2}, s71, v{t + 1}",
                f"v_exp_f32 v{t}, v{t}",
                f"v_fma_f32 v{t + 3}, v{t + 1}, s71, -v{t + 2}",
                f"v_fmac_f32 v{t + 3}, s72, v{t + 1}",
                f"v_fract_f32 v{t + 2}, v{t + 2}",
                f"v_add_f32 v{t + 2}, v{t + 2}, v{t + 3}",
                f"v_cos_f32 v{t + 1}, v{t + 2}",
                f"v_sin_f32 v{t + 3}, v{t + 2}",
                f"v_mul_f32 v{d}, v{t}, v{t + 1}",
                (f"v_mul_f32_e64 v{d + 1}, -v{t}, v{t + 3}" if conj else f"v_mul_f32 v{d + 1}, v{t}, v{t + 3}")]

    a("s_mov_b32 s80, 0x0000bf80")
    a("s_mov_b32 s81, 0xbf800000")
    anchors = [(EE + 2, 8, True), (EE + 16, 64, True), (ZZ + 2, 1, False), (Z128, 128, False), (Z1024, 1024, False)]
    for i, (d, lam, cj) in enumerate(anchors):
        a(f"s_mov_b32 s{73 + i}, {f32bits(float(lam)):#x}")
    batch([anchor_i(d, 73 + i, TP + 4 * i, cj) for i, (d, lam, cj) in enumerate(anchors)]
          + [cmul_i(HH, PR + 4, PR + 2, TP + 20)])
    a(f"v_max_f32_e64 v{TP}, abs(v{HH}), abs(v{HH + 1})")
    a(f"v_cmp_lt_f32 vcc, 0, v{PR}")
    a("s_nop 0")
    for ctl in ("row_shr:1 row_mask:0xf", "row_shr:2 row_mask:0xf", "row_shr:4 row_mask:0xf", "row_shr:8 row_mask:0xf",
                "row_bcast:15 row_mask:0xa", "row_bcast:31 row_mask:0xc"):
        a(f"v_max_f32_dpp v{TP}, v{TP}, v{TP} {ctl} bank_mask:0xf")
        a("s_nop 1")
    a(f"v_readlane_b32 s5, v{TP}, 63")
    a("s_or_b32 s83, vcc_lo, vcc_hi")
    a(f"v_mov_b32 v{EE}, 1.0")
    a(f"v_mov_b32 v{EE + 1}, 0")
    a("s_lshr_b32 s5, s5, 23")
    a("s_max_u32 s5, s5, 1")
    a("s_min_u32 s5, s5, 252")
    a("s_sub_u32 s82, 253, s5")
    a("s_lshl_b32 s82, s82, 23")
    a("s_add_u32 s5, s5, 1")
    a("s_lshl_b32 s77, s5, 23")
    a(f"v_mul_f32 v{HH}, s82, v{HH}")
    a(f"v_mul_f32 v{HH + 1}, s82, v{HH + 1}")
    e = lambda r: EE + 2 * r
    z = lambda r: ZZ + 2 * r
    H = lambda h: HH + 2 * h
    cmuls([(e(2), e(1), e(1)), (z(2), z(1), z(1)), (Z256, Z128, Z128), (H(1), H(0), Z128), (e(9), e(8), e(1)),
           (H(8), H(0), Z1024)])
    cmuls([(e(3), e(2), e(1)), (e(4), e(2), e(2)), (z(3), z(2), z(1)), (z(4), z(2), z(2)), (Z512, Z256, Z256),
           (H(2), H(0), Z256), (H(3), H(1), Z256), (e(10), e(8), e(2)), (H(9), H(1), Z1024), (H(16), H(8), Z1024)])
    cmuls([(e(5), e(4), e(1)), (e(6), e(4), e(2)), (e(7), e(4), e(3)), (e(11), e(8), e(3)), (e(12), e(8), e(4)),
           (z(5), z(4), z(1)), (z(6), z(4), z(2)), (z(7), z(4), z(3)),
           (H(4), H(0), Z512), (H(5), H(1), Z512), (H(6), H(2), Z512), (H(7), H(3), Z512),
           (H(10), H(2), Z1024), (H(11), H(3), Z1024)])
    cmuls([(e(13), e(8), e(5)), (e(14), e(8), e(6)), (e(15), e(8), e(7)),
           (H(12), H(4), Z1024), (H(13), H(5), Z1024), (H(14), H(6), Z1024), (H(15), H(7), Z1024)])

    def split_i(x, row, t):
        hi, lo = PK + 2 * row, PK + 2 * row + 1
        return [f"v_cvt_pk_bf16_f32 v{hi}, v{x}, v{x + 1}",
                f"v_dot2_f32_bf16 v{t}, v{hi}, s80, v{x}",
                f"v_dot2_f32_bf16 v{t + 1}, v{hi}, s81, v{x + 1}",
                f"v_cvt_pk_bf16_f32 v{lo}, v{t}, v{t + 1}"]

    def wr_row(row):
        o = 136 * (row % 2)
        a.lds(f"ds_write2_b32 v{WA + row // 2}, v{PK + 2 * row}, v{PK + 2 * row + 1} offset0:{o} offset1:{o + 64}")

    def put_rows(vals, write=True):
        gs = 8 if len(vals) % 8 == 0 else 5
        for i0 in range(0, len(vals), gs):
            grp = vals[i0:i0 + gs]
            assert len(grp) >= 4
            batch([split_i(x, row, TP + 2 * i) for i, (x, row) in enumerate(grp)])
            if write:
                for x, row in grp:
                    wr_row(row)

    def read_frags(base, tag):
        for ks in range(4):
            a.lds(f"ds_read_b128 {vr(base + 4 * ks, 4)}, v{RA} offset:{64 * ks}", None)
            a.lds(f"ds_read_b128 {vr(base + 16 + 4 * ks, 4)}, v{RA} offset:{256 + 64 * ks}", tag)

    free_pairs = [16 + 2 * i for i in range(16)]

    def prod_lists():
        t0, l0, k = [], [], 0
        for h in range(2):
            t0.append((H(h), 8 * h))
            for eps in range(1, 8):
                l0.append((free_pairs[k], H(h), z(eps)))
                t0.append((free_pairs[k], 8 * h + eps))
                k += 1
        t1, l1, k = [], [], 0
        for hp in range(2):
            t1.append((H(2 + hp), 4 * hp))
            for ep in range(1, 4):
                l1.append((free_pairs[k], H(2 + hp), z(2 * ep)))
                t1.append((free_pairs[k], 4 * hp + ep))
                k += 1
        for hp in range(4):
            t1.append((H(4 + hp), 8 + 2 * hp))
            l1.append((free_pairs[k], H(4 + hp), z(4)))
            t1.append((free_pairs[k], 8 + 2 * hp + 1))
            k += 1
        return sorted(t0, key=lambda v: v[1]), l0, sorted(t1, key=lambda v: v[1]), l1

    def late_loads(tag):
        a(f"s_cmp_ge_u32 s{S_W}, 4")
        a(f"s_cbranch_scc1 L_B_nou5{tag}")
        uloads(UR, 0)
        uloads([188, 190, 192, 194], 1)
        prefetch_q(a)
        a.label(f"L_B_nou5{tag}")

    a("s_cmp_lg_u32 s83, 0")
    a("s_cbranch_scc1 L_B_kslow")
    t0_, l0_, t1_, l1_ = prod_lists()
    cmuls(l0_)
    for r in range(16):
        a(f"v_cvt_pk_f16_f32 v{PK + 2 * r}, v{e(r)}, v{e(r) + 1}")
        a(f"v_cvt_pk_f16_f32 v{PK + 2 * r + 1}, v{t0_[r][0]}, v{t0_[r][0] + 1}")
        if r:
            wr_row(r - 1)
    wr_row(15)
    read_frags(48, "P1")
    cmuls(l1_)
    for r in range(16):
        a(f"v_cvt_pk_f16_f32 v{PK + 2 * r}, v{t1_[r][0]}, v{t1_[r][0] + 1}")
        if r < 9:
            a(f"v_cvt_pk_f16_f32 v{PK + 2 * r + 1}, v{H(8 + r)}, v{H(8 + r) + 1}")
        if r:
            wr_row(r - 1)
    wr_row(15)
    read_frags(80, "P2")
    late_loads("f")
    a.lds_need("P1")
    for m, base, tag in ((0, 64, None), (1, 80, "P2"), (2, 96, None)):
        if tag:
            a.lds_need(tag)
        c = vr(KD + 4 * m, 4)
        for ks in range(4):
            a(f"v_mfma_f32_16x16x32_f16 {c}, {vr(base + 4 * ks, 4)}, {vr(48 + 4 * ks, 4)}, {'0' if ks == 0 else c}")
    a("s_branch L_B_kdone")
    a.label("L_B_kslow")
    a.lds_q = []
    put_rows([(e(r), r) for r in range(16)])
    E2F = EE
    read_frags(E2F, "E2")
    RT = TP + 16

    def mfma_tile(m, E1F, tag):
        a.lds_need(tag)
        c = vr(KD + 4 * m, 4)
        first = True
        for ks in range(4):
            for (x, y) in ((16, 0), (0, 16), (0, 0)):
                src = "0" if first else c
                first = False
                a(f"v_mfma_f32_16x16x32_bf16 {c}, {vr(E1F + x + 4 * ks, 4)}, {vr(E2F + y + 4 * ks, 4)}, {src}")

    free_pairs = [16 + 2 * i for i in range(16)]
    t0, lst, k = [], [], 0
    for h in range(2):
        t0.append((H(h), 8 * h))
        for eps in range(1, 8):
            lst.append((free_pairs[k], H(h), z(eps)))
            t0.append((free_pairs[k], 8 * h + eps))
            k += 1
    cmuls(lst)
    put_rows(sorted(t0, key=lambda v: v[1]))
    t1, lst, k = [], [], 0
    for hp in range(2):
        t1.append((H(2 + hp), 4 * hp))
        for ep in range(1, 4):
            lst.append((free_pairs[k], H(2 + hp), z(2 * ep)))
            t1.append((free_pairs[k], 4 * hp + ep))
            k += 1
    for hp in range(4):
        t1.append((H(4 + hp), 8 + 2 * hp))
        lst.append((free_pairs[k], H(4 + hp), z(4)))
        t1.append((free_pairs[k], 8 + 2 * hp + 1))
        k += 1
    cmuls(lst)
    put_rows(sorted(t1, key=lambda v: v[1]), write=False)
    E1F, E1G = 80, 16
    read_frags(E1F, "T0")
    for row in range(16):
        wr_row(row)
    read_frags(E1G, "T1")
    put_rows([(H(8 + hp), hp) for hp in range(9)])
    late_loads("s")
    mfma_tile(0, E1F, "T0")
    mfma_tile(1, E1G, "T1")
    read_frags(E1F, "T2")
    mfma_tile(2, E1F, "T2")
    a.label("L_B_kdone")
    a.lds_q = []
    a.stamp(3)
    a("s_nop 7")
    for j in range(12):
        a(f"v_mul_f32 v{KD + j}, s77, v{KD + j}")
    for j in range(4):
        a.lds(f"ds_write_b32 v{SA}, v{KD + j} offset:{4 * j}")
    a.lds(f"ds_write_b32 v{SA + 1}, v{KD + 4}")
    a.lds(f"ds_write_b32 v{SA + 1}, v{KD + 5} offset:4")
    a.lds(f"ds_write_b32 v{SA + 2}, v{KD + 6}")
    a.lds(f"ds_write_b32 v{SA + 2}, v{KD + 7} offset:4")
    for j in range(4):
        a.lds(f"ds_write_b32 v{SA + 3}, v{KD + 8 + j} offset:{72 * j}")
    one_lane(a, f"ds_add_u32 v2, v{V_ONE} offset:{FLAGS + 64}")
    a.lds(f"ds_read_b32 v{V_FLG}, v2 offset:{FLAGS + 64}", "tc")
    flag_check(a, FLAGS + 64, "tc", 2, vaddr=2)
    a.stamp(6)
    GV = 48
    FD = 44
    a("s_cmp_lg_u32 s65, 0")
    a("s_cbranch_scc1 L_B_g1")
    for h in range(2):
        if h:
            a.label("L_B_g1")
        a.lds_q = []
        if h == 0:
            maps = [list(range(11)), [11 + i for i in (0, 0, 0, 1, 1, 1, 2, 2, 2, 2, 2)]]
            nrd = [11, 3]
        else:
            maps = [[3 * rd + i for i in (0, 0, 0, 0, 2, 1, 1, 1, 1, 1, 1)] for rd in range(2)]
            nrd = [3, 3]
        k = 0
        for rd in range(2):
            for _ in range(nrd[rd]):
                a.lds(f"ds_read2st64_b32 {vr(GV + 2 * k, 2)}, v{GA + k} offset0:0 offset1:{STW // 256}", ("g", rd))
                k += 1
        build_FD(a, FD, 92, 92)
        k = 0
        for rd in range(2):
            a.lds_need(("g", rd))
            for _ in range(nrd[rd]):
                a(f"v_add_f32 v{GV + 2 * k}, v{GV + 2 * k}, v{GV + 2 * k + 1}")
                k += 1
            o = 96 + 16 * rd
            mp = maps[rd]
            for c in range(4):
                for x in range(4):
                    a(f"v_cvt_pk_bf16_f32 v{o + 4 * c + x}, v{GV + 2 * mp[2 * x + c]}, v{GV + 2 * mp[2 * x + c + 1]}")
            write4(a, 250, [o, o + 4, o + 8, o + 12], 32 + 1024 * rd, CSTR_B)
        if h == 0:
            a(f"v_lshlrev_b32 v32, 2, v{V_LANE}")
            a("v_add_u32 v32, s84, v32")
            write_pads(a, 32, 34, 96, 100, CSTR_B)
            a("s_branch L_B_nopad")
    a.label("L_B_nopad")
    one_lane(a, f"ds_add_u32 v2, v{V_ONE} offset:{FLAGS + 80}")
    a(f"s_cmp_ge_u32 s{S_W}, 4")
    a("s_cbranch_scc1 L_B_nou6")
    a("s_mov_b32 s78, 0x05040100")
    a("s_mov_b32 s79, 0x07060302")
    uprod(UR, TP, 0, 6)
    uprod([188, 190, 192, 194], TP + 8, 1, 2)
    a.label("L_B_nou6")
    a("v_mov_b32 v7, v5")
    a(f"v_lshlrev_b32 v5, 4, v{V_LANE}")
    a("v_add_u32 v5, s86, v5")
    a(f"v_and_b32 v6, 3, v{V_LANE}")
    a(f"v_lshrrev_b32 v32, 2, v{V_LANE}")
    a("v_lshl_add_u32 v6, v6, 4, v32")
    a("v_lshlrev_b32 v6, 4, v6")
    a(f"s_lshl_b32 s5, s{S_W}, 10")
    a(f"s_add_u32 s5, s5, {B_ST}")
    a("v_add_u32 v6, s5, v6")
    a.lds_drain()
    a.lds(f"ds_read_b32 v{V_FLG}, v2 offset:{FLAGS + 80}", "kc")
    flag_check(a, FLAGS + 80, "kc", 2, vaddr=2)
    a.stamp(8)
    if os.environ.get("BP1"):
        a("s_setprio 0")
    if os.environ.get("BP2"):
        a(f"s_cmp_lt_u32 s{S_W}, 4")
        a("s_cbranch_scc1 L_B_np")
        a("s_setprio 1")
        a.label("L_B_np")
    ACC, GB, FB = 64, 48, 96

    def on_done(p):
        if os.environ.get("X_NODONE"):
            return
        a.lds(f"ds_write_b128 v5, {vr(ACC + 4 * p, 4)} offset:{1024 * p}")
        if os.environ.get("X_NOSIG"):
            return
        one_lane(a, f"ds_add_u32 v{V_ZERO}, v{V_ONE} offset:{FLAGS + 32 + 4 * p}")

    def final(second):
        co = FLAGS + 32 + 16 * second
        so = 4096 * second
        if second:
            a("s_mov_b32 s7, 8")
        else:
            a(f"s_cmp_lt_u32 s{S_W}, 2")
            a("s_cselect_b32 s7, 4, 8")
        a.lds(f"ds_read_b32 v{V_FLG}, v7 offset:{co}", "cnt")
        flag_check(a, co, "cnt", "s7", vaddr=7)
        Y0, Y1 = 16, 32
        O = 48 + 8 * second
        for d in range(4):
            a(f"ds_read_b128 {vr(Y0 + 4 * d, 4)}, v6 offset:{2 * STW * d + so}")
        sk = a.newlabel("L_sk")
        a(f"v_lshlrev_b32 v2, 1, v{V_ROW}")
        a("v_subrev_u32 v2, s6, v2")
        a(f"v_add_u32 v2, {1280 + second * 1024 * 2560}, v2")
        if not second:
            a(f"s_cmp_lt_u32 s{S_W}, 2")
            a(f"s_cbranch_scc1 {sk}")
        for d in range(4):
            a(f"ds_read_b128 {vr(Y1 + 4 * d, 4)}, v6 offset:{2 * STW * d + STW + so}")
        a("s_waitcnt lgkmcnt(0)")
        for i in range(16):
            a(f"v_add_f32 v{Y0 + i}, v{Y0 + i}, v{Y1 + i}")
        a.label(sk)
        a.lds_drain()
        for r in range(4):
            for c in range(2):
                a(f"v_cvt_pk_bf16_f32 v{O + 2 * r + c}, v{Y0 + 8 * c + r}, v{Y0 + 8 * c + 4 + r}")
            if r == 2:
                a("v_add_u32 v2, 5120, v2")
            a(f"buffer_store_dwordx2 {vr(O + 2 * r, 2)}, v2, s[{SRD_O}:{SRD_O + 3}], 0 offen offset:{2560 * (r % 2)}")

    a("s_cmp_lg_u32 s65, 0")
    a("s_cbranch_scc1 L_B_h1")
    for h in (0, 1):
        if h:
            a.label("L_B_h1")
        a.lds_q = []
        Es = [0, 1, 5] if h == 0 else [2, 3, 4, 6, 7]
        pool = [48, 52, 56, 60] + [16 + 4 * i for i in range(7)]
        cv = Conv(a, FB, ACC, pool, {E: i for i, E in enumerate(Es)}, FD=FD)
        if h == 0:
            plan = [(0, [0], [1]), (1, [0, 1], [5]), (2, [0, 1, 5], []), (0, [1, 5], []), (1, [5], []),
                    (3, [0, 1], []), (4, [0, 1], []), (5, [0, 1], []), (6, [0, 1], []), (7, [0], [])]
        else:
            plan = [(0, [2], [3]), (1, [2, 3], [4]), (2, [2, 3, 4], [6]), (3, [2, 3, 4], [7]), (0, [3, 4, 6, 7], []),
                    (1, [4, 6], []), (4, [2, 3], []), (5, [2], [])]
        last = {}
        for k, (D, E_, ld) in enumerate(plan):
            for E in E_:
                last[E + D] = k
        assert sorted((E, D) for D, E_, _ in plan for E in E_) == sorted((E, D) for E in Es for D in range(8 - E))
        st = [dict(D=D, Es=E_, load=ld, need=D, done=[p for p in last if last[p] == k]) for k, (D, E_, ld) in enumerate(plan)]
        cv.run(st, on_done, jit_first=True)
        a.stamp(9)
        if h == 0:
            a("s_branch L_B_fin")
    a.label("L_B_fin")
    a.lds_drain()
    a(f"s_cmp_ge_u32 s{S_W}, 4")
    a("s_cbranch_scc1 L_B_done")
    if not os.environ.get("X_NOFIN"):
        final(0)
        final(1)
    a.label("L_B_done")
    a("s_waitcnt vmcnt(0)")
    a.stamp(11)
    a.stamp_out()
    a("s_endpgm")


def gen():
    a = Asm()
    prologue(a)
    path_A(a)
    path_B(a)
    a.lines += a.tail
    a.label("L_end")
    a("s_endpgm")
    return a


def main():
    a = gen()
    ref = open(f"cdna_kernels/{NAME}.s.ref").read()
    head = ref[:ref.index("; @launch")]
    out = head
    out += f"; @launch grid=(256,1,1) block=(512,1,1) lds={LDS_BYTES}\n"
    out += """; Generated by a hand-written Python generator (no compiler output).  One fused launch:
"""
    out += '.amdgcn_target "amdgcn-amd-amdhsa--gfx950"\n.text\n'
    out += f".globl {NAME}_kernel\n.p2align 8\n.type {NAME}_kernel,@function\n{NAME}_kernel:\n"
    out += "\n".join(a.lines) + "\n"
    out += f""".section .rodata,"a"
.p2align 6
.amdhsa_kernel {NAME}_kernel
  .amdhsa_next_free_vgpr 256
  .amdhsa_next_free_sgpr 102
  .amdhsa_accum_offset 256
  .amdhsa_group_segment_fixed_size 0
  .amdhsa_kernarg_size 144
  .amdhsa_user_sgpr_count 2
  .amdhsa_user_sgpr_kernarg_segment_ptr 1
  .amdhsa_system_sgpr_workgroup_id_x 1
.end_amdhsa_kernel
"""
    path = sys.argv[1] if len(sys.argv) > 1 else f"cdna_kernels/{NAME}.s"
    open(path, "w").write(out)
    print("LDS", LDS_BYTES, "lines", len(a.lines))


if __name__ == "__main__":
    main()
```
